```python
import torch

def _softmax(x, axis=-1):
    return torch.softmax(x, dim=axis)
def _gelu(x):
    return torch.nn.functional.gelu(x, approximate="tanh")
def _silu(x):
    return torch.nn.functional.silu(x)
def _sigmoid(x):
    return torch.sigmoid(x)
def _layernorm(x, axis=-1, eps=1e-5):
    m = x.mean(dim=axis, keepdim=True)
    v = x.var(dim=axis, keepdim=True, unbiased=False)
    return (x - m) / torch.sqrt(v + eps)
def _scatter_add(tgt, idx, src, axis=0):
    return tgt.clone().index_add_(axis, idx, src)
def _segment_sum(src, seg, n):
    out = torch.zeros((n,) + src.shape[1:], dtype=src.dtype)
    return out.index_add_(0, seg, src)
def _pad(x, pw):
    flat = tuple(v for pair in reversed(pw) for v in pair)
    return torch.nn.functional.pad(x, flat)

kernel_name = 'standalone__edge_featured_mpnn_gatedgcn__graph'

def setup_inputs():

    _w = (lambda a: (lambda t: t.to(torch.bfloat16) if t.is_floating_point() else t)(torch.as_tensor(a)))
    N, deg, D, De = 10000, 64, 64, max(4, 1)
    E = N * deg
    return {
        "x": _w((lambda *s: torch.randn(*s, dtype=torch.bfloat16) * 0.8)(N, D)),
        "e_attr": _w((lambda *s: torch.randn(*s, dtype=torch.bfloat16) * 0.8)(E, De)),
        "src": _w((lambda lo, hi, *s: torch.randint(lo, hi, s))(0, N, E).to(torch.int64)),
        "dst": _w((lambda lo, hi, *s: torch.randint(lo, hi, s))(0, N, E).to(torch.int64)),
        "w_a": _w((lambda *s: torch.randn(*s, dtype=torch.bfloat16) * 0.8)(D, D)),
        "w_b": _w((lambda *s: torch.randn(*s, dtype=torch.bfloat16) * 0.8)(D, D)),
        "w_c": _w((lambda *s: torch.randn(*s, dtype=torch.bfloat16) * 0.8)(De, D)),
        "w_u": _w((lambda *s: torch.randn(*s, dtype=torch.bfloat16) * 0.05)(D, D)),
        "w_v": _w((lambda *s: torch.randn(*s, dtype=torch.bfloat16) * 0.05)(D, D)),
    }

def reference(x, e_attr, src, dst, w_a, w_b, w_c, w_u, w_v):
    N, D = x.shape
    hv = x @ w_v
    g = x[dst] @ w_a + x[src] @ w_b + e_attr @ w_c
    eta = _sigmoid(g)
    denom = _segment_sum(eta, dst, N) + 1e-6
    eta_n = eta / denom[dst]
    agg = _segment_sum(eta_n * hv[src], dst, N)
    z = x @ w_u + agg
    relu_z = torch.where(z > 0, z, 0 * z)
    return x + relu_z
```

```python
import sys

MAIN = "standalone__edge_featured_mpnn_gatedgcn__graph_kernel"
PREP = "gcn_prep_kernel"

N_NODES = 10000
NB = 250
EPC = 2560
NPB = 40
WS_T = 0
WS_T2 = 0x280000
WS_TAB = 0x500000
WS_REC = 0x580000
REC_STRIDE = EPC * 12
NEG_L2E = 0xBFB8AA3B

out = []
def e(s): out.append("    " + s)
def lab(s): out.append(s + ":")
def cmt(s): out.append("    ; " + s)
def nop(n):
    while n > 0:
        k = min(n, 16)
        e(f"s_nop {k-1}")
        n -= k

def dpp_scan(v):
    for ctl in ("row_shr:1 row_mask:0xf bank_mask:0xf", "row_shr:2 row_mask:0xf bank_mask:0xf",
                "row_shr:4 row_mask:0xf bank_mask:0xf", "row_shr:8 row_mask:0xf bank_mask:0xf",
                "row_bcast:15 row_mask:0xa bank_mask:0xf", "row_bcast:31 row_mask:0xc bank_mask:0xf"):
        nop(2)
        e(f"v_add_u32_dpp v{v}, v{v}, v{v} {ctl}")

def load_kernargs():
    e("s_load_dwordx16 s[4:19], s[0:1], 0")
    e("s_load_dwordx8 s[20:27], s[0:1], 64")

def add64(d, s, imm):
    e(f"s_add_u32 s{d}, s{s}, {imm:#x}")
    e(f"s_addc_u32 s{d+1}, s{s+1}, 0")

K1_STG, K1_HIST, K1_OFF = 0, 30720, 33280
K1_LDS = 36864
W_PITCH = 144
W_MAT = 64 * W_PITCH

def gen_k1():
    out.append(f".globl {PREP}")
    out.append(".p2align 8")
    out.append(f".type {PREP},@function")
    lab(PREP)
    e("s_cmp_ge_u32 s2, 375")
    e("s_cbranch_scc1 K1_done")
    load_kernargs()
    e("s_cmp_ge_u32 s2, 250")
    e("s_cbranch_scc1 K1_tables")
    e("s_mul_i32 s28, s2, 10240")
    e("v_lshl_add_u32 v1, v0, 4, s28")
    e("s_lshl_b32 s29, s28, 1")
    e("v_lshl_add_u32 v2, v0, 5, s29")
    e("v_lshlrev_b32 v3, 2, v0")
    e("v_mov_b32 v20, 0")
    e(f"ds_write_b32 v3, v20 offset:{K1_HIST}")
    e("s_waitcnt lgkmcnt(0)")
    e("global_load_dwordx4 v[4:7], v1, s[10:11]")
    e("global_load_dwordx4 v[8:11], v1, s[8:9]")
    e("global_load_dwordx4 v[12:15], v2, s[6:7]")
    e("global_load_dwordx4 v[16:19], v2, s[6:7] offset:16")
    e("s_mov_b32 s30, 52429")
    e("s_movk_i32 s31, -40")
    e("v_mov_b32 v60, 1")
    e("v_readfirstlane_b32 s33, v0")
    e("s_barrier")
    e("s_lshr_b32 s33, s33, 6")
    e("s_waitcnt vmcnt(3)")
    for i in range(4):
        e(f"v_mul_u32_u24 v{20+i}, s30, v{4+i}")
    for i in range(4):
        e(f"v_lshrrev_b32 v{20+i}, 21, v{20+i}")
    for i in range(4):
        e(f"v_mad_i32_i24 v{28+i}, v{20+i}, s31, v{4+i}")
    for i in range(4):
        e(f"v_lshlrev_b32 v{20+i}, 2, v{20+i}")
    for i in range(4):
        e(f"ds_add_rtn_u32 v{24+i}, v{20+i}, v60 offset:{K1_HIST}")
    e("s_waitcnt vmcnt(2)")
    for i in range(4):
        e(f"v_lshlrev_b32 v{8+i}, 8, v{8+i}")
    for i in range(4):
        e(f"v_lshl_or_b32 v{28+i}, v{28+i}, 26, v{8+i}")
    e("v_and_b32 v32, 63, v0")
    e("v_lshlrev_b32 v32, 4, v32")
    e("s_waitcnt lgkmcnt(0)")
    e("s_barrier")
    e(f"ds_read_b128 v[36:39], v32 offset:{K1_HIST}")
    e("s_waitcnt lgkmcnt(0)")
    e("v_add_u32 v40, v36, v37")
    e("v_add_u32 v41, v40, v38")
    e("v_add_u32 v42, v41, v39")
    e("v_mov_b32 v43, v42")
    dpp_scan(43)
    e("v_sub_u32 v44, v43, v42")
    e("v_add_u32 v45, v44, v36")
    e("v_add_u32 v46, v44, v40")
    e("v_add_u32 v47, v44, v41")
    e(f"ds_write_b128 v32, v[44:47] offset:{K1_OFF}")
    for i in range(4):
        e(f"ds_read_b32 v{52+i}, v{20+i} offset:{K1_OFF}")
    e("s_cmp_lg_u32 s33, 0")
    e("s_cbranch_scc1 K1_notab")
    for k in range(4):
        e(f"v_lshl_or_b32 v{48+k}, v{36+k}, 16, v{44+k}")
    e("s_lshl_b32 s34, s2, 10")
    e("v_add_u32 v33, s34, v32")
    add64(36, 26, WS_TAB)
    e("global_store_dwordx4 v33, v[48:51], s[36:37]")
    lab("K1_notab")
    e("s_waitcnt lgkmcnt(0)")
    for i in range(4):
        e(f"v_add_u32 v{52+i}, v{52+i}, v{24+i}")
    for i in range(4):
        e(f"v_mul_u32_u24 v{52+i}, 12, v{52+i}")
    e("s_waitcnt vmcnt(0)")
    for i in range(4):
        e(f"ds_write2_b32 v{52+i}, v{12+2*i}, v{13+2*i} offset0:0 offset1:1")
        e(f"ds_write_b32 v{52+i}, v{28+i} offset:8")
    e("s_mul_i32 s34, s2, %d" % REC_STRIDE)
    add64(38, 26, WS_REC)
    e("s_add_u32 s38, s38, s34")
    e("s_addc_u32 s39, s39, 0")
    add64(40, 38, 10240)
    add64(42, 38, 20480)
    e("v_lshlrev_b32 v3, 4, v0")
    e("s_waitcnt lgkmcnt(0)")
    e("s_barrier")
    e("ds_read_b128 v[4:7], v3")
    e("ds_read_b128 v[8:11], v3 offset:10240")
    e("ds_read_b128 v[12:15], v3 offset:20480")
    e("s_waitcnt lgkmcnt(2)")
    e("global_store_dwordx4 v3, v[4:7], s[38:39]")
    e("s_waitcnt lgkmcnt(1)")
    e("global_store_dwordx4 v3, v[8:11], s[40:41]")
    e("s_waitcnt lgkmcnt(0)")
    e("global_store_dwordx4 v3, v[12:15], s[42:43]")
    e("s_endpgm")
    lab("K1_tables")
    e("s_sub_u32 s28, s2, 250")
    e("v_readfirstlane_b32 s33, v0")
    e("v_and_b32 v1, 63, v0")
    e("s_lshr_b32 s33, s33, 6")
    e("s_lshr_b32 s34, s33, 1")
    e("s_and_b32 s35, s33, 1")
    e("s_mul_i32 s36, s28, 80")
    e("s_lshl_b32 s37, s34, 4")
    e("s_add_u32 s36, s36, s37")
    e("v_and_b32 v2, 15, v1")
    e("v_lshrrev_b32 v3, 4, v1")
    e("v_add_u32 v60, s36, v2")
    e("v_lshlrev_b32 v61, 7, v60")
    e("v_lshl_add_u32 v61, v3, 4, v61")
    e("s_waitcnt lgkmcnt(0)")
    e("global_load_dwordx4 v[20:23], v61, s[4:5]")
    e("global_load_dwordx4 v[24:27], v61, s[4:5] offset:64")
    e("s_cmp_ge_u32 s33, 8")
    e("s_cbranch_scc1 K1_nostage")
    e("v_lshlrev_b32 v62, 4, v0")
    e("global_load_dwordx4 v[4:7], v62, s[14:15]")
    e("global_load_dwordx4 v[8:11], v62, s[20:21]")
    e("global_load_dwordx4 v[12:15], v62, s[12:13]")
    e("global_load_dwordx4 v[16:19], v62, s[18:19]")
    e("v_lshrrev_b32 v62, 3, v0")
    e(f"v_mul_u32_u24 v62, {W_PITCH}, v62")
    e("v_and_b32 v63, 7, v0")
    e("v_lshl_add_u32 v62, v63, 4, v62")
    e("s_waitcnt vmcnt(0)")
    for m in range(4):
        e(f"ds_write_b128 v62, v[{4+4*m}:{7+4*m}] offset:{m*W_MAT}")
    lab("K1_nostage")
    e("v_lshrrev_b32 v62, 2, v2")
    e("v_lshl_add_u32 v62, v3, 3, v62")
    e(f"v_mul_u32_u24 v62, {W_PITCH}, v62")
    e("v_and_b32 v63, 3, v2")
    e("v_lshl_add_u32 v62, v63, 3, v62")
    e(f"s_mul_i32 s37, s35, {2*W_MAT}")
    e("v_add_u32 v62, s37, v62")
    e("v_lshlrev_b32 v61, 8, v60")
    e("v_lshl_add_u32 v61, v3, 4, v61")
    e(f"s_mul_i32 s37, s35, {WS_T2}")
    e("s_add_u32 s38, s26, s37")
    e("s_addc_u32 s39, s27, 0")
    e(f"s_mov_b32 s40, {NEG_L2E:#x}")
    e("s_brev_b32 s41, 1")
    e("s_mov_b32 s42, 0x7fff0000")
    e("s_waitcnt vmcnt(0) lgkmcnt(0)")
    e("s_barrier")
    def wreads(ft, base):
        for mp in range(2):
            for ks in range(2):
                for half in range(2):
                    r = base + 8*mp + 4*ks + 2*half
                    off = mp*W_MAT + (32*ks + 4*half)*W_PITCH + ft*32
                    e(f"ds_read_b64_tr_b16 v[{r}:{r+1}], v62 offset:{off}")
    wreads(0, 28)
    for ft in range(4):
        base = 28 if ft % 2 == 0 else 44
        e("s_waitcnt lgkmcnt(0)")
        if ft < 3:
            wreads(ft+1, 44 if ft % 2 == 0 else 28)
        e(f"v_mfma_f32_16x16x32_bf16 v[4:7], v[{base}:{base+3}], v[20:23], 0")
        e(f"v_mfma_f32_16x16x32_bf16 v[8:11], v[{base+8}:{base+11}], v[20:23], 0")
        e(f"v_mfma_f32_16x16x32_bf16 v[4:7], v[{base+4}:{base+7}], v[24:27], v[4:7]")
        e(f"v_mfma_f32_16x16x32_bf16 v[8:11], v[{base+12}:{base+15}], v[24:27], v[8:11]")
        nop(8)
        for r in range(4):
            e(f"v_mul_f32 v{4+r}, s40, v{4+r}")
        e("s_cmp_eq_u32 s35, 0")
        e(f"s_cbranch_scc1 K1_T_{ft}")
        for r in range(4):
            e(f"v_cvt_pk_bf16_f32 v{12+r}, v{4+r}, v{8+r}")
        e(f"s_branch K1_st_{ft}")
        lab(f"K1_T_{ft}")
        e("v_cvt_pk_bf16_f32 v16, v4, v5")
        e("v_cvt_pk_bf16_f32 v17, v6, v7")
        e("v_and_b32 v4, 0xffff, v16")
        e("v_lshrrev_b32 v5, 16, v16")
        e("v_and_b32 v6, 0xffff, v17")
        e("v_lshrrev_b32 v7, 16, v17")
        for r in range(4):
            e(f"v_and_b32 v18, 0x7fffffff, v{8+r}")
            e("v_add_u32 v18, 0x8000, v18")
            e(f"v_sub_u32_e64 v18, v18, v{4+r} clamp")
            e(f"v_and_or_b32 v19, v{8+r}, s41, v{4+r}")
            e(f"v_bfi_b32 v{12+r}, s42, v18, v19")
        lab(f"K1_st_{ft}")
        e(f"global_store_dwordx4 v61, v[12:15], s[38:39] offset:{ft*64}")
        nop(2)
    e("s_or_b32 s37, s28, s33")
    e("s_cmp_lg_u32 s37, 0")
    e("s_cbranch_scc1 K1_done")
    e("v_lshlrev_b32 v2, 2, v1")
    e(f"v_add_u32 v2, {N_NODES*256:#x}, v2")
    e("v_mov_b32 v3, 0x7f00")
    e("global_store_dword v2, v3, s[26:27]")
    lab("K1_done")
    e("s_endpgm")

ACCN, ACCD = 0, 10240
CNT, MAXC, ZERO = 20480, 20736, 20752
START = 21504
T2L = 21760
IDX = 32000
CAPP = 8160
ATTR = IDX + 4*CAPP
K2_LDS = ATTR + 8*CAPP
DUMMY = N_NODES * 256

V_TID, V_L, V_L4 = 0, 1, 2
V_AI, V_AE, V_ESTR, V_EBASE = 3, 4, 5, 6
V_ACC, V_DESC = 7, 8
V_X = 12
V_END, V_ACCN = 14, 15
T = (16, 32)
D = 48
SEL = 64
EO, BE, ONE = 80, 84, 88
DEN, NUM = 92, 94
S_T = 28
S_WAVE, S_P32, S_MAX = 38, 39, 40
S_MASK = 44
S_POS, S_REND, S_SEG, S_NODE, S_NG = 60, 61, 62, 63, 64
S_POSN, S_NGN, S_FLUSH, S_NEWN, S_TMP, S_TMP2 = 65, 66, 67, 68, 69, 70
S_K = 72
S_EXM = 76

def slot(i, jj): return 16 + 4*(i + 4*jj)
def smask(i, jj): return S_MASK + 2*(i + 4*jj)

def issue_row_loads(tb, groups):
    for q in groups:
        for r in range(4):
            v = tb + 4*q + r
            e(f"buffer_load_dword v{v}, v{v}, s[{S_T}:{S_T+3}], 0 offen")

def row_loads_ladder(tb, sreg, tag):
    e(f"s_cmp_eq_u32 s{sreg}, 4")
    e(f"s_cbranch_scc0 {tag}_part")
    issue_row_loads(tb, range(4))
    e(f"s_branch {tag}_done")
    lab(f"{tag}_part")
    for q in range(3):
        e(f"s_cmp_le_u32 s{sreg}, {q}")
        e(f"s_cbranch_scc1 {tag}_pad")
        issue_row_loads(tb, [q])
    lab(f"{tag}_pad")
    nop(12)
    lab(f"{tag}_done")

def lds_reads(tb, spos):
    e(f"s_lshl_b32 s{S_TMP}, s{spos}, 2")
    e(f"v_mov_b32 v{V_AI}, s{S_TMP}")
    e(f"v_mad_u32_u24 v{V_AE}, v{V_ESTR}, s{spos}, v{V_EBASE}")
    for q in range(4):
        e(f"ds_read_b128 v[{tb+4*q}:{tb+4*q+3}], v{V_AI} offset:{IDX+16*q}")
    e(f"ds_read_b64 v[{EO}:{EO+1}], v{V_AE}")

def body(P, ng):
    tp, tq = T[P], T[1-P]
    tag = f"K2_b{P}{ng}"
    lab(tag)
    e(f"s_add_u32 s{S_POSN}, s{S_POS}, {4*ng}")
    e(f"s_mov_b32 s{S_NEWN}, 0")
    e(f"s_cmp_eq_u32 s{S_POSN}, s{S_SEG}")
    e(f"s_cselect_b32 s{S_FLUSH}, 1, 0")
    e(f"s_cbranch_scc0 {tag}_same")
    e(f"s_mov_b32 s{S_NGN}, 0")
    e(f"s_cmp_ge_u32 s{S_POSN}, s{S_REND}")
    e(f"s_cbranch_scc1 {tag}_desc")
    lab(f"{tag}_adv")
    e(f"s_add_u32 s{S_NODE}, s{S_NODE}, 1")
    e(f"v_readlane_b32 s{S_SEG}, v{V_END}, s{S_NODE}")
    nop(1)
    e(f"s_cmp_le_u32 s{S_SEG}, s{S_POSN}")
    e(f"s_cbranch_scc1 {tag}_adv")
    e(f"s_min_u32 s{S_SEG}, s{S_SEG}, s{S_REND}")
    e(f"s_mov_b32 s{S_NEWN}, 1")
    lab(f"{tag}_same")
    e(f"s_sub_u32 s{S_NGN}, s{S_SEG}, s{S_POSN}")
    e(f"s_lshr_b32 s{S_NGN}, s{S_NGN}, 2")
    e(f"s_min_u32 s{S_NGN}, s{S_NGN}, 4")
    lab(f"{tag}_desc")
    e("s_waitcnt vmcnt(0) lgkmcnt(0)")
    e(f"v_mfma_f32_32x32x16_bf16 v[{D}:{D+15}], v[{EO}:{EO+3}], v[{BE}:{BE+3}], 0")
    for q in range(ng):
        e(f"v_mfma_f32_32x32x16_bf16 v[{D}:{D+15}], v[{SEL+4*q}:{SEL+4*q+3}], v[{tp+4*q}:{tp+4*q+3}], v[{D}:{D+15}]")
    e(f"s_cmp_eq_u32 s{S_NEWN}, 0")
    e(f"s_cbranch_scc1 {tag}_nonew")
    e(f"s_lshl_b32 s{S_TMP}, s{S_NODE}, 8")
    e(f"v_add_u32 v{V_ACCN}, s{S_TMP}, v{V_L4}")
    e(f"ds_read_b32 v{BE+2}, v{V_ACCN} offset:{T2L}")
    lab(f"{tag}_nonew")
    lds_reads(tq, S_POSN)
    nop(6)
    for v in range(4*ng):
        e(f"v_exp_f32 v{D+v}, v{D+v}")
    nop(2)
    e(f"v_mfma_f32_32x32x16_bf16 v[{D}:{D+15}], v[{ONE}:{ONE+3}], v[{ONE}:{ONE+3}], v[{D}:{D+15}]")
    e("s_waitcnt lgkmcnt(0)")
    row_loads_ladder(tq, S_NGN, tag + "_ld")
    for v in range(4*ng):
        e(f"v_rcp_f32 v{D+v}, v{D+v}")
    for k in range(2*ng):
        e(f"v_pk_add_f32 v[{DEN}:{DEN+1}], v[{DEN}:{DEN+1}], v[{D+2*k}:{D+2*k+1}]")
        e(f"v_pk_fma_f32 v[{NUM}:{NUM+1}], v[{D+2*k}:{D+2*k+1}], v[{tp+2*k}:{tp+2*k+1}], v[{NUM}:{NUM+1}]")
    e(f"s_cmp_eq_u32 s{S_FLUSH}, 0")
    e(f"s_cbranch_scc1 {tag}_noflush")
    e(f"v_add_f32 v{DEN}, v{DEN}, v{DEN+1}")
    e(f"v_add_f32 v{NUM}, v{NUM}, v{NUM+1}")
    e(f"ds_add_f32 v{V_ACC}, v{DEN} offset:{ACCD}")
    e(f"ds_add_f32 v{V_ACC}, v{NUM} offset:{ACCN}")
    e(f"v_mov_b32 v{V_ACC}, v{V_ACCN}")
    for r in (DEN, DEN+1, NUM, NUM+1):
        e(f"v_mov_b32 v{r}, 0")
    lab(f"{tag}_noflush")
    e(f"s_mov_b32 s{S_POS}, s{S_POSN}")
    dispatch(1-P, S_NGN)

def dispatch(P, sreg):
    e(f"s_cmp_eq_u32 s{sreg}, 4")
    e(f"s_cbranch_scc1 K2_b{P}4")
    e(f"s_cmp_eq_u32 s{sreg}, 0")
    e("s_cbranch_scc1 K2_main_done")
    e(f"s_cmp_eq_u32 s{sreg}, 1")
    e(f"s_cbranch_scc1 K2_b{P}1")
    e(f"s_cmp_eq_u32 s{sreg}, 2")
    e(f"s_cbranch_scc1 K2_b{P}2")
    e(f"s_branch K2_b{P}3")

def gen_k2():
    out.append(f".globl {MAIN}")
    out.append(".p2align 8")
    out.append(f".type {MAIN},@function")
    lab(MAIN)
    e(f"s_cmp_ge_u32 s2, {NB}")
    e("s_cbranch_scc1 K2_done")
    load_kernargs()
    e(f"v_readfirstlane_b32 s{S_WAVE}, v0")
    e(f"v_and_b32 v{V_L}, 63, v0")
    e(f"v_lshlrev_b32 v{V_L4}, 2, v{V_L}")
    e(f"s_lshr_b32 s{S_WAVE}, s{S_WAVE}, 6")
    e(f"v_lshrrev_b32 v48, 4, v{V_L}")
    e(f"s_lshl_b32 s{S_TMP}, s{S_WAVE}, 2")
    e(f"v_add_u32 v48, s{S_TMP}, v48")
    e("v_lshlrev_b32 v48, 2, v48")
    e("s_lshl_b32 s41, s2, 2")
    e("v_lshl_add_u32 v49, v48, 10, s41")
    e("s_waitcnt lgkmcnt(0)")
    add64(32, 26, WS_TAB)
    for i in range(4):
        e(f"global_load_dword v{V_DESC+i}, v49, s[32:33] offset:{1024*i}")
    add64(34, 26, WS_REC)
    e(f"s_cmp_ge_u32 s{S_WAVE}, 10")
    e("s_cbranch_scc1 K2_no_t2")
    e("s_mul_i32 s41, s2, 10240")
    e("v_lshl_add_u32 v50, v0, 4, s41")
    add64(36, 26, WS_T2)
    e("global_load_dwordx4 v[52:55], v50, s[36:37]")
    e("s_mul_i32 s41, s2, 5120")
    e("v_lshl_add_u32 v50, v0, 3, s41")
    e(f"global_load_dwordx2 v[{V_X}:{V_X+1}], v50, s[4:5]")
    lab("K2_no_t2")
    e(f"v_lshlrev_b32 v50, 1, v{V_L}")
    for c in range(4):
        e(f"global_load_ushort v{56+c}, v50, s[16:17] offset:{128*c}")
    e(f"s_mov_b32 s{S_T}, s26")
    e(f"s_and_b32 s{S_T+1}, s27, 0xffff")
    e(f"s_or_b32 s{S_T+1}, s{S_T+1}, 0x40000")
    e(f"s_mov_b32 s{S_T+2}, {(N_NODES+1)*256}")
    e(f"s_mov_b32 s{S_T+3}, 0x00800000")
    for r in range(60, 64):
        e(f"v_mov_b32 v{r}, 0")
    e("v_lshlrev_b32 v51, 4, v0")
    e("ds_write_b128 v51, v[60:63]")
    e(f"s_cmp_ge_u32 s{S_WAVE}, 5")
    e("s_cbranch_scc1 K2_nozero2")
    e("ds_write_b128 v51, v[60:63] offset:16384")
    lab("K2_nozero2")
    e(f"v_and_b32 v60, 31, v{V_L}")
    e(f"v_lshrrev_b32 v61, 5, v{V_L}")
    e("v_bfe_u32 v62, v60, 2, 1")
    e("v_lshrrev_b32 v63, 3, v60")
    e("v_and_b32 v60, 3, v60")
    e("v_lshl_add_u32 v60, v63, 2, v60")
    e("v_cmp_eq_u32 vcc, v61, v62")
    e("v_mov_b32 v63, 31")
    nop(1)
    e("v_cndmask_b32 v63, v63, v60, vcc")
    e("v_mov_b32 v62, 8")
    e(f"v_cndmask_b32 v{V_ESTR}, 0, v62, vcc")
    e(f"v_lshlrev_b32 v60, 3, v60")
    e(f"v_add_u32 v60, {ATTR}, v60")
    e(f"v_mov_b32 v62, {ZERO}")
    e(f"v_cndmask_b32 v{V_EBASE}, v62, v60, vcc")
    e("v_mov_b32 v62, 0x3f80")
    e(f"v_cndmask_b32 v{EO+2}, 0, v62, vcc")
    e(f"v_mov_b32 v{EO+3}, 0")
    e(f"v_mov_b32 v{BE+3}, 0")
    e("v_lshlrev_b32 v63, v63, 1")
    for k in range(16):
        e(f"v_bfe_u32 v{SEL+k}, v63, {k}, 1")
    for k in range(16):
        e(f"v_mul_u32_u24 v{SEL+k}, v62, v{SEL+k}")
    e(f"v_cmp_gt_u32 vcc, 32, v{V_L}")
    e(f"v_mov_b32 v{ONE+1}, 0")
    e(f"v_mov_b32 v{ONE+2}, 0")
    e(f"v_cndmask_b32 v{ONE}, 0, v62, vcc")
    e(f"v_mov_b32 v{ONE+3}, 0")
    for r in (DEN, DEN+1, NUM, NUM+1):
        e(f"v_mov_b32 v{r}, 0")
    for i in range(4):
        e(f"s_mov_b32 s{S_K+i}, {i*REC_STRIDE}")
    e(f"s_mov_b32 s{S_P32}, 0")
    e("s_waitcnt vmcnt(0)")
    for i in range(4):
        e(f"v_add_u32 v60, {i}, v48")
        e(f"v_cmp_gt_u32 vcc, {NB}, v60")
        nop(1)
        e(f"v_cndmask_b32 v{V_DESC+i}, 0, v{V_DESC+i}, vcc")
    e(f"s_cmp_ge_u32 s{S_WAVE}, 10")
    e("s_cbranch_scc1 K2_no_t2w")
    e(f"ds_write_b128 v51, v[52:55] offset:{T2L}")
    lab("K2_no_t2w")
    e(f"s_mov_b32 s{S_TMP}, {NEG_L2E:#x}")
    for c in range(4):
        e(f"v_lshlrev_b32 v{56+c}, 16, v{56+c}")
    for c in range(4):
        e(f"v_mul_f32 v{56+c}, s{S_TMP}, v{56+c}")
    e(f"v_cvt_pk_bf16_f32 v{BE}, v56, v57")
    e(f"v_cvt_pk_bf16_f32 v{BE+1}, v58, v59")
    for i in range(4):
        e(f"v_lshrrev_b32 v{56+i}, 16, v{V_DESC+i}")
    e("v_max3_u32 v56, v56, v57, v58")
    e("v_max_u32 v56, v56, v59")
    e(f"v_mov_b32 v57, {MAXC}")
    e("s_waitcnt lgkmcnt(0)")
    e("s_barrier")
    e("v_cmp_lt_u32 vcc, 32, v56")
    e("s_cbranch_vccz K2_pass")
    e("ds_max_u32 v57, v56")
    lab("K2_pass")
    e(f"v_lshrrev_b32 v62, 4, v{V_L}")
    e(f"s_lshl_b32 s{S_TMP}, s{S_WAVE}, 2")
    e(f"v_add_u32 v62, s{S_TMP}, v62")
    e(f"v_mul_u32_u24 v62, {4*EPC}, v62")
    e(f"v_and_b32 v60, 15, v{V_L}")
    e(f"v_add_u32 v60, s{S_P32}, v60")
    e("v_add_u32 v61, 16, v60")
    def slot_loads(jj):
        vj = 60 + jj
        for i in range(4):
            r, m = slot(i, jj), smask(i, jj)
            e(f"v_lshrrev_b32 v63, 16, v{V_DESC+i}")
            e(f"v_cmp_gt_u32 s[{m}:{m+1}], v63, v{vj}")
            e(f"v_and_b32 v63, 0xffff, v{V_DESC+i}")
            e(f"v_add3_u32 v63, v63, v{vj}, v62")
            e(f"v_mad_u32_u24 v63, v63, 12, s{S_K+i}")
            e(f"s_mov_b64 exec, s[{m}:{m+1}]")
            e(f"s_cbranch_execz K2_skip_ld{i}{jj}")
            e(f"global_load_dwordx3 v[{r}:{r+2}], v63, s[34:35]")
            lab(f"K2_skip_ld{i}{jj}")
            e("s_mov_b64 exec, -1")
    slot_loads(0)
    slot_loads(1)
    def for_slots(fn, name):
        for jj in range(2):
            for i in range(4):
                r, m = slot(i, jj), smask(i, jj)
                e(f"s_mov_b64 exec, s[{m}:{m+1}]")
                e(f"s_cbranch_execz K2_{name}{i}{jj}")
                fn(i, jj, r)
                lab(f"K2_{name}{i}{jj}")
        e("s_mov_b64 exec, -1")
    e("v_mov_b32 v62, 1")
    e("s_waitcnt vmcnt(0)")
    def cnt_fn(i, jj, r):
        t = D + i + 4*jj
        e(f"v_lshrrev_b32 v{t}, 24, v{r+2}")
        e(f"ds_add_rtn_u32 v{r+3}, v{t}, v62 offset:{CNT}")
    for_slots(cnt_fn, "cnt")
    e("s_waitcnt lgkmcnt(0)")
    e("s_barrier")
    e(f"ds_read_b32 v60, v{V_L4} offset:{CNT}")
    e(f"v_mov_b32 v57, {MAXC}")
    e("ds_read_b32 v57, v57")
    e("s_waitcnt lgkmcnt(0)")
    e(f"v_readfirstlane_b32 s{S_MAX}, v57")
    e("v_add_u32 v61, 3, v60")
    e("v_and_b32 v61, -4, v61")
    e(f"v_mov_b32 v{V_END}, v61")
    dpp_scan(V_END)
    e(f"v_sub_u32 v59, v{V_END}, v61")
    e(f"ds_write_b32 v{V_L4}, v59 offset:{START}")
    def st_fn(i, jj, r):
        t = D + i + 4*jj
        e(f"ds_read_b32 v{t}, v{t} offset:{START}")
    for_slots(st_fn, "st")
    e(f"s_cmp_lg_u32 s{S_WAVE}, 15")
    e("s_cbranch_scc1 K2_nopad")
    e("v_add_u32 v59, v59, v60")
    e(f"v_mov_b32 v56, {DUMMY:#x}")
    e("v_mov_b32 v62, 0")
    e("v_mov_b32 v63, 0")
    for k in range(3):
        e(f"v_cmp_lt_u32 vcc, v59, v{V_END}")
        e("s_mov_b64 exec, vcc")
        e(f"s_cbranch_execz K2_padskip{k}")
        e("v_lshlrev_b32 v57, 2, v59")
        e(f"ds_write_b32 v57, v56 offset:{IDX}")
        e(f"v_lshlrev_b32 v57, 3, v59")
        e(f"v_add_u32 v57, {ATTR}, v57")
        e("ds_write_b64 v57, v[62:63]")
        lab(f"K2_padskip{k}")
        e("s_mov_b64 exec, -1")
        e("v_add_u32 v59, 1, v59")
    lab("K2_nopad")
    e("s_waitcnt lgkmcnt(0)")
    e(f"s_mov_b32 s{S_TMP2}, {ATTR}")
    def sc_fn(i, jj, r):
        t = D + i + 4*jj
        e(f"v_add_u32 v{t}, v{t}, v{r+3}")
        e(f"v_and_b32 v{r+2}, 0xffffff, v{r+2}")
        e(f"v_lshl_add_u32 v{r+3}, v{t}, 3, s{S_TMP2}")
        e(f"v_lshlrev_b32 v{t}, 2, v{t}")
        e(f"ds_write_b32 v{t}, v{r+2} offset:{IDX}")
        e(f"ds_write_b64 v{r+3}, v[{r}:{r+1}]")
    for_slots(sc_fn, "sc")
    e(f"v_readlane_b32 s{S_TMP}, v{V_END}, 63")
    e("s_waitcnt lgkmcnt(0)")
    e("s_barrier")
    e(f"s_lshr_b32 s{S_TMP}, s{S_TMP}, 2")
    e(f"s_mul_i32 s{S_POS}, s{S_TMP}, s{S_WAVE}")
    e(f"s_add_u32 s{S_REND}, s{S_POS}, s{S_TMP}")
    e(f"s_lshr_b32 s{S_POS}, s{S_POS}, 4")
    e(f"s_lshr_b32 s{S_REND}, s{S_REND}, 4")
    e(f"s_lshl_b32 s{S_POS}, s{S_POS}, 2")
    e(f"s_lshl_b32 s{S_REND}, s{S_REND}, 2")
    e(f"s_cmp_ge_u32 s{S_POS}, s{S_REND}")
    e("s_cbranch_scc1 K2_main_done")
    e(f"v_cmp_lt_u32 vcc, s{S_POS}, v{V_END}")
    nop(1)
    e(f"s_ff1_i32_b64 s{S_NODE}, vcc")
    nop(1)
    e(f"v_readlane_b32 s{S_SEG}, v{V_END}, s{S_NODE}")
    e(f"s_lshl_b32 s{S_TMP}, s{S_NODE}, 8")
    e(f"v_add_u32 v{V_ACC}, s{S_TMP}, v{V_L4}")
    e(f"v_mov_b32 v{V_ACCN}, v{V_ACC}")
    e(f"ds_read_b32 v{BE+2}, v{V_ACC} offset:{T2L}")
    e(f"s_min_u32 s{S_SEG}, s{S_SEG}, s{S_REND}")
    e(f"s_sub_u32 s{S_NG}, s{S_SEG}, s{S_POS}")
    e(f"s_lshr_b32 s{S_NG}, s{S_NG}, 2")
    e(f"s_min_u32 s{S_NG}, s{S_NG}, 4")
    lds_reads(T[0], S_POS)
    e("s_waitcnt lgkmcnt(0)")
    row_loads_ladder(T[0], S_NG, "K2_first_ld")
    dispatch(0, S_NG)
    for P in range(2):
        for ng in (4, 3, 2, 1):
            body(P, ng)
    lab("K2_main_done")
    e(f"s_add_u32 s{S_P32}, s{S_P32}, 32")
    e(f"s_cmp_ge_u32 s{S_P32}, s{S_MAX}")
    e("s_cbranch_scc1 K2_final")
    e(f"s_cmp_lg_u32 s{S_WAVE}, 0")
    e("s_cbranch_scc1 K2_nozc")
    e("v_mov_b32 v60, 0")
    e(f"ds_write_b32 v{V_L4}, v60 offset:{CNT}")
    lab("K2_nozc")
    e("s_waitcnt lgkmcnt(0)")
    e("s_barrier")
    e("s_branch K2_pass")
    lab("K2_final")
    e("s_waitcnt lgkmcnt(0)")
    e("s_barrier")
    e(f"s_cmp_ge_u32 s{S_WAVE}, 10")
    e("s_cbranch_scc1 K2_done")
    e("v_lshlrev_b32 v51, 4, v0")
    e(f"ds_read_b128 v[16:19], v51 offset:{ACCN}")
    e(f"ds_read_b128 v[20:23], v51 offset:{ACCD}")
    e(f"ds_read_b128 v[24:27], v51 offset:{T2L}")
    e("s_mul_i32 s41, s2, 5120")
    e("v_lshl_add_u32 v50, v0, 3, s41")
    e("s_mov_b32 s42, 0x358637bd")
    e("s_waitcnt lgkmcnt(0)")
    for r in range(4):
        e(f"v_add_f32 v{20+r}, s42, v{20+r}")
    for r in range(4):
        e(f"v_rcp_f32 v{20+r}, v{20+r}")
    for r in range(4):
        e(f"v_and_b32 v{24+r}, 0xffff0000, v{24+r}")
    for r in range(4):
        e(f"v_fma_f32 v{16+r}, v{16+r}, v{20+r}, v{24+r}")
    for r in range(4):
        e(f"v_mul_f32 v{20+r}, 0, v{16+r}")
    for r in range(4):
        e(f"v_cmp_lt_f32 vcc, 0, v{16+r}")
        nop(1)
        e(f"v_cndmask_b32 v{16+r}, v{20+r}, v{16+r}, vcc")
    e(f"v_lshlrev_b32 v24, 16, v{V_X}")
    e(f"v_and_b32 v25, 0xffff0000, v{V_X}")
    e(f"v_lshlrev_b32 v26, 16, v{V_X+1}")
    e(f"v_and_b32 v27, 0xffff0000, v{V_X+1}")
    for r in range(4):
        e(f"v_add_f32 v{16+r}, v{16+r}, v{24+r}")
    e("v_cvt_pk_bf16_f32 v28, v16, v17")
    e("v_cvt_pk_bf16_f32 v29, v18, v19")
    e("global_store_dwordx2 v50, v[28:29], s[22:23]")
    lab("K2_done")
    e("s_endpgm")

def kd(name, vgpr, sgpr):
    out.append(".p2align 6")
    out.append(f".amdhsa_kernel {name}")
    out.append(f"  .amdhsa_next_free_vgpr {vgpr}")
    out.append(f"  .amdhsa_next_free_sgpr {sgpr}")
    out.append(f"  .amdhsa_accum_offset {(vgpr+3)//4*4}")
    out.append("  .amdhsa_group_segment_fixed_size 0")
    out.append("  .amdhsa_kernarg_size 96")
    out.append("  .amdhsa_user_sgpr_count 2")
    out.append("  .amdhsa_user_sgpr_kernarg_segment_ptr 1")
    out.append("  .amdhsa_system_sgpr_workgroup_id_x 1")
    out.append(".end_amdhsa_kernel")

HEADER = f"""; Kernarg layout (96 bytes, ptrs only, base s[0:1]):
; @launch kernel={PREP} grid=(375,1,1) block=(640,1,1) lds={K1_LDS}
; @launch kernel={MAIN} grid=({NB},1,1) block=(1024,1,1) lds={K2_LDS}
.amdgcn_target "amdgcn-amd-amdhsa--gfx950"
.text"""

def main():
    out.append(HEADER)
    gen_k1()
    gen_k2()
    out.append('.section .rodata,"a"')
    kd(PREP, 64, 48)
    kd(MAIN, 96, 80)
    path = sys.argv[1] if len(sys.argv) > 1 else "standalone__edge_featured_mpnn_gatedgcn__graph.s"
    open(path, "w").write("\n".join(out) + "\n")
    print("wrote", path, len(out), "lines")

if __name__ == "__main__":
    main()
```

```python
import sys

MAIN = "standalone__edge_featured_mpnn_gatedgcn__graph_kernel"
PREP = "gcn_prep_kernel"

N_NODES = 10000
NB = 250
EPC = 2560
NPB = 40
WS_T = 0
WS_T2 = 0x280000
WS_TAB = 0x500000
WS_REC = 0x580000
REC_STRIDE = EPC * 12
NEG_L2E = 0xBFB8AA3B

out = []
def e(s): out.append("    " + s)
def lab(s): out.append(s + ":")
def cmt(s): out.append("    ; " + s)
def nop(n):
    while n > 0:
        k = min(n, 16)
        e(f"s_nop {k-1}")
        n -= k

STAMPS = False
OPT = set()
WS_STAMP = 0x2000000
def stamp(k):
    if STAMPS and not ("segs" in OPT and k >= 2):
        e(f"s_memtime s[{80+2*k}:{81+2*k}]")
def seg(k):
    if "segs" in OPT:
        e("s_memtime s[98:99]")
        e("s_waitcnt lgkmcnt(0)")
        e("s_sub_u32 s100, s98, s79")
        e(f"s_add_u32 s{84+k}, s{84+k}, s100")
        e("s_mov_b32 s79, s98")
def stamp_store(nst, wave_sreg, base_off, wg_sreg=2):
    if not STAMPS: return
    e("s_waitcnt vmcnt(0) lgkmcnt(0)")
    e("s_mov_b64 exec, 1")
    e(f"s_lshl_b32 s98, s{wg_sreg}, 4")
    e(f"s_add_u32 s98, s98, s{wave_sreg}")
    e(f"s_lshl_b32 s98, s98, 7")
    e(f"s_add_u32 s98, s98, {base_off:#x}")
    e("s_add_u32 s96, s26, s98")
    e("s_addc_u32 s97, s27, 0")
    e("v_mov_b32 v0, 0")
    for k in range(nst):
        e(f"v_mov_b32 v2, s{80+2*k}")
        e(f"v_mov_b32 v3, s{81+2*k}")
        e(f"global_store_dwordx2 v0, v[2:3], s[96:97] offset:{8*k}")
        e("s_nop 1")
    e("s_waitcnt vmcnt(0)")
    e("s_mov_b64 exec, -1")

def dpp_scan(v):
    for ctl in ("row_shr:1 row_mask:0xf bank_mask:0xf", "row_shr:2 row_mask:0xf bank_mask:0xf",
                "row_shr:4 row_mask:0xf bank_mask:0xf", "row_shr:8 row_mask:0xf bank_mask:0xf",
                "row_bcast:15 row_mask:0xa bank_mask:0xf", "row_bcast:31 row_mask:0xc bank_mask:0xf"):
        nop(2)
        e(f"v_add_u32_dpp v{v}, v{v}, v{v} {ctl}")

def load_kernargs():
    e("s_load_dwordx16 s[4:19], s[0:1], 0")
    e("s_load_dwordx8 s[20:27], s[0:1], 64")

def add64(d, s, imm):
    e(f"s_add_u32 s{d}, s{s}, {imm:#x}")
    e(f"s_addc_u32 s{d+1}, s{s+1}, 0")

K1_STG, K1_HIST, K1_OFF = 0, 30720, 33280
K1_LDS = 36864
W_PITCH = 144
W_MAT = 64 * W_PITCH

def gen_k1():
    out.append(f".globl {PREP}")
    out.append(".p2align 8")
    out.append(f".type {PREP},@function")
    lab(PREP)
    e("s_cmp_ge_u32 s2, 375")
    e("s_cbranch_scc1 K1_done")
    stamp(0)
    load_kernargs()
    e("s_cmp_ge_u32 s2, 250")
    e("s_cbranch_scc1 K1_tables")
    e("s_mul_i32 s28, s2, 10240")
    e("v_lshl_add_u32 v1, v0, 4, s28")
    e("s_lshl_b32 s29, s28, 1")
    e("v_lshl_add_u32 v2, v0, 5, s29")
    e("v_lshlrev_b32 v3, 2, v0")
    e("v_mov_b32 v20, 0")
    e(f"ds_write_b32 v3, v20 offset:{K1_HIST}")
    e("s_waitcnt lgkmcnt(0)")
    e("global_load_dwordx4 v[4:7], v1, s[10:11]")
    e("global_load_dwordx4 v[8:11], v1, s[8:9]")
    e("global_load_dwordx4 v[12:15], v2, s[6:7]")
    e("global_load_dwordx4 v[16:19], v2, s[6:7] offset:16")
    e("s_mov_b32 s30, 52429")
    e("s_movk_i32 s31, -40")
    e("v_mov_b32 v60, 1")
    e("v_readfirstlane_b32 s33, v0")
    e("s_barrier")
    e("s_lshr_b32 s33, s33, 6")
    e("s_waitcnt vmcnt(3)")
    stamp(1)
    for i in range(4):
        e(f"v_mul_u32_u24 v{20+i}, s30, v{4+i}")
    for i in range(4):
        e(f"v_lshrrev_b32 v{20+i}, 21, v{20+i}")
    for i in range(4):
        e(f"v_mad_i32_i24 v{28+i}, v{20+i}, s31, v{4+i}")
    for i in range(4):
        e(f"v_lshlrev_b32 v{20+i}, 2, v{20+i}")
    for i in range(4):
        e(f"ds_add_rtn_u32 v{24+i}, v{20+i}, v60 offset:{K1_HIST}")
    e("s_waitcnt vmcnt(2)")
    for i in range(4):
        e(f"v_lshlrev_b32 v{8+i}, 8, v{8+i}")
    for i in range(4):
        e(f"v_lshl_or_b32 v{28+i}, v{28+i}, 26, v{8+i}")
    e("v_and_b32 v32, 63, v0")
    e("v_lshlrev_b32 v32, 4, v32")
    e("s_waitcnt lgkmcnt(0)")
    e("s_barrier")
    stamp(2)
    e(f"ds_read_b128 v[36:39], v32 offset:{K1_HIST}")
    e("s_waitcnt lgkmcnt(0)")
    e("v_add_u32 v40, v36, v37")
    e("v_add_u32 v41, v40, v38")
    e("v_add_u32 v42, v41, v39")
    e("v_mov_b32 v43, v42")
    dpp_scan(43)
    e("v_sub_u32 v44, v43, v42")
    e("v_add_u32 v45, v44, v36")
    e("v_add_u32 v46, v44, v40")
    e("v_add_u32 v47, v44, v41")
    e(f"ds_write_b128 v32, v[44:47] offset:{K1_OFF}")
    for i in range(4):
        e(f"ds_read_b32 v{52+i}, v{20+i} offset:{K1_OFF}")
    e("s_cmp_lg_u32 s33, 0")
    e("s_cbranch_scc1 K1_notab")
    for k in range(4):
        e(f"v_lshl_or_b32 v{48+k}, v{36+k}, 16, v{44+k}")
    e("s_lshl_b32 s34, s2, 10")
    e("v_add_u32 v33, s34, v32")
    add64(36, 26, WS_TAB)
    e("global_store_dwordx4 v33, v[48:51], s[36:37]")
    lab("K1_notab")
    e("s_waitcnt lgkmcnt(0)")
    for i in range(4):
        e(f"v_add_u32 v{52+i}, v{52+i}, v{24+i}")
    for i in range(4):
        e(f"v_mul_u32_u24 v{52+i}, 12, v{52+i}")
    e("s_waitcnt vmcnt(0)")
    for i in range(4):
        e(f"ds_write2_b32 v{52+i}, v{12+2*i}, v{13+2*i} offset0:0 offset1:1")
        e(f"ds_write_b32 v{52+i}, v{28+i} offset:8")
    e("s_mul_i32 s34, s2, %d" % REC_STRIDE)
    add64(38, 26, WS_REC)
    e("s_add_u32 s38, s38, s34")
    e("s_addc_u32 s39, s39, 0")
    add64(40, 38, 10240)
    add64(42, 38, 20480)
    e("v_lshlrev_b32 v3, 4, v0")
    e("s_waitcnt lgkmcnt(0)")
    e("s_barrier")
    stamp(3)
    e("ds_read_b128 v[4:7], v3")
    e("ds_read_b128 v[8:11], v3 offset:10240")
    e("ds_read_b128 v[12:15], v3 offset:20480")
    e("s_waitcnt lgkmcnt(2)")
    e("global_store_dwordx4 v3, v[4:7], s[38:39]")
    e("s_waitcnt lgkmcnt(1)")
    e("global_store_dwordx4 v3, v[8:11], s[40:41]")
    e("s_waitcnt lgkmcnt(0)")
    e("global_store_dwordx4 v3, v[12:15], s[42:43]")
    stamp(4)
    if STAMPS:
        e("s_waitcnt vmcnt(0)")
        stamp(5)
    stamp_store(6, 33, WS_STAMP + 0x100000)
    e("s_endpgm")
    lab("K1_tables")
    e("s_sub_u32 s28, s2, 250")
    e("v_readfirstlane_b32 s33, v0")
    e("v_and_b32 v1, 63, v0")
    e("s_lshr_b32 s33, s33, 6")
    e("s_lshr_b32 s34, s33, 1")
    e("s_and_b32 s35, s33, 1")
    e("s_mul_i32 s36, s28, 80")
    e("s_lshl_b32 s37, s34, 4")
    e("s_add_u32 s36, s36, s37")
    e("v_and_b32 v2, 15, v1")
    e("v_lshrrev_b32 v3, 4, v1")
    e("v_add_u32 v60, s36, v2")
    e("v_lshlrev_b32 v61, 7, v60")
    e("v_lshl_add_u32 v61, v3, 4, v61")
    e("s_waitcnt lgkmcnt(0)")
    e("global_load_dwordx4 v[20:23], v61, s[4:5]")
    e("global_load_dwordx4 v[24:27], v61, s[4:5] offset:64")
    e("s_cmp_ge_u32 s33, 8")
    e("s_cbranch_scc1 K1_nostage")
    e("v_lshlrev_b32 v62, 4, v0")
    e("global_load_dwordx4 v[4:7], v62, s[14:15]")
    e("global_load_dwordx4 v[8:11], v62, s[20:21]")
    e("global_load_dwordx4 v[12:15], v62, s[12:13]")
    e("global_load_dwordx4 v[16:19], v62, s[18:19]")
    e("v_lshrrev_b32 v62, 3, v0")
    e(f"v_mul_u32_u24 v62, {W_PITCH}, v62")
    e("v_and_b32 v63, 7, v0")
    e("v_lshl_add_u32 v62, v63, 4, v62")
    e("s_waitcnt vmcnt(0)")
    for m in range(4):
        e(f"ds_write_b128 v62, v[{4+4*m}:{7+4*m}] offset:{m*W_MAT}")
    lab("K1_nostage")
    e("v_lshrrev_b32 v62, 2, v2")
    e("v_lshl_add_u32 v62, v3, 3, v62")
    e(f"v_mul_u32_u24 v62, {W_PITCH}, v62")
    e("v_and_b32 v63, 3, v2")
    e("v_lshl_add_u32 v62, v63, 3, v62")
    e(f"s_mul_i32 s37, s35, {2*W_MAT}")
    e("v_add_u32 v62, s37, v62")
    e("v_lshlrev_b32 v61, 8, v60")
    e("v_lshl_add_u32 v61, v3, 4, v61")
    e(f"s_mul_i32 s37, s35, {WS_T2}")
    e("s_add_u32 s38, s26, s37")
    e("s_addc_u32 s39, s27, 0")
    e(f"s_mov_b32 s40, {NEG_L2E:#x}")
    e("s_brev_b32 s41, 1")
    e("s_mov_b32 s42, 0x7fff0000")
    e("s_waitcnt vmcnt(0) lgkmcnt(0)")
    stamp(1)
    e("s_barrier")
    stamp(2)
    def wreads(ft, base):
        for mp in range(2):
            for ks in range(2):
                for half in range(2):
                    r = base + 8*mp + 4*ks + 2*half
                    off = mp*W_MAT + (32*ks + 4*half)*W_PITCH + ft*32
                    e(f"ds_read_b64_tr_b16 v[{r}:{r+1}], v62 offset:{off}")
    wreads(0, 28)
    for ft in range(4):
        base = 28 if ft % 2 == 0 else 44
        e("s_waitcnt lgkmcnt(0)")
        if ft < 3:
            wreads(ft+1, 44 if ft % 2 == 0 else 28)
        e(f"v_mfma_f32_16x16x32_bf16 v[4:7], v[{base}:{base+3}], v[20:23], 0")
        e(f"v_mfma_f32_16x16x32_bf16 v[8:11], v[{base+8}:{base+11}], v[20:23], 0")
        e(f"v_mfma_f32_16x16x32_bf16 v[4:7], v[{base+4}:{base+7}], v[24:27], v[4:7]")
        e(f"v_mfma_f32_16x16x32_bf16 v[8:11], v[{base+12}:{base+15}], v[24:27], v[8:11]")
        nop(8)
        for r in range(4):
            e(f"v_mul_f32 v{4+r}, s40, v{4+r}")
        e("s_cmp_eq_u32 s35, 0")
        e(f"s_cbranch_scc1 K1_T_{ft}")
        for r in range(4):
            e(f"v_cvt_pk_bf16_f32 v{12+r}, v{4+r}, v{8+r}")
        e(f"s_branch K1_st_{ft}")
        lab(f"K1_T_{ft}")
        e("v_cvt_pk_bf16_f32 v16, v4, v5")
        e("v_cvt_pk_bf16_f32 v17, v6, v7")
        e("v_and_b32 v4, 0xffff, v16")
        e("v_lshrrev_b32 v5, 16, v16")
        e("v_and_b32 v6, 0xffff, v17")
        e("v_lshrrev_b32 v7, 16, v17")
        for r in range(4):
            e(f"v_and_b32 v18, 0x7fffffff, v{8+r}")
            e("v_add_u32 v18, 0x8000, v18")
            e(f"v_sub_u32_e64 v18, v18, v{4+r} clamp")
            e(f"v_and_or_b32 v19, v{8+r}, s41, v{4+r}")
            e(f"v_bfi_b32 v{12+r}, s42, v18, v19")
        lab(f"K1_st_{ft}")
        e(f"global_store_dwordx4 v61, v[12:15], s[38:39] offset:{ft*64}")
        nop(2)
    stamp(3)
    if STAMPS:
        e("s_waitcnt vmcnt(0)")
        stamp(4)
        stamp(5)
    stamp_store(6, 33, WS_STAMP + 0x100000)
    e("s_or_b32 s37, s28, s33")
    e("s_cmp_lg_u32 s37, 0")
    e("s_cbranch_scc1 K1_done")
    e("v_lshlrev_b32 v2, 2, v1")
    e(f"v_add_u32 v2, {N_NODES*256:#x}, v2")
    e("v_mov_b32 v3, 0x7f00")
    e("global_store_dword v2, v3, s[26:27]")
    lab("K1_done")
    e("s_endpgm")

ACCN, ACCD = 0, 14336
CNT, MAXC, ZERO, CN = 28672, 28928, 28944, 28960
ZERO_END = 29184
START = 29184
T2L = 29440
GN = 39680
CAPP = 8160
IDX = GN + 2048
ATTR = IDX + 4*CAPP
K2_LDS = ATTR + 8*CAPP
DUMMY = N_NODES * 256
K2_GRID = 256

V_L, V_L4 = 1, 2
V_AI, V_AE, V_ESTR, V_EBASE = 3, 4, 5, 6
V_DB, V_DESC = 7, 8
V_X = 12
V_END, V_A = 14, 15
T = (16, 32, 48)
D = 64
SEL, EO, BE, ONE = 80, 84, 88, 92
DEN, NUM = 96, 98
V_M = 100
V_F = 104
V_LT2 = 106
V_PF = 108
K2_VGPRS = 112
S_T = 28
S_BIN, S_WAVE, S_P32, S_MAX = 37, 38, 39, 40
S_MASK = 44
S_K0, S_NBLK, S_K, S_CUR, S_D, S_DN, S_LOADED = 60, 61, 62, 63, 64, 65, 66
S_MIX, S_ROW, S_TMP, S_TMP2, S_PERM = 67, 68, 69, 70, 71
S_KC = 72

def slot(i, jj): return 16 + 4*(i + 4*jj)
def smask(i, jj): return S_MASK + 2*(i + 4*jj)

def issue_row_loads(tb):
    for v in range(tb, tb+16):
        if "noload" in OPT: e("s_nop 0")
        else: e(f"buffer_load_dword v{v}, v{v}, s[{S_T}:{S_T+3}], 0 offen")

def warm_table():
    if "nopf" in OPT: return
    e("s_lshr_b32 s41, s2, 3")
    e("s_mul_i32 s41, s41, 81920")
    e(f"v_lshl_add_u32 v{V_PF+1}, v0, 6, s41")
    e(f"global_load_dword v{V_PF}, v{V_PF+1}, s[26:27]")
    e(f"s_cmp_ge_u32 s{S_WAVE}, 4")
    e("s_cbranch_scc1 K2_pf_done%d" % len(out))
    tag = "K2_pf_done%d" % (len(out) - 1)
    e(f"v_add_u32 v{V_PF+1}, 0x10000, v{V_PF+1}")
    e(f"global_load_dword v{V_PF}, v{V_PF+1}, s[26:27]")
    lab(tag)

def idx_reads(tb):
    for q in range(4):
        e(f"ds_read_b128 v[{tb+4*q}:{tb+4*q+3}], v{V_AI} offset:{IDX+16*q}")
    e(f"v_add_u32 v{V_AI}, 64, v{V_AI}")

def attr_read():
    e(f"ds_read_b64 v[{EO}:{EO+1}], v{V_AE}")
    e(f"v_add_u32 v{V_AE}, v{V_ESTR}, v{V_AE}")

def node_rows_read(sdesc):
    for g in range(4):
        e(f"s_bfe_u32 s{S_TMP}, s{sdesc}, {(8 << 16) | (8*g):#x}")
        e(f"s_lshl_b32 s{S_TMP}, s{S_TMP}, 6")
        e(f"v_add_u32 v{V_A}, s{S_TMP}, v{V_LT2}")
        e(f"ds_read_b32 v{V_M+g}, v{V_A}")

def node_rows_pack():
    e(f"v_perm_b32 v{BE+2}, v{V_M+1}, v{V_M}, s{S_PERM}")
    e(f"v_perm_b32 v{BE+3}, v{V_M+3}, v{V_M+2}, s{S_PERM}")

def flush(tag):
    e(f"v_add_u32 v{V_A}, s{S_ROW}, v{V_L4}")
    e(f"v_add_f32 v{V_F}, v{DEN}, v{DEN+1}")
    e(f"v_add_f32 v{V_F+1}, v{NUM}, v{NUM+1}")
    e(f"s_cmp_lg_u32 s{S_P32}, 0")
    e(f"s_cbranch_scc1 {tag}_atomic")
    e(f"ds_write_b32 v{V_A}, v{V_F} offset:{ACCD}")
    e(f"ds_write_b32 v{V_A}, v{V_F+1} offset:{ACCN}")
    lab(f"{tag}_flushed")
    ATOMIC_SITES.append(tag)

ATOMIC_SITES = []
def atomic_flushes():
    for tag in ATOMIC_SITES:
        lab(f"{tag}_atomic")
        e(f"ds_add_f32 v{V_A}, v{V_F} offset:{ACCD}")
        e(f"ds_add_f32 v{V_A}, v{V_F+1} offset:{ACCN}")
        e(f"s_branch {tag}_flushed")

def acc_group(tp, g):
    for k in (2*g, 2*g+1):
        e(f"v_pk_add_f32 v[{DEN}:{DEN+1}], v[{DEN}:{DEN+1}], v[{D+2*k}:{D+2*k+1}]")
        e(f"v_pk_fma_f32 v[{NUM}:{NUM+1}], v[{D+2*k}:{D+2*k+1}], v[{tp+2*k}:{tp+2*k+1}], v[{NUM}:{NUM+1}]")

def acc_group_init(tp, g):
    a = 4*g
    e(f"v_pk_add_f32 v[{DEN}:{DEN+1}], v[{D+a}:{D+a+1}], v[{D+a+2}:{D+a+3}]")
    e(f"v_pk_mul_f32 v[{NUM}:{NUM+1}], v[{D+a}:{D+a+1}], v[{tp+a}:{tp+a+1}]")
    e(f"v_pk_fma_f32 v[{NUM}:{NUM+1}], v[{D+a+2}:{D+a+3}], v[{tp+a+2}:{tp+a+3}], v[{NUM}:{NUM+1}]")

def body(P, main):
    tp, tr = T[P], T[(P+2) % 3]
    tag = f"K2_{'m' if main else 't'}{P}"
    lab(tag)
    if "noprio" not in OPT and not main: e("s_setprio 0")
    e("s_waitcnt lgkmcnt(0)")
    if "nomfma" not in OPT: e(f"v_mfma_f32_32x32x16_bf16 v[{D}:{D+15}], v[{EO}:{EO+3}], v[{BE}:{BE+3}], 0")
    e(f"s_add_u32 s{S_K}, s{S_K}, 1")
    if main and "nolds" not in OPT: idx_reads(tr)
    if "nolds" not in OPT: attr_read()
    e(f"v_readlane_b32 s{S_DN}, v{V_DB}, s{S_K}")
    e(f"s_mov_b32 s{S_MIX}, 0")
    e(f"s_cmp_eq_u32 s{S_DN}, s{S_LOADED}")
    if "noreload" not in OPT: e(f"s_cbranch_scc0 {tag}_reload")
    lab(f"{tag}_loaded")
    early = "late" not in OPT
    if main and early:
        e("s_waitcnt lgkmcnt(1)")
        issue_row_loads(tr)
        e("s_waitcnt vmcnt(32)")
    elif main:
        e("s_waitcnt vmcnt(16)")
    else:
        nop(4)
        e("s_waitcnt vmcnt(0)")
    for q in range(4 if "nomfma" not in OPT else 0):
        e(f"v_mfma_f32_16x16x32_bf16 v[{D+4*q}:{D+4*q+3}], v[{SEL}:{SEL+3}], v[{tp+4*q}:{tp+4*q+3}], v[{D+4*q}:{D+4*q+3}]")
    if main and not early:
        e("s_waitcnt lgkmcnt(1)")
        issue_row_loads(tr)
    else:
        nop(8)
    for v in range(16):
        if "novalu" not in OPT: e(f"v_exp_f32 v{D+v}, v{D+v}")
    nop(2)
    if "nomfma" not in OPT: e(f"v_mfma_f32_32x32x16_bf16 v[{D}:{D+15}], v[{ONE}:{ONE+3}], v[{ONE}:{ONE+3}], v[{D}:{D+15}]")
    e(f"s_cmp_lg_u32 s{S_MIX}, 0")
    e(f"s_cbranch_scc1 {tag}_pack")
    lab(f"{tag}_packed")
    e(f"s_and_b32 s{S_TMP}, s{S_D}, 0xff")
    e(f"s_mul_i32 s{S_TMP}, s{S_TMP}, 0x01010101")
    e(f"s_and_b32 s{S_TMP2}, s{S_D}, 0xff")
    e(f"s_xor_b32 s{S_TMP}, s{S_TMP}, s{S_D}")
    e(f"s_xor_b32 s{S_TMP2}, s{S_TMP2}, s{S_CUR}")
    e(f"s_or_b32 s{S_TMP}, s{S_TMP}, s{S_TMP2}")
    nop(4)
    for v in range(16):
        if "novalu" not in OPT: e(f"v_rcp_f32 v{D+v}, v{D+v}")
    if "noslow" not in OPT: e(f"s_cbranch_scc1 {tag}_slow")
    if "novalu" not in OPT:
        for g in range(4): acc_group(tp, g)
    lab(f"{tag}_next")
    e(f"s_mov_b32 s{S_D}, s{S_DN}")
    nP = (P+1) % 3
    if main:
        e(f"s_add_u32 s{S_TMP}, s{S_K}, 2")
        e(f"s_cmp_lt_u32 s{S_TMP}, s{S_NBLK}")
        e(f"s_cbranch_scc0 K2_t{nP}")
        if P == 2:
            if "noprio" not in OPT:
                e(f"s_cmp_lt_u32 s{S_K}, 6")
                e("s_cbranch_scc0 K2_prio1")
                e("s_setprio 2")
                e("s_branch K2_m0")
                lab("K2_prio1")
                e("s_setprio 1")
            e("s_branch K2_m0")
    else:
        e(f"s_cmp_lt_u32 s{S_K}, s{S_NBLK}")
        e("s_cbranch_scc0 K2_range_end")
        if P == 2: e("s_branch K2_t0")

def body_outlined(P, main):
    tp = T[P]
    tag = f"K2_{'m' if main else 't'}{P}"
    lab(f"{tag}_reload")
    node_rows_read(S_DN)
    e(f"s_mov_b32 s{S_LOADED}, s{S_DN}")
    e(f"s_mov_b32 s{S_MIX}, 1")
    e(f"s_branch {tag}_loaded")
    lab(f"{tag}_pack")
    e("s_waitcnt lgkmcnt(0)")
    node_rows_pack()
    e(f"s_branch {tag}_packed")
    lab(f"{tag}_slow")
    for g in range(4):
        e(f"s_bfe_u32 s{S_TMP2}, s{S_D}, {(8 << 16) | (8*g):#x}")
        e(f"s_cmp_eq_u32 s{S_TMP2}, s{S_CUR}")
        e(f"s_cbranch_scc1 {tag}_cont{g}")
        flush(f"{tag}_f{g}")
        e(f"s_mov_b32 s{S_CUR}, s{S_TMP2}")
        e(f"s_lshl_b32 s{S_ROW}, s{S_TMP2}, 6")
        acc_group_init(tp, g)
        e(f"s_branch {tag}_g{g}")
        lab(f"{tag}_cont{g}")
        acc_group(tp, g)
        lab(f"{tag}_g{g}")
    e(f"s_branch {tag}_next")

def gen_k2():
    out.append(f".globl {MAIN}")
    out.append(".p2align 8")
    out.append(f".type {MAIN},@function")
    lab(MAIN)
    e(f"s_cmp_ge_u32 s2, {K2_GRID}")
    e("s_cbranch_scc1 K2_done")
    e("s_and_b32 s3, s2, 7")
    e("s_lshl_b32 s3, s3, 5")
    e(f"s_lshr_b32 s{S_BIN}, s2, 3")
    e(f"s_add_u32 s{S_BIN}, s{S_BIN}, s3")
    stamp(0)
    load_kernargs()
    e(f"s_cmp_ge_u32 s{S_BIN}, {NB}")
    e("s_cbranch_scc1 K2_idle")
    e(f"v_readfirstlane_b32 s{S_WAVE}, v0")
    e(f"v_and_b32 v{V_L}, 63, v0")
    e(f"v_lshlrev_b32 v{V_L4}, 2, v{V_L}")
    e(f"s_lshr_b32 s{S_WAVE}, s{S_WAVE}, 6")
    e(f"v_lshrrev_b32 v64, 4, v{V_L}")
    e(f"s_lshl_b32 s{S_TMP}, s{S_WAVE}, 2")
    e(f"v_add_u32 v64, s{S_TMP}, v64")
    e("v_lshlrev_b32 v64, 2, v64")
    e(f"s_lshl_b32 s41, s{S_BIN}, 2")
    e("v_lshl_add_u32 v65, v64, 10, s41")
    e(f"v_lshlrev_b32 v66, 1, v{V_L}")
    e("s_waitcnt lgkmcnt(0)")
    add64(32, 26, WS_TAB)
    for i in range(4):
        e(f"global_load_dword v{V_DESC+i}, v65, s[32:33] offset:{1024*i}")
    for c in range(4):
        e(f"global_load_ushort v{72+c}, v66, s[16:17] offset:{128*c}")
    add64(34, 26, WS_REC)
    e(f"s_cmp_ge_u32 s{S_WAVE}, 10")
    e("s_cbranch_scc1 K2_no_t2")
    e(f"s_mul_i32 s41, s{S_BIN}, 10240")
    e("v_lshl_add_u32 v66, v0, 4, s41")
    add64(42, 26, WS_T2)
    e("global_load_dwordx4 v[68:71], v66, s[42:43]")
    e(f"s_mul_i32 s41, s{S_BIN}, 5120")
    e("v_lshl_add_u32 v66, v0, 3, s41")
    e(f"global_load_dwordx2 v[{V_X}:{V_X+1}], v66, s[4:5]")
    lab("K2_no_t2")
    e(f"s_mov_b32 s{S_T}, s26")
    e(f"s_and_b32 s{S_T+1}, s27, 0xffff")
    e(f"s_or_b32 s{S_T+1}, s{S_T+1}, 0x40000")
    e(f"s_mov_b32 s{S_T+2}, {(N_NODES+1)*256}")
    e(f"s_mov_b32 s{S_T+3}, 0x00800000")
    for r in range(76, 80):
        e(f"v_mov_b32 v{r}, 0")
    e("v_lshlrev_b32 v67, 4, v0")
    e("ds_write_b128 v67, v[76:79]")
    e(f"v_cmp_gt_u32 vcc, {(ZERO_END-16384)//16}, v0")
    e("s_mov_b64 exec, vcc")
    e("ds_write_b128 v67, v[76:79] offset:16384")
    e("s_mov_b64 exec, -1")
    e(f"v_and_b32 v16, 31, v{V_L}")
    e(f"v_lshrrev_b32 v17, 5, v{V_L}")
    e("v_bfe_u32 v18, v16, 2, 1")
    e("v_lshrrev_b32 v19, 3, v16")
    e("v_and_b32 v16, 3, v16")
    e("v_lshl_add_u32 v16, v19, 2, v16")
    e("v_cmp_eq_u32 vcc, v17, v18")
    e("v_mov_b32 v20, 0x80")
    e("v_lshlrev_b32 v16, 3, v16")
    e(f"v_cndmask_b32 v{V_ESTR}, 0, v20, vcc")
    e(f"v_add_u32 v16, {ATTR}, v16")
    e(f"v_mov_b32 v20, {ZERO}")
    e(f"v_cndmask_b32 v{V_EBASE}, v20, v16, vcc")
    e("v_and_b32 v21, 1, v19")
    e("v_lshlrev_b32 v21, 4, v21")
    e("v_mov_b32 v22, 0x3f80")
    e("v_lshlrev_b32 v21, v21, v22")
    e("v_cndmask_b32 v21, 0, v21, vcc")
    e("v_cmp_gt_u32 vcc, 2, v19")
    e(f"v_mov_b32 v{ONE+1}, 0")
    e(f"v_mov_b32 v{ONE+2}, 0")
    e(f"v_cndmask_b32 v{EO+2}, 0, v21, vcc")
    e(f"v_sub_u32 v{EO+3}, v21, v{EO+2}")
    e(f"v_cmp_gt_u32 vcc, 32, v{V_L}")
    e(f"v_mov_b32 v{ONE+3}, 0")
    e(f"v_add_u32 v{V_LT2}, {T2L}, v{V_L4}")
    e(f"v_cndmask_b32 v{ONE}, 0, v22, vcc")
    e(f"v_bfe_u32 v16, v{V_L}, 2, 2")
    e(f"v_lshrrev_b32 v17, 4, v{V_L}")
    e(f"v_and_b32 v18, 3, v{V_L}")
    e("v_cmp_eq_u32 vcc, v16, v17")
    e("v_mov_b32 v19, 31")
    e(f"s_mov_b32 s{S_PERM}, 0x05040100")
    e("v_cndmask_b32 v18, v19, v18, vcc")
    e("v_lshlrev_b32 v18, v18, 1")
    for k in range(4):
        e(f"v_bfe_u32 v{SEL+k}, v18, {k}, 1")
    for k in range(4):
        e(f"v_mul_u32_u24 v{SEL+k}, v22, v{SEL+k}")
    for i in range(4):
        e(f"s_mov_b32 s{S_KC+i}, {i*REC_STRIDE}")
    e(f"s_mov_b32 s{S_P32}, 0")
    e("s_waitcnt vmcnt(4)")
    stamp(1)
    for i in range(4):
        e(f"v_add_u32 v{16+i}, {i}, v64")
    e(f"s_movk_i32 s41, {NB}")
    for i in range(4):
        e(f"v_cmp_gt_u32 s[{S_MASK+2*i}:{S_MASK+2*i+1}], s41, v{16+i}")
    nop(1)
    for i in range(4):
        e(f"v_cndmask_b32 v{V_DESC+i}, 0, v{V_DESC+i}, s[{S_MASK+2*i}:{S_MASK+2*i+1}]")

    def slot_loads(jj):
        vj = 76 + jj
        for i in range(4):
            r, m = slot(i, jj), smask(i, jj)
            e(f"v_lshrrev_b32 v79, 16, v{V_DESC+i}")
            e(f"v_cmp_gt_u32 s[{m}:{m+1}], v79, v{vj}")
            e(f"v_and_b32 v79, 0xffff, v{V_DESC+i}")
            e(f"v_add3_u32 v79, v79, v{vj}, v78")
            e(f"v_mad_u32_u24 v79, v79, 12, s{S_KC+i}")
            e(f"s_mov_b64 exec, s[{m}:{m+1}]")
            e(f"global_load_dwordx3 v[{r}:{r+2}], v79, s[34:35]")
            e("s_mov_b64 exec, -1")
    def pass_addr():
        e(f"v_lshrrev_b32 v78, 4, v{V_L}")
        e(f"s_lshl_b32 s{S_TMP}, s{S_WAVE}, 2")
        e(f"v_add_u32 v78, s{S_TMP}, v78")
        e(f"v_mul_u32_u24 v78, {4*EPC}, v78")
        e(f"v_and_b32 v76, 15, v{V_L}")
        e(f"v_add_u32 v76, s{S_P32}, v76")
        e("v_add_u32 v77, 16, v76")
    lab("K2_pass")
    pass_addr()
    slot_loads(0)
    for i in range(4):
        e(f"s_mov_b64 s[{smask(i,1)}:{smask(i,1)+1}], 0")
    e(f"v_lshrrev_b32 v79, 16, v{V_DESC}")
    e(f"v_lshrrev_b32 v{V_A}, 16, v{V_DESC+1}")
    e(f"v_max_u32 v79, v79, v{V_A}")
    e(f"v_lshrrev_b32 v{V_A}, 16, v{V_DESC+2}")
    e(f"v_max_u32 v79, v79, v{V_A}")
    e(f"v_lshrrev_b32 v{V_A}, 16, v{V_DESC+3}")
    e(f"v_max_u32 v{V_DB}, v79, v{V_A}")
    e(f"v_cmp_gt_u32 vcc, v{V_DB}, v77")
    e(f"s_mov_b32 s{S_MIX}, 0")
    e("s_cbranch_vccz K2_no_second")
    slot_loads(1)
    e(f"s_mov_b32 s{S_MIX}, 1")
    lab("K2_no_second")
    e(f"s_cmp_lg_u32 s{S_P32}, 0")
    e("s_cbranch_scc1 K2_tables_done")
    e("s_waitcnt vmcnt(4)")
    warm_table()
    e(f"s_cmp_ge_u32 s{S_WAVE}, 10")
    e("s_cbranch_scc1 K2_no_t2w")
    e(f"ds_write_b128 v67, v[68:71] offset:{T2L}")
    lab("K2_no_t2w")
    e(f"s_mov_b32 s{S_TMP}, {NEG_L2E:#x}")
    for c in range(4):
        e(f"v_lshlrev_b32 v{72+c}, 16, v{72+c}")
    for c in range(4):
        e(f"v_mul_f32 v{72+c}, s{S_TMP}, v{72+c}")
    e(f"v_cvt_pk_bf16_f32 v{BE}, v72, v73")
    e(f"v_cvt_pk_bf16_f32 v{BE+1}, v74, v75")
    e("s_waitcnt lgkmcnt(0)")
    e("s_barrier")
    e(f"v_cmp_lt_u32 vcc, 32, v{V_DB}")
    e("s_cbranch_vccz K2_tables_done")
    e(f"v_mov_b32 v79, {MAXC}")
    e(f"ds_max_u32 v79, v{V_DB}")
    lab("K2_tables_done")

    def for_slots(fn, name):
        for i in range(4):
            m = smask(i, 0)
            e(f"s_mov_b64 exec, s[{m}:{m+1}]")
            fn(i, 0, slot(i, 0))
        e("s_mov_b64 exec, -1")
        e(f"s_cmp_eq_u32 s{S_MIX}, 0")
        e(f"s_cbranch_scc1 K2_{name}_skip")
        for i in range(4):
            m = smask(i, 1)
            e(f"s_mov_b64 exec, s[{m}:{m+1}]")
            fn(i, 1, slot(i, 1))
        e("s_mov_b64 exec, -1")
        lab(f"K2_{name}_skip")
    e("v_mov_b32 v78, 1")
    if "nopf" in OPT:
        e("s_waitcnt vmcnt(0)")
    else:
        e(f"s_cmp_lg_u32 s{S_P32}, 0")
        e("s_cbranch_scc1 K2_wait_all")
        e(f"s_cmp_lt_u32 s{S_WAVE}, 4")
        e("s_cbranch_scc1 K2_wait_two")
        e("s_waitcnt vmcnt(1)")
        e("s_branch K2_waited")
        lab("K2_wait_two")
        e("s_waitcnt vmcnt(2)")
        e("s_branch K2_waited")
        lab("K2_wait_all")
        e("s_waitcnt vmcnt(0)")
        lab("K2_waited")
    stamp(2)
    def cnt_fn(i, jj, r):
        t = D + i + 4*jj
        e(f"v_lshrrev_b32 v{t}, 24, v{r+2}")
        e(f"ds_add_rtn_u32 v{r+3}, v{t}, v78 offset:{CNT}")
    for_slots(cnt_fn, "cnt")
    e("s_waitcnt lgkmcnt(0)")
    e("s_barrier")
    stamp(3)
    e(f"ds_read_b32 v76, v{V_L4} offset:{CNT}")
    e(f"v_mov_b32 v79, {MAXC}")
    e("ds_read_b32 v79, v79")
    e("s_waitcnt lgkmcnt(0)")
    e(f"v_readfirstlane_b32 s{S_MAX}, v79")
    e("v_add_u32 v77, 3, v76")
    e("v_and_b32 v77, -4, v77")
    e(f"v_mov_b32 v{V_END}, v77")
    dpp_scan(V_END)
    e(f"v_sub_u32 v75, v{V_END}, v77")
    e(f"ds_write_b32 v{V_L4}, v75 offset:{START}")
    def st_fn(i, jj, r):
        t = D + i + 4*jj
        e(f"ds_read_b32 v{T[2]+i+4*jj}, v{t} offset:{START}")
    for_slots(st_fn, "st")
    e(f"v_readlane_b32 s{S_NBLK}, v{V_END}, 63")
    e(f"s_cmp_lg_u32 s{S_WAVE}, 15")
    e("s_cbranch_scc1 K2_nopad")
    e("v_add_u32 v75, v75, v76")
    e(f"v_mov_b32 v74, {DUMMY:#x}")
    e("v_mov_b32 v72, 0")
    e("v_mov_b32 v73, 0")
    def pad_write(cond_hi):
        e(f"v_cmp_lt_u32 vcc, v75, {cond_hi}")
        e("v_lshlrev_b32 v79, 2, v75")
        e("v_lshlrev_b32 v78, 3, v75")
        e(f"v_add_u32 v78, {ATTR}, v78")
        e("s_mov_b64 exec, vcc")
        e(f"ds_write_b32 v79, v74 offset:{IDX}")
        e("ds_write_b64 v78, v[72:73]")
        e("s_mov_b64 exec, -1")
    for k in range(3):
        pad_write(f"v{V_END}")
        e("v_add_u32 v75, 1, v75")
    e(f"s_add_u32 s{S_TMP}, s{S_NBLK}, 15")
    e(f"s_and_b32 s{S_TMP}, s{S_TMP}, -16")
    e(f"v_mov_b32 v77, s{S_TMP}")
    e(f"v_add_u32 v75, s{S_NBLK}, v{V_L}")
    pad_write("v77")
    e("v_lshrrev_b32 v75, 2, v75")
    e("v_mov_b32 v74, 160")
    e("s_mov_b64 exec, vcc")
    e(f"ds_write_b8 v75, v74 offset:{GN}")
    e("s_mov_b64 exec, -1")
    lab("K2_nopad")
    e("s_waitcnt lgkmcnt(0)")
    e(f"s_mov_b32 s{S_TMP2}, {ATTR}")
    def sc_fn(i, jj, r):
        t = D + i + 4*jj
        p = T[2] + i + 4*jj
        e(f"v_add_u32 v{p}, v{p}, v{r+3}")
        e(f"v_and_b32 v{r+2}, 0xffffff, v{r+2}")
        e(f"v_lshl_add_u32 v{r+3}, v{p}, 3, s{S_TMP2}")
        e(f"ds_write_b64 v{r+3}, v[{r}:{r+1}]")
        e(f"v_lshrrev_b32 v{r+3}, 2, v{p}")
        e(f"v_lshlrev_b32 v{p}, 2, v{p}")
        e(f"ds_write_b32 v{p}, v{r+2} offset:{IDX}")
        e(f"ds_write_b8 v{r+3}, v{t} offset:{GN}")
    for_slots(sc_fn, "sc")
    e("s_waitcnt lgkmcnt(0)")
    e("s_barrier")
    stamp(4)
    e(f"s_add_u32 s{S_TMP}, s{S_NBLK}, 15")
    e(f"s_lshr_b32 s{S_TMP}, s{S_TMP}, 4")
    e(f"s_mul_i32 s{S_K0}, s{S_TMP}, s{S_WAVE}")
    e(f"s_add_u32 s{S_NBLK}, s{S_K0}, s{S_TMP}")
    e(f"s_lshr_b32 s{S_K0}, s{S_K0}, 4")
    e(f"s_lshr_b32 s{S_NBLK}, s{S_NBLK}, 4")
    e(f"s_sub_u32 s{S_NBLK}, s{S_NBLK}, s{S_K0}")
    e(f"s_cmp_eq_u32 s{S_NBLK}, 0")
    e("s_cbranch_scc1 K2_empty_range")
    e(f"v_add_u32 v{V_A}, s{S_K0}, v{V_L}")
    e(f"v_lshlrev_b32 v{V_A}, 2, v{V_A}")
    e(f"ds_read_b32 v{V_DB}, v{V_A} offset:{GN}")
    e(f"ds_read_b32 v{V_F}, v{V_A} offset:{GN-4}")
    e(f"s_lshl_b32 s{S_TMP}, s{S_K0}, 6")
    e(f"v_mov_b32 v{V_AI}, s{S_TMP}")
    e(f"v_mad_u32_u24 v{V_AE}, v{V_ESTR}, s{S_K0}, v{V_EBASE}")
    idx_reads(T[0])
    idx_reads(T[1])
    attr_read()
    for r in (DEN, DEN+1, NUM, NUM+1):
        e(f"v_mov_b32 v{r}, 0")
    e("s_waitcnt lgkmcnt(0)")
    e(f"v_readlane_b32 s{S_D}, v{V_DB}, 0")
    issue_row_loads(T[0])
    node_rows_read(S_D)
    e(f"s_mov_b32 s{S_LOADED}, s{S_D}")
    e(f"s_and_b32 s{S_CUR}, s{S_D}, 0xff")
    e(f"s_lshl_b32 s{S_ROW}, s{S_CUR}, 6")
    e(f"s_cmp_lg_u32 s{S_P32}, 0")
    e("s_cbranch_scc1 K2_carry_done")
    e(f"v_readlane_b32 s{S_TMP2}, v{V_F}, 0")
    e(f"s_add_u32 s{S_MIX}, s{S_WAVE}, 40")
    e(f"s_lshl_b32 s{S_MIX}, s{S_MIX}, 8")
    e(f"s_lshr_b32 s{S_TMP2}, s{S_TMP2}, 24")
    e(f"s_cmp_eq_u32 s{S_K0}, 0")
    e(f"s_cselect_b32 s{S_TMP2}, 0x100, s{S_TMP2}")
    e(f"s_cmp_eq_u32 s{S_TMP2}, s{S_CUR}")
    e(f"s_cselect_b32 s{S_ROW}, s{S_MIX}, s{S_ROW}")
    e(f"s_cselect_b32 s{S_TMP2}, s{S_CUR}, 0xff")
    e(f"s_lshl_b32 s{S_TMP}, s{S_WAVE}, 2")
    e(f"v_mov_b32 v{V_A}, s{S_TMP}")
    e(f"v_mov_b32 v{V_F}, s{S_TMP2}")
    e(f"ds_write_b32 v{V_A}, v{V_F} offset:{CN}")
    lab("K2_carry_done")
    e(f"s_mov_b32 s{S_K}, 0")
    e(f"s_cmp_lt_u32 s{S_NBLK}, 2")
    e("s_cbranch_scc1 K2_one_block")
    issue_row_loads(T[1])
    lab("K2_one_block")
    e("s_waitcnt lgkmcnt(0)")
    node_rows_pack()
    if "noprio" not in OPT: e("s_setprio 3")
    e(f"s_cmp_gt_u32 s{S_NBLK}, 2")
    e("s_cbranch_scc0 K2_t0")
    for P in range(3): body(P, True)
    for P in range(3): body(P, False)
    for P in range(3): body_outlined(P, True)
    for P in range(3): body_outlined(P, False)
    atomic_flushes()
    lab("K2_range_end")
    ATOMIC_SITES.clear()
    flush("K2_last")
    e("s_branch K2_main_done")
    lab("K2_empty_range")
    e(f"s_cmp_lg_u32 s{S_P32}, 0")
    e("s_cbranch_scc1 K2_main_done")
    e(f"s_lshl_b32 s{S_TMP}, s{S_WAVE}, 2")
    e(f"v_mov_b32 v{V_A}, s{S_TMP}")
    e(f"v_mov_b32 v{V_F}, 0xff")
    e(f"ds_write_b32 v{V_A}, v{V_F} offset:{CN}")
    lab("K2_main_done")
    if "noprio" not in OPT: e("s_setprio 0")
    stamp(5)
    e(f"s_add_u32 s{S_P32}, s{S_P32}, 32")
    e(f"s_cmp_ge_u32 s{S_P32}, s{S_MAX}")
    e("s_cbranch_scc1 K2_final")
    e(f"s_cmp_lg_u32 s{S_WAVE}, 0")
    e("s_cbranch_scc1 K2_nozc")
    e("v_mov_b32 v76, 0")
    e(f"ds_write_b32 v{V_L4}, v76 offset:{CNT}")
    lab("K2_nozc")
    e("s_waitcnt lgkmcnt(0)")
    e("s_barrier")
    e("s_branch K2_pass")
    lab("K2_final")
    e("s_waitcnt lgkmcnt(0)")
    e("s_barrier")
    stamp(6)
    e(f"s_cmp_ge_u32 s{S_WAVE}, 10")
    e("s_cbranch_scc1 K2_end")
    e("v_lshlrev_b32 v67, 4, v0")
    e(f"ds_read_b128 v[16:19], v67 offset:{ACCN}")
    e(f"ds_read_b128 v[20:23], v67 offset:{ACCD}")
    e(f"ds_read_b128 v[24:27], v67 offset:{T2L}")
    e(f"v_and_b32 v30, 15, v{V_L}")
    e("v_lshlrev_b32 v31, 2, v30")
    e(f"ds_read_b32 v31, v31 offset:{CN}")
    e(f"s_mul_i32 s41, s{S_BIN}, 5120")
    e("v_lshl_add_u32 v66, v0, 3, s41")
    e("s_mov_b32 s42, 0x358637bd")
    e("v_lshrrev_b32 v32, 4, v0")
    e("v_lshlrev_b32 v32, 2, v32")
    e("v_lshlrev_b32 v33, 4, v30")
    e("s_waitcnt lgkmcnt(0)")
    e("v_lshrrev_b32 v34, 4, v31")
    e(f"v_cmp_eq_u32 vcc, s{S_WAVE}, v34")
    e("s_and_b32 s44, vcc_lo, 0xffff")
    lab("K2_merge")
    e("s_cmp_eq_u32 s44, 0")
    e("s_cbranch_scc1 K2_merged")
    e("s_ff1_i32_b32 s45, s44")
    e("s_bitset0_b32 s44, s45")
    e("v_readlane_b32 s46, v31, s45")
    e("s_add_u32 s45, s45, 40")
    e("s_lshl_b32 s45, s45, 8")
    e("v_add_u32 v35, s45, v33")
    e(f"ds_read_b128 v[36:39], v35 offset:{ACCN}")
    e(f"ds_read_b128 v[40:43], v35 offset:{ACCD}")
    e("v_cmp_eq_u32 vcc, s46, v32")
    e("s_waitcnt lgkmcnt(0)")
    e("s_mov_b64 exec, vcc")
    for r in range(4):
        e(f"v_add_f32 v{16+r}, v{16+r}, v{36+r}")
        e(f"v_add_f32 v{20+r}, v{20+r}, v{40+r}")
    e("s_mov_b64 exec, -1")
    e("s_branch K2_merge")
    lab("K2_merged")
    for r in range(4):
        e(f"v_add_f32 v{20+r}, s42, v{20+r}")
    for r in range(4):
        e(f"v_rcp_f32 v{20+r}, v{20+r}")
    for r in range(4):
        e(f"v_and_b32 v{24+r}, 0xffff0000, v{24+r}")
    for r in range(4):
        e(f"v_fma_f32 v{16+r}, v{16+r}, v{20+r}, v{24+r}")
    for r in range(4):
        e(f"v_mul_f32 v{20+r}, 0, v{16+r}")
    for r in range(4):
        e(f"v_cmp_lt_f32 vcc, 0, v{16+r}")
        nop(2)
        e(f"v_cndmask_b32 v{16+r}, v{20+r}, v{16+r}, vcc")
    e(f"v_lshlrev_b32 v24, 16, v{V_X}")
    e(f"v_and_b32 v25, 0xffff0000, v{V_X}")
    e(f"v_lshlrev_b32 v26, 16, v{V_X+1}")
    e(f"v_and_b32 v27, 0xffff0000, v{V_X+1}")
    for r in range(4):
        e(f"v_add_f32 v{16+r}, v{16+r}, v{24+r}")
    e("v_cvt_pk_bf16_f32 v28, v16, v17")
    e("v_cvt_pk_bf16_f32 v29, v18, v19")
    e("global_store_dwordx2 v66, v[28:29], s[22:23]")
    lab("K2_end")
    stamp(7)
    stamp_store(8, S_WAVE, WS_STAMP, S_BIN)
    lab("K2_done")
    e("s_endpgm")
    lab("K2_idle")
    e(f"v_readfirstlane_b32 s{S_WAVE}, v0")
    e("s_waitcnt lgkmcnt(0)")
    e(f"s_lshr_b32 s{S_WAVE}, s{S_WAVE}, 6")
    warm_table()
    e("s_endpgm")
    atomic_flushes()

def kd(name, vgpr, sgpr):
    out.append(".p2align 6")
    out.append(f".amdhsa_kernel {name}")
    out.append(f"  .amdhsa_next_free_vgpr {vgpr}")
    out.append(f"  .amdhsa_next_free_sgpr {sgpr}")
    out.append(f"  .amdhsa_accum_offset {(vgpr+3)//4*4}")
    out.append("  .amdhsa_group_segment_fixed_size 0")
    out.append("  .amdhsa_kernarg_size 96")
    out.append("  .amdhsa_user_sgpr_count 2")
    out.append("  .amdhsa_user_sgpr_kernarg_segment_ptr 1")
    out.append("  .amdhsa_system_sgpr_workgroup_id_x 1")
    out.append(".end_amdhsa_kernel")

HEADER = f"""; Kernarg layout (96 bytes, ptrs only, base s[0:1]):
; @launch kernel={PREP} grid=(375,1,1) block=(640,1,1) lds={K1_LDS}
; @launch kernel={MAIN} grid=({K2_GRID},1,1) block=(1024,1,1) lds={K2_LDS}
.amdgcn_target "amdgcn-amd-amdhsa--gfx950"
.text"""

def main():
    global STAMPS
    if "--stamps" in sys.argv:
        STAMPS = True
        sys.argv.remove("--stamps")
    for a in list(sys.argv):
        if a.startswith("--opt="):
            OPT.update(a[6:].split(","))
            sys.argv.remove(a)
    out.append(HEADER)
    gen_k1()
    gen_k2()
    out.append('.section .rodata,"a"')
    kd(PREP, 64, 102 if STAMPS else 48)
    kd(MAIN, K2_VGPRS, 102 if STAMPS else 80)
    path = sys.argv[1] if len(sys.argv) > 1 else "standalone__edge_featured_mpnn_gatedgcn__graph.s"
    open(path, "w").write("\n".join(out) + "\n")
    print("wrote", path, len(out), "lines")

if __name__ == "__main__":
    main()
```

```python
import sys

MAIN = "standalone__edge_featured_mpnn_gatedgcn__graph_kernel"
PREP = "gcn_prep_kernel"

N_NODES = 10000
NB = 250
EPC = 2560
NPB = 40
WS_T = 0
WS_T2 = 0x280000
WS_TAB = 0x500000
WS_REC = 0x580000
REC_STRIDE = EPC * 12
NEG_L2E = 0xBFB8AA3B

out = []
def e(s): out.append("    " + s)
def lab(s): out.append(s + ":")
def cmt(s): out.append("    ; " + s)
def nop(n):
    while n > 0:
        k = min(n, 16)
        e(f"s_nop {k-1}")
        n -= k

STAMPS = False
OPT = set()
WS_STAMP = 0x2000000
def stamp(k):
    if STAMPS and not ("segs" in OPT and k >= 2):
        e(f"{'s_memrealtime' if 'rt' in OPT else 's_memtime'} s[{80+2*k}:{81+2*k}]")
def seg(k):
    if "segs" in OPT:
        e("s_memtime s[98:99]")
        e("s_waitcnt lgkmcnt(0)")
        e("s_sub_u32 s100, s98, s79")
        e(f"s_add_u32 s{84+k}, s{84+k}, s100")
        e("s_mov_b32 s79, s98")
def stamp_store(nst, wave_sreg, base_off, wg_sreg=2):
    if not STAMPS: return
    e("s_waitcnt vmcnt(0) lgkmcnt(0)")
    e("s_mov_b64 exec, 1")
    e(f"s_lshl_b32 s98, s{wg_sreg}, 4")
    e(f"s_add_u32 s98, s98, s{wave_sreg}")
    e(f"s_lshl_b32 s98, s98, 7")
    e(f"s_add_u32 s98, s98, {base_off:#x}")
    e("s_add_u32 s96, s26, s98")
    e("s_addc_u32 s97, s27, 0")
    e("v_mov_b32 v0, 0")
    for k in range(nst):
        e(f"v_mov_b32 v2, s{80+2*k}")
        e(f"v_mov_b32 v3, s{81+2*k}")
        e(f"global_store_dwordx2 v0, v[2:3], s[96:97] offset:{8*k}")
        e("s_nop 1")
    e("s_waitcnt vmcnt(0)")
    e("s_mov_b64 exec, -1")

def dpp_scan(v):
    for ctl in ("row_shr:1 row_mask:0xf bank_mask:0xf", "row_shr:2 row_mask:0xf bank_mask:0xf",
                "row_shr:4 row_mask:0xf bank_mask:0xf", "row_shr:8 row_mask:0xf bank_mask:0xf",
                "row_bcast:15 row_mask:0xa bank_mask:0xf", "row_bcast:31 row_mask:0xc bank_mask:0xf"):
        nop(2)
        e(f"v_add_u32_dpp v{v}, v{v}, v{v} {ctl}")

def load_kernargs():
    e("s_load_dwordx16 s[4:19], s[0:1], 0")
    e("s_load_dwordx8 s[20:27], s[0:1], 64")

def add64(d, s, imm):
    e(f"s_add_u32 s{d}, s{s}, {imm:#x}")
    e(f"s_addc_u32 s{d+1}, s{s+1}, 0")

K1_STG, K1_HIST, K1_OFF = 0, 30720, 33280
K1_LDS = 36864
W_PITCH = 144
W_MAT = 64 * W_PITCH

def WT():
    for o in OPT:
        if o.startswith("wt="): return " " + o[3:].replace("+", " ") if o[3:] != "none" else ""
    return " sc1"

def gen_k1():
    out.append(f".globl {PREP}")
    out.append(".p2align 8")
    out.append(f".type {PREP},@function")
    lab(PREP)
    e("s_cmp_ge_u32 s2, 375")
    e("s_cbranch_scc1 K1_done")
    stamp(0)
    load_kernargs()
    e("s_cmp_ge_u32 s2, 250")
    e("s_cbranch_scc1 K1_tables")
    e("s_mul_i32 s28, s2, 10240")
    e("v_lshl_add_u32 v1, v0, 4, s28")
    e("s_lshl_b32 s29, s28, 1")
    e("v_lshl_add_u32 v2, v0, 5, s29")
    e("v_lshlrev_b32 v3, 2, v0")
    e("v_mov_b32 v20, 0")
    e(f"ds_write_b32 v3, v20 offset:{K1_HIST}")
    e("s_waitcnt lgkmcnt(0)")
    e("global_load_dwordx4 v[4:7], v1, s[10:11]")
    e("global_load_dwordx4 v[8:11], v1, s[8:9]")
    e("global_load_dwordx4 v[12:15], v2, s[6:7]")
    e("global_load_dwordx4 v[16:19], v2, s[6:7] offset:16")
    e("s_mov_b32 s30, 52429")
    e("s_movk_i32 s31, -40")
    e("v_mov_b32 v60, 1")
    e("v_readfirstlane_b32 s33, v0")
    e("s_barrier")
    e("s_lshr_b32 s33, s33, 6")
    e("s_waitcnt vmcnt(3)")
    stamp(1)
    for i in range(4):
        e(f"v_mul_u32_u24 v{20+i}, s30, v{4+i}")
    for i in range(4):
        e(f"v_lshrrev_b32 v{20+i}, 21, v{20+i}")
    for i in range(4):
        e(f"v_mad_i32_i24 v{28+i}, v{20+i}, s31, v{4+i}")
    for i in range(4):
        e(f"v_lshlrev_b32 v{20+i}, 2, v{20+i}")
    for i in range(4):
        e(f"ds_add_rtn_u32 v{24+i}, v{20+i}, v60 offset:{K1_HIST}")
    e("s_waitcnt vmcnt(2)")
    for i in range(4):
        e(f"v_lshlrev_b32 v{8+i}, 8, v{8+i}")
    for i in range(4):
        e(f"v_lshl_or_b32 v{28+i}, v{28+i}, 26, v{8+i}")
    e("v_and_b32 v32, 63, v0")
    e("v_lshlrev_b32 v32, 4, v32")
    e("s_waitcnt lgkmcnt(0)")
    e("s_barrier")
    stamp(2)
    e(f"ds_read_b128 v[36:39], v32 offset:{K1_HIST}")
    e("s_waitcnt lgkmcnt(0)")
    e("v_add_u32 v40, v36, v37")
    e("v_add_u32 v41, v40, v38")
    e("v_add_u32 v42, v41, v39")
    e("v_mov_b32 v43, v42")
    dpp_scan(43)
    e("v_sub_u32 v44, v43, v42")
    e("v_add_u32 v45, v44, v36")
    e("v_add_u32 v46, v44, v40")
    e("v_add_u32 v47, v44, v41")
    e(f"ds_write_b128 v32, v[44:47] offset:{K1_OFF}")
    for i in range(4):
        e(f"ds_read_b32 v{52+i}, v{20+i} offset:{K1_OFF}")
    e("s_cmp_lg_u32 s33, 0")
    e("s_cbranch_scc1 K1_notab")
    for k in range(4):
        e(f"v_lshl_or_b32 v{48+k}, v{36+k}, 16, v{44+k}")
    e("s_lshl_b32 s34, s2, 10")
    e("v_add_u32 v33, s34, v32")
    add64(36, 26, WS_TAB)
    e(f"global_store_dwordx4 v33, v[48:51], s[36:37]{WT()}")
    lab("K1_notab")
    e("s_waitcnt lgkmcnt(0)")
    for i in range(4):
        e(f"v_add_u32 v{52+i}, v{52+i}, v{24+i}")
    for i in range(4):
        e(f"v_mul_u32_u24 v{52+i}, 12, v{52+i}")
    e("s_waitcnt vmcnt(0)")
    for i in range(4):
        e(f"ds_write2_b32 v{52+i}, v{12+2*i}, v{13+2*i} offset0:0 offset1:1")
        e(f"ds_write_b32 v{52+i}, v{28+i} offset:8")
    e("s_mul_i32 s34, s2, %d" % REC_STRIDE)
    add64(38, 26, WS_REC)
    e("s_add_u32 s38, s38, s34")
    e("s_addc_u32 s39, s39, 0")
    add64(40, 38, 10240)
    add64(42, 38, 20480)
    e("v_lshlrev_b32 v3, 4, v0")
    e("s_waitcnt lgkmcnt(0)")
    e("s_barrier")
    stamp(3)
    e("ds_read_b128 v[4:7], v3")
    e("ds_read_b128 v[8:11], v3 offset:10240")
    e("ds_read_b128 v[12:15], v3 offset:20480")
    e("s_waitcnt lgkmcnt(2)")
    e(f"global_store_dwordx4 v3, v[4:7], s[38:39]{WT()}")
    e("s_waitcnt lgkmcnt(1)")
    e(f"global_store_dwordx4 v3, v[8:11], s[40:41]{WT()}")
    e("s_waitcnt lgkmcnt(0)")
    e(f"global_store_dwordx4 v3, v[12:15], s[42:43]{WT()}")
    stamp(4)
    if STAMPS:
        e("s_waitcnt vmcnt(0)")
        stamp(5)
    stamp_store(6, 33, WS_STAMP + 0x100000)
    e("s_endpgm")
    lab("K1_tables")
    e("s_sub_u32 s28, s2, 250")
    e("v_readfirstlane_b32 s33, v0")
    e("v_and_b32 v1, 63, v0")
    e("s_lshr_b32 s33, s33, 6")
    e("s_lshr_b32 s34, s33, 1")
    e("s_and_b32 s35, s33, 1")
    e("s_mul_i32 s36, s28, 80")
    e("s_lshl_b32 s37, s34, 4")
    e("s_add_u32 s36, s36, s37")
    e("v_and_b32 v2, 15, v1")
    e("v_lshrrev_b32 v3, 4, v1")
    e("v_add_u32 v60, s36, v2")
    e("v_lshlrev_b32 v61, 7, v60")
    e("v_lshl_add_u32 v61, v3, 4, v61")
    e("s_waitcnt lgkmcnt(0)")
    e("global_load_dwordx4 v[20:23], v61, s[4:5]")
    e("global_load_dwordx4 v[24:27], v61, s[4:5] offset:64")
    e("s_cmp_ge_u32 s33, 8")
    e("s_cbranch_scc1 K1_nostage")
    e("v_lshlrev_b32 v62, 4, v0")
    e("global_load_dwordx4 v[4:7], v62, s[14:15]")
    e("global_load_dwordx4 v[8:11], v62, s[20:21]")
    e("global_load_dwordx4 v[12:15], v62, s[12:13]")
    e("global_load_dwordx4 v[16:19], v62, s[18:19]")
    e("v_lshrrev_b32 v62, 3, v0")
    e(f"v_mul_u32_u24 v62, {W_PITCH}, v62")
    e("v_and_b32 v63, 7, v0")
    e("v_lshl_add_u32 v62, v63, 4, v62")
    e("s_waitcnt vmcnt(0)")
    for m in range(4):
        e(f"ds_write_b128 v62, v[{4+4*m}:{7+4*m}] offset:{m*W_MAT}")
    lab("K1_nostage")
    e("v_lshrrev_b32 v62, 2, v2")
    e("v_lshl_add_u32 v62, v3, 3, v62")
    e(f"v_mul_u32_u24 v62, {W_PITCH}, v62")
    e("v_and_b32 v63, 3, v2")
    e("v_lshl_add_u32 v62, v63, 3, v62")
    e(f"s_mul_i32 s37, s35, {2*W_MAT}")
    e("v_add_u32 v62, s37, v62")
    e("v_lshlrev_b32 v61, 8, v60")
    e("v_lshl_add_u32 v61, v3, 4, v61")
    e(f"s_mul_i32 s37, s35, {WS_T2}")
    e("s_add_u32 s38, s26, s37")
    e("s_addc_u32 s39, s27, 0")
    e(f"s_mov_b32 s40, {NEG_L2E:#x}")
    e("s_brev_b32 s41, 1")
    e("s_mov_b32 s42, 0x7fff0000")
    e("s_waitcnt vmcnt(0) lgkmcnt(0)")
    stamp(1)
    e("s_barrier")
    stamp(2)
    def wreads(ft, base):
        for mp in range(2):
            for ks in range(2):
                for half in range(2):
                    r = base + 8*mp + 4*ks + 2*half
                    off = mp*W_MAT + (32*ks + 4*half)*W_PITCH + ft*32
                    e(f"ds_read_b64_tr_b16 v[{r}:{r+1}], v62 offset:{off}")
    wreads(0, 28)
    for ft in range(4):
        base = 28 if ft % 2 == 0 else 44
        e("s_waitcnt lgkmcnt(0)")
        if ft < 3:
            wreads(ft+1, 44 if ft % 2 == 0 else 28)
        e(f"v_mfma_f32_16x16x32_bf16 v[4:7], v[{base}:{base+3}], v[20:23], 0")
        e(f"v_mfma_f32_16x16x32_bf16 v[8:11], v[{base+8}:{base+11}], v[20:23], 0")
        e(f"v_mfma_f32_16x16x32_bf16 v[4:7], v[{base+4}:{base+7}], v[24:27], v[4:7]")
        e(f"v_mfma_f32_16x16x32_bf16 v[8:11], v[{base+12}:{base+15}], v[24:27], v[8:11]")
        nop(8)
        for r in range(4):
            e(f"v_mul_f32 v{4+r}, s40, v{4+r}")
        e("s_cmp_eq_u32 s35, 0")
        e(f"s_cbranch_scc1 K1_T_{ft}")
        for r in range(4):
            e(f"v_cvt_pk_bf16_f32 v{12+r}, v{4+r}, v{8+r}")
        e(f"s_branch K1_st_{ft}")
        lab(f"K1_T_{ft}")
        e("v_cvt_pk_bf16_f32 v16, v4, v5")
        e("v_cvt_pk_bf16_f32 v17, v6, v7")
        e("v_and_b32 v4, 0xffff, v16")
        e("v_lshrrev_b32 v5, 16, v16")
        e("v_and_b32 v6, 0xffff, v17")
        e("v_lshrrev_b32 v7, 16, v17")
        for r in range(4):
            e(f"v_and_b32 v18, 0x7fffffff, v{8+r}")
            e("v_add_u32 v18, 0x8000, v18")
            e(f"v_sub_u32_e64 v18, v18, v{4+r} clamp")
            e(f"v_and_or_b32 v19, v{8+r}, s41, v{4+r}")
            e(f"v_bfi_b32 v{12+r}, s42, v18, v19")
        lab(f"K1_st_{ft}")
        e(f"global_store_dwordx4 v61, v[12:15], s[38:39] offset:{ft*64}{WT()}")
        nop(2)
    stamp(3)
    if STAMPS:
        e("s_waitcnt vmcnt(0)")
        stamp(4)
        stamp(5)
    stamp_store(6, 33, WS_STAMP + 0x100000)
    e("s_or_b32 s37, s28, s33")
    e("s_cmp_lg_u32 s37, 0")
    e("s_cbranch_scc1 K1_done")
    e("v_lshlrev_b32 v2, 2, v1")
    e(f"v_add_u32 v2, {N_NODES*256:#x}, v2")
    e("v_mov_b32 v3, 0x7f00")
    e(f"global_store_dword v2, v3, s[26:27]{WT()}")
    lab("K1_done")
    e("s_endpgm")

ACCN, ACCD = 0, 14336
CNT, MAXC, ZERO, CN = 28672, 28928, 28944, 28960
ZERO_END = 29184
START = 29184
T2L = 29440
GN = 39680
CAPP = 8160
IDX = GN + 2048
ATTR = IDX + 4*CAPP
K2_LDS = ATTR + 8*CAPP
DUMMY = N_NODES * 256
K2_GRID = 256

V_L, V_L4 = 1, 2
V_AI, V_AE, V_ESTR, V_EBASE = 3, 4, 5, 6
V_DB, V_DESC = 7, 8
V_X = 12
V_END, V_A = 14, 15
T = (16, 32, 48)
D = 64
SEL, EO, BE, ONE = 80, 84, 88, 92
DEN, NUM = 96, 98
V_M = 100
V_F = 104
V_LT2 = 106
V_PF = 108
K2_VGPRS = 112
S_T = 28
S_BIN, S_WAVE, S_P32, S_MAX = 37, 38, 39, 40
S_MASK = 44
S_K0, S_NBLK, S_K, S_CUR, S_D, S_DN, S_LOADED = 60, 61, 62, 63, 64, 65, 66
S_MIX, S_ROW, S_TMP, S_TMP2, S_PERM = 67, 68, 69, 70, 71
S_KC = 72

def slot(i, jj): return 16 + 4*(i + 4*jj)
def smask(i, jj): return S_MASK + 2*(i + 4*jj)

def issue_row_loads(tb):
    for v in range(tb, tb+16):
        if "noload" in OPT: e("s_nop 0")
        else: e(f"buffer_load_dword v{v}, v{v}, s[{S_T}:{S_T+3}], 0 offen")

def warm_table():
    if "nopf" in OPT: return
    e("s_lshr_b32 s41, s2, 3")
    e("s_mul_i32 s41, s41, 81920")
    e(f"v_lshl_add_u32 v{V_PF+1}, v0, 6, s41")
    e(f"global_load_dword v{V_PF}, v{V_PF+1}, s[26:27]")
    e(f"s_cmp_ge_u32 s{S_WAVE}, 4")
    e("s_cbranch_scc1 K2_pf_done%d" % len(out))
    tag = "K2_pf_done%d" % (len(out) - 1)
    e(f"v_add_u32 v{V_PF+1}, 0x10000, v{V_PF+1}")
    e(f"global_load_dword v{V_PF}, v{V_PF+1}, s[26:27]")
    lab(tag)

def idx_reads(tb):
    for q in range(4):
        e(f"ds_read_b128 v[{tb+4*q}:{tb+4*q+3}], v{V_AI} offset:{IDX+16*q}")
    e(f"v_add_u32 v{V_AI}, 64, v{V_AI}")

def attr_read():
    e(f"ds_read_b64 v[{EO}:{EO+1}], v{V_AE}")
    e(f"v_add_u32 v{V_AE}, v{V_ESTR}, v{V_AE}")

def node_rows_read(sdesc):
    for g in range(4):
        e(f"s_bfe_u32 s{S_TMP}, s{sdesc}, {(8 << 16) | (8*g):#x}")
        e(f"s_lshl_b32 s{S_TMP}, s{S_TMP}, 6")
        e(f"v_add_u32 v{V_A}, s{S_TMP}, v{V_LT2}")
        e(f"ds_read_b32 v{V_M+g}, v{V_A}")

def node_rows_pack():
    e(f"v_perm_b32 v{BE+2}, v{V_M+1}, v{V_M}, s{S_PERM}")
    e(f"v_perm_b32 v{BE+3}, v{V_M+3}, v{V_M+2}, s{S_PERM}")

def flush(tag):
    e(f"v_add_u32 v{V_A}, s{S_ROW}, v{V_L4}")
    e(f"v_add_f32 v{V_F}, v{DEN}, v{DEN+1}")
    e(f"v_add_f32 v{V_F+1}, v{NUM}, v{NUM+1}")
    e(f"s_cmp_lg_u32 s{S_P32}, 0")
    e(f"s_cbranch_scc1 {tag}_atomic")
    e(f"ds_write_b32 v{V_A}, v{V_F} offset:{ACCD}")
    e(f"ds_write_b32 v{V_A}, v{V_F+1} offset:{ACCN}")
    lab(f"{tag}_flushed")
    ATOMIC_SITES.append(tag)

ATOMIC_SITES = []
def atomic_flushes():
    for tag in ATOMIC_SITES:
        lab(f"{tag}_atomic")
        e(f"ds_add_f32 v{V_A}, v{V_F} offset:{ACCD}")
        e(f"ds_add_f32 v{V_A}, v{V_F+1} offset:{ACCN}")
        e(f"s_branch {tag}_flushed")

def acc_group(tp, g):
    for k in (2*g, 2*g+1):
        e(f"v_pk_add_f32 v[{DEN}:{DEN+1}], v[{DEN}:{DEN+1}], v[{D+2*k}:{D+2*k+1}]")
        e(f"v_pk_fma_f32 v[{NUM}:{NUM+1}], v[{D+2*k}:{D+2*k+1}], v[{tp+2*k}:{tp+2*k+1}], v[{NUM}:{NUM+1}]")

def acc_group_init(tp, g):
    a = 4*g
    e(f"v_pk_add_f32 v[{DEN}:{DEN+1}], v[{D+a}:{D+a+1}], v[{D+a+2}:{D+a+3}]")
    e(f"v_pk_mul_f32 v[{NUM}:{NUM+1}], v[{D+a}:{D+a+1}], v[{tp+a}:{tp+a+1}]")
    e(f"v_pk_fma_f32 v[{NUM}:{NUM+1}], v[{D+a+2}:{D+a+3}], v[{tp+a+2}:{tp+a+3}], v[{NUM}:{NUM+1}]")

def body(P, main):
    tp, tr = T[P], T[(P+2) % 3]
    tag = f"K2_{'m' if main else 't'}{P}"
    lab(tag)
    if "noprio" not in OPT and not main: e("s_setprio 0")
    e("s_waitcnt lgkmcnt(0)")
    if "nomfma" not in OPT: e(f"v_mfma_f32_32x32x16_bf16 v[{D}:{D+15}], v[{EO}:{EO+3}], v[{BE}:{BE+3}], 0")
    e(f"s_add_u32 s{S_K}, s{S_K}, 1")
    if main and "nolds" not in OPT: idx_reads(tr)
    if "nolds" not in OPT: attr_read()
    e(f"v_readlane_b32 s{S_DN}, v{V_DB}, s{S_K}")
    e(f"s_mov_b32 s{S_MIX}, 0")
    e(f"s_cmp_eq_u32 s{S_DN}, s{S_LOADED}")
    if "noreload" not in OPT: e(f"s_cbranch_scc0 {tag}_reload")
    lab(f"{tag}_loaded")
    early = "late" not in OPT
    if main and early:
        e("s_waitcnt lgkmcnt(1)")
        issue_row_loads(tr)
        e("s_waitcnt vmcnt(32)")
    elif main:
        e("s_waitcnt vmcnt(16)")
    else:
        nop(4)
        e("s_waitcnt vmcnt(0)")
    for q in range(4 if "nomfma" not in OPT else 0):
        e(f"v_mfma_f32_16x16x32_bf16 v[{D+4*q}:{D+4*q+3}], v[{SEL}:{SEL+3}], v[{tp+4*q}:{tp+4*q+3}], v[{D+4*q}:{D+4*q+3}]")
    if main and not early:
        e("s_waitcnt lgkmcnt(1)")
        issue_row_loads(tr)
    else:
        nop(8)
    for v in range(16):
        if "novalu" not in OPT: e(f"v_exp_f32 v{D+v}, v{D+v}")
    nop(2)
    if "nomfma" not in OPT: e(f"v_mfma_f32_32x32x16_bf16 v[{D}:{D+15}], v[{ONE}:{ONE+3}], v[{ONE}:{ONE+3}], v[{D}:{D+15}]")
    e(f"s_cmp_lg_u32 s{S_MIX}, 0")
    e(f"s_cbranch_scc1 {tag}_pack")
    lab(f"{tag}_packed")
    e(f"s_and_b32 s{S_TMP}, s{S_D}, 0xff")
    e(f"s_mul_i32 s{S_TMP}, s{S_TMP}, 0x01010101")
    e(f"s_and_b32 s{S_TMP2}, s{S_D}, 0xff")
    e(f"s_xor_b32 s{S_TMP}, s{S_TMP}, s{S_D}")
    e(f"s_xor_b32 s{S_TMP2}, s{S_TMP2}, s{S_CUR}")
    e(f"s_or_b32 s{S_TMP}, s{S_TMP}, s{S_TMP2}")
    nop(4)
    for v in range(16):
        if "novalu" not in OPT: e(f"v_rcp_f32 v{D+v}, v{D+v}")
    if "noslow" not in OPT: e(f"s_cbranch_scc1 {tag}_slow")
    if "novalu" not in OPT:
        for g in range(4): acc_group(tp, g)
    lab(f"{tag}_next")
    e(f"s_mov_b32 s{S_D}, s{S_DN}")
    nP = (P+1) % 3
    if main:
        e(f"s_add_u32 s{S_TMP}, s{S_K}, 2")
        e(f"s_cmp_lt_u32 s{S_TMP}, s{S_NBLK}")
        e(f"s_cbranch_scc0 K2_t{nP}")
        if P == 2:
            if "noprio" not in OPT:
                e(f"s_cmp_lt_u32 s{S_K}, 6")
                e("s_cbranch_scc0 K2_prio1")
                e("s_setprio 2")
                e("s_branch K2_m0")
                lab("K2_prio1")
                e("s_setprio 1")
            e("s_branch K2_m0")
    else:
        e(f"s_cmp_lt_u32 s{S_K}, s{S_NBLK}")
        e("s_cbranch_scc0 K2_range_end")
        if P == 2: e("s_branch K2_t0")

def body_outlined(P, main):
    tp = T[P]
    tag = f"K2_{'m' if main else 't'}{P}"
    lab(f"{tag}_reload")
    node_rows_read(S_DN)
    e(f"s_mov_b32 s{S_LOADED}, s{S_DN}")
    e(f"s_mov_b32 s{S_MIX}, 1")
    e(f"s_branch {tag}_loaded")
    lab(f"{tag}_pack")
    e("s_waitcnt lgkmcnt(0)")
    node_rows_pack()
    e(f"s_branch {tag}_packed")
    lab(f"{tag}_slow")
    for g in range(4):
        e(f"s_bfe_u32 s{S_TMP2}, s{S_D}, {(8 << 16) | (8*g):#x}")
        e(f"s_cmp_eq_u32 s{S_TMP2}, s{S_CUR}")
        e(f"s_cbranch_scc1 {tag}_cont{g}")
        flush(f"{tag}_f{g}")
        e(f"s_mov_b32 s{S_CUR}, s{S_TMP2}")
        e(f"s_lshl_b32 s{S_ROW}, s{S_TMP2}, 6")
        acc_group_init(tp, g)
        e(f"s_branch {tag}_g{g}")
        lab(f"{tag}_cont{g}")
        acc_group(tp, g)
        lab(f"{tag}_g{g}")
    e(f"s_branch {tag}_next")

def gen_k2():
    out.append(f".globl {MAIN}")
    out.append(".p2align 8")
    out.append(f".type {MAIN},@function")
    lab(MAIN)
    e(f"s_cmp_ge_u32 s2, {K2_GRID}")
    e("s_cbranch_scc1 K2_done")
    e("s_and_b32 s3, s2, 7")
    e("s_lshl_b32 s3, s3, 5")
    e(f"s_lshr_b32 s{S_BIN}, s2, 3")
    e(f"s_add_u32 s{S_BIN}, s{S_BIN}, s3")
    stamp(0)
    load_kernargs()
    e(f"s_cmp_ge_u32 s{S_BIN}, {NB}")
    e("s_cbranch_scc1 K2_idle")
    e(f"v_readfirstlane_b32 s{S_WAVE}, v0")
    e(f"v_and_b32 v{V_L}, 63, v0")
    e(f"v_lshlrev_b32 v{V_L4}, 2, v{V_L}")
    e(f"s_lshr_b32 s{S_WAVE}, s{S_WAVE}, 6")
    e(f"v_lshrrev_b32 v64, 4, v{V_L}")
    e(f"s_lshl_b32 s{S_TMP}, s{S_WAVE}, 2")
    e(f"v_add_u32 v64, s{S_TMP}, v64")
    e("v_lshlrev_b32 v64, 2, v64")
    e(f"s_lshl_b32 s41, s{S_BIN}, 2")
    e("v_lshl_add_u32 v65, v64, 10, s41")
    e(f"v_lshlrev_b32 v66, 1, v{V_L}")
    e("s_waitcnt lgkmcnt(0)")
    add64(32, 26, WS_TAB)
    for i in range(4):
        e(f"global_load_dword v{V_DESC+i}, v65, s[32:33] offset:{1024*i}")
    for c in range(4):
        e(f"global_load_ushort v{72+c}, v66, s[16:17] offset:{128*c}")
    add64(34, 26, WS_REC)
    e(f"s_cmp_ge_u32 s{S_WAVE}, 10")
    e("s_cbranch_scc1 K2_no_t2")
    e(f"s_mul_i32 s41, s{S_BIN}, 10240")
    e("v_lshl_add_u32 v66, v0, 4, s41")
    add64(42, 26, WS_T2)
    e("global_load_dwordx4 v[68:71], v66, s[42:43]")
    e(f"s_mul_i32 s41, s{S_BIN}, 5120")
    e("v_lshl_add_u32 v66, v0, 3, s41")
    e(f"global_load_dwordx2 v[{V_X}:{V_X+1}], v66, s[4:5]")
    lab("K2_no_t2")
    e(f"s_mov_b32 s{S_T}, s26")
    e(f"s_and_b32 s{S_T+1}, s27, 0xffff")
    e(f"s_or_b32 s{S_T+1}, s{S_T+1}, 0x40000")
    e(f"s_mov_b32 s{S_T+2}, {(N_NODES+1)*256}")
    e(f"s_mov_b32 s{S_T+3}, 0x00800000")
    for r in range(76, 80):
        e(f"v_mov_b32 v{r}, 0")
    e("v_lshlrev_b32 v67, 4, v0")
    e("ds_write_b128 v67, v[76:79]")
    e(f"v_cmp_gt_u32 vcc, {(ZERO_END-16384)//16}, v0")
    e("s_mov_b64 exec, vcc")
    e("ds_write_b128 v67, v[76:79] offset:16384")
    e("s_mov_b64 exec, -1")
    e(f"v_and_b32 v16, 31, v{V_L}")
    e(f"v_lshrrev_b32 v17, 5, v{V_L}")
    e("v_bfe_u32 v18, v16, 2, 1")
    e("v_lshrrev_b32 v19, 3, v16")
    e("v_and_b32 v16, 3, v16")
    e("v_lshl_add_u32 v16, v19, 2, v16")
    e("v_cmp_eq_u32 vcc, v17, v18")
    e("v_mov_b32 v20, 0x80")
    e("v_lshlrev_b32 v16, 3, v16")
    e(f"v_cndmask_b32 v{V_ESTR}, 0, v20, vcc")
    e(f"v_add_u32 v16, {ATTR}, v16")
    e(f"v_mov_b32 v20, {ZERO}")
    e(f"v_cndmask_b32 v{V_EBASE}, v20, v16, vcc")
    e("v_and_b32 v21, 1, v19")
    e("v_lshlrev_b32 v21, 4, v21")
    e("v_mov_b32 v22, 0x3f80")
    e("v_lshlrev_b32 v21, v21, v22")
    e("v_cndmask_b32 v21, 0, v21, vcc")
    e("v_cmp_gt_u32 vcc, 2, v19")
    e(f"v_mov_b32 v{ONE+1}, 0")
    e(f"v_mov_b32 v{ONE+2}, 0")
    e(f"v_cndmask_b32 v{EO+2}, 0, v21, vcc")
    e(f"v_sub_u32 v{EO+3}, v21, v{EO+2}")
    e(f"v_cmp_gt_u32 vcc, 32, v{V_L}")
    e(f"v_mov_b32 v{ONE+3}, 0")
    e(f"v_add_u32 v{V_LT2}, {T2L}, v{V_L4}")
    e(f"v_cndmask_b32 v{ONE}, 0, v22, vcc")
    e(f"v_bfe_u32 v16, v{V_L}, 2, 2")
    e(f"v_lshrrev_b32 v17, 4, v{V_L}")
    e(f"v_and_b32 v18, 3, v{V_L}")
    e("v_cmp_eq_u32 vcc, v16, v17")
    e("v_mov_b32 v19, 31")
    e(f"s_mov_b32 s{S_PERM}, 0x05040100")
    e("v_cndmask_b32 v18, v19, v18, vcc")
    e("v_lshlrev_b32 v18, v18, 1")
    for k in range(4):
        e(f"v_bfe_u32 v{SEL+k}, v18, {k}, 1")
    for k in range(4):
        e(f"v_mul_u32_u24 v{SEL+k}, v22, v{SEL+k}")
    for i in range(4):
        e(f"s_mov_b32 s{S_KC+i}, {i*REC_STRIDE}")
    e(f"s_mov_b32 s{S_P32}, 0")
    e("s_waitcnt vmcnt(4)")
    stamp(1)
    for i in range(4):
        e(f"v_add_u32 v{16+i}, {i}, v64")
    e(f"s_movk_i32 s41, {NB}")
    for i in range(4):
        e(f"v_cmp_gt_u32 s[{S_MASK+2*i}:{S_MASK+2*i+1}], s41, v{16+i}")
    nop(1)
    for i in range(4):
        e(f"v_cndmask_b32 v{V_DESC+i}, 0, v{V_DESC+i}, s[{S_MASK+2*i}:{S_MASK+2*i+1}]")

    def slot_loads(jj):
        vj = 76 + jj
        for i in range(4):
            r, m = slot(i, jj), smask(i, jj)
            e(f"v_lshrrev_b32 v79, 16, v{V_DESC+i}")
            e(f"v_cmp_gt_u32 s[{m}:{m+1}], v79, v{vj}")
            e(f"v_and_b32 v79, 0xffff, v{V_DESC+i}")
            e(f"v_add3_u32 v79, v79, v{vj}, v78")
            e(f"v_mad_u32_u24 v79, v79, 12, s{S_KC+i}")
            e(f"s_mov_b64 exec, s[{m}:{m+1}]")
            e(f"global_load_dwordx3 v[{r}:{r+2}], v79, s[34:35]")
            e("s_mov_b64 exec, -1")
    def pass_addr():
        e(f"v_lshrrev_b32 v78, 4, v{V_L}")
        e(f"s_lshl_b32 s{S_TMP}, s{S_WAVE}, 2")
        e(f"v_add_u32 v78, s{S_TMP}, v78")
        e(f"v_mul_u32_u24 v78, {4*EPC}, v78")
        e(f"v_and_b32 v76, 15, v{V_L}")
        e(f"v_add_u32 v76, s{S_P32}, v76")
        e("v_add_u32 v77, 16, v76")
    lab("K2_pass")
    pass_addr()
    slot_loads(0)
    for i in range(4):
        e(f"s_mov_b64 s[{smask(i,1)}:{smask(i,1)+1}], 0")
    e(f"v_lshrrev_b32 v79, 16, v{V_DESC}")
    e(f"v_lshrrev_b32 v{V_A}, 16, v{V_DESC+1}")
    e(f"v_max_u32 v79, v79, v{V_A}")
    e(f"v_lshrrev_b32 v{V_A}, 16, v{V_DESC+2}")
    e(f"v_max_u32 v79, v79, v{V_A}")
    e(f"v_lshrrev_b32 v{V_A}, 16, v{V_DESC+3}")
    e(f"v_max_u32 v{V_DB}, v79, v{V_A}")
    e(f"v_cmp_gt_u32 vcc, v{V_DB}, v77")
    e(f"s_mov_b32 s{S_MIX}, 0")
    e("s_cbranch_vccz K2_no_second")
    slot_loads(1)
    e(f"s_mov_b32 s{S_MIX}, 1")
    lab("K2_no_second")
    e(f"s_cmp_lg_u32 s{S_P32}, 0")
    e("s_cbranch_scc1 K2_tables_done")
    e("s_waitcnt vmcnt(4)")
    warm_table()
    e(f"s_cmp_ge_u32 s{S_WAVE}, 10")
    e("s_cbranch_scc1 K2_no_t2w")
    e(f"ds_write_b128 v67, v[68:71] offset:{T2L}")
    lab("K2_no_t2w")
    e(f"s_mov_b32 s{S_TMP}, {NEG_L2E:#x}")
    for c in range(4):
        e(f"v_lshlrev_b32 v{72+c}, 16, v{72+c}")
    for c in range(4):
        e(f"v_mul_f32 v{72+c}, s{S_TMP}, v{72+c}")
    e(f"v_cvt_pk_bf16_f32 v{BE}, v72, v73")
    e(f"v_cvt_pk_bf16_f32 v{BE+1}, v74, v75")
    e("s_waitcnt lgkmcnt(0)")
    e("s_barrier")
    e(f"v_cmp_lt_u32 vcc, 32, v{V_DB}")
    e("s_cbranch_vccz K2_tables_done")
    e(f"v_mov_b32 v79, {MAXC}")
    e(f"ds_max_u32 v79, v{V_DB}")
    lab("K2_tables_done")

    def for_slots(fn, name):
        for i in range(4):
            m = smask(i, 0)
            e(f"s_mov_b64 exec, s[{m}:{m+1}]")
            fn(i, 0, slot(i, 0))
        e("s_mov_b64 exec, -1")
        e(f"s_cmp_eq_u32 s{S_MIX}, 0")
        e(f"s_cbranch_scc1 K2_{name}_skip")
        for i in range(4):
            m = smask(i, 1)
            e(f"s_mov_b64 exec, s[{m}:{m+1}]")
            fn(i, 1, slot(i, 1))
        e("s_mov_b64 exec, -1")
        lab(f"K2_{name}_skip")
    e("v_mov_b32 v78, 1")
    if "nopf" in OPT:
        e("s_waitcnt vmcnt(0)")
    else:
        e(f"s_cmp_lg_u32 s{S_P32}, 0")
        e("s_cbranch_scc1 K2_wait_all")
        e(f"s_cmp_lt_u32 s{S_WAVE}, 4")
        e("s_cbranch_scc1 K2_wait_two")
        e("s_waitcnt vmcnt(1)")
        e("s_branch K2_waited")
        lab("K2_wait_two")
        e("s_waitcnt vmcnt(2)")
        e("s_branch K2_waited")
        lab("K2_wait_all")
        e("s_waitcnt vmcnt(0)")
        lab("K2_waited")
    stamp(2)
    def cnt_fn(i, jj, r):
        t = D + i + 4*jj
        e(f"v_lshrrev_b32 v{t}, 24, v{r+2}")
        e(f"ds_add_rtn_u32 v{r+3}, v{t}, v78 offset:{CNT}")
    for_slots(cnt_fn, "cnt")
    e("s_waitcnt lgkmcnt(0)")
    e("s_barrier")
    stamp(3)
    e(f"ds_read_b32 v76, v{V_L4} offset:{CNT}")
    e(f"v_mov_b32 v79, {MAXC}")
    e("ds_read_b32 v79, v79")
    e("s_waitcnt lgkmcnt(0)")
    e(f"v_readfirstlane_b32 s{S_MAX}, v79")
    e("v_add_u32 v77, 3, v76")
    e("v_and_b32 v77, -4, v77")
    e(f"v_mov_b32 v{V_END}, v77")
    dpp_scan(V_END)
    e(f"v_sub_u32 v75, v{V_END}, v77")
    e(f"ds_write_b32 v{V_L4}, v75 offset:{START}")
    def st_fn(i, jj, r):
        t = D + i + 4*jj
        e(f"ds_read_b32 v{T[2]+i+4*jj}, v{t} offset:{START}")
    for_slots(st_fn, "st")
    e(f"v_readlane_b32 s{S_NBLK}, v{V_END}, 63")
    e(f"s_cmp_lg_u32 s{S_WAVE}, 15")
    e("s_cbranch_scc1 K2_nopad")
    e("v_add_u32 v75, v75, v76")
    e(f"v_mov_b32 v74, {DUMMY:#x}")
    e("v_mov_b32 v72, 0")
    e("v_mov_b32 v73, 0")
    def pad_write(cond_hi):
        e(f"v_cmp_lt_u32 vcc, v75, {cond_hi}")
        e("v_lshlrev_b32 v79, 2, v75")
        e("v_lshlrev_b32 v78, 3, v75")
        e(f"v_add_u32 v78, {ATTR}, v78")
        e("s_mov_b64 exec, vcc")
        e(f"ds_write_b32 v79, v74 offset:{IDX}")
        e("ds_write_b64 v78, v[72:73]")
        e("s_mov_b64 exec, -1")
    for k in range(3):
        pad_write(f"v{V_END}")
        e("v_add_u32 v75, 1, v75")
    e(f"s_add_u32 s{S_TMP}, s{S_NBLK}, 15")
    e(f"s_and_b32 s{S_TMP}, s{S_TMP}, -16")
    e(f"v_mov_b32 v77, s{S_TMP}")
    e(f"v_add_u32 v75, s{S_NBLK}, v{V_L}")
    pad_write("v77")
    e("v_lshrrev_b32 v75, 2, v75")
    e("v_mov_b32 v74, 160")
    e("s_mov_b64 exec, vcc")
    e(f"ds_write_b8 v75, v74 offset:{GN}")
    e("s_mov_b64 exec, -1")
    lab("K2_nopad")
    e("s_waitcnt lgkmcnt(0)")
    e(f"s_mov_b32 s{S_TMP2}, {ATTR}")
    def sc_fn(i, jj, r):
        t = D + i + 4*jj
        p = T[2] + i + 4*jj
        e(f"v_add_u32 v{p}, v{p}, v{r+3}")
        e(f"v_and_b32 v{r+2}, 0xffffff, v{r+2}")
        e(f"v_lshl_add_u32 v{r+3}, v{p}, 3, s{S_TMP2}")
        e(f"ds_write_b64 v{r+3}, v[{r}:{r+1}]")
        e(f"v_lshrrev_b32 v{r+3}, 2, v{p}")
        e(f"v_lshlrev_b32 v{p}, 2, v{p}")
        e(f"ds_write_b32 v{p}, v{r+2} offset:{IDX}")
        e(f"ds_write_b8 v{r+3}, v{t} offset:{GN}")
    for_slots(sc_fn, "sc")
    e("s_waitcnt lgkmcnt(0)")
    e("s_barrier")
    stamp(4)
    e(f"s_add_u32 s{S_TMP}, s{S_NBLK}, 15")
    e(f"s_lshr_b32 s{S_TMP}, s{S_TMP}, 4")
    e(f"s_mul_i32 s{S_K0}, s{S_TMP}, s{S_WAVE}")
    e(f"s_add_u32 s{S_NBLK}, s{S_K0}, s{S_TMP}")
    e(f"s_lshr_b32 s{S_K0}, s{S_K0}, 4")
    e(f"s_lshr_b32 s{S_NBLK}, s{S_NBLK}, 4")
    e(f"s_sub_u32 s{S_NBLK}, s{S_NBLK}, s{S_K0}")
    e(f"s_cmp_eq_u32 s{S_NBLK}, 0")
    e("s_cbranch_scc1 K2_empty_range")
    e(f"v_add_u32 v{V_A}, s{S_K0}, v{V_L}")
    e(f"v_lshlrev_b32 v{V_A}, 2, v{V_A}")
    e(f"ds_read_b32 v{V_DB}, v{V_A} offset:{GN}")
    e(f"ds_read_b32 v{V_F}, v{V_A} offset:{GN-4}")
    e(f"s_lshl_b32 s{S_TMP}, s{S_K0}, 6")
    e(f"v_mov_b32 v{V_AI}, s{S_TMP}")
    e(f"v_mad_u32_u24 v{V_AE}, v{V_ESTR}, s{S_K0}, v{V_EBASE}")
    idx_reads(T[0])
    idx_reads(T[1])
    attr_read()
    for r in (DEN, DEN+1, NUM, NUM+1):
        e(f"v_mov_b32 v{r}, 0")
    e("s_waitcnt lgkmcnt(0)")
    e(f"v_readlane_b32 s{S_D}, v{V_DB}, 0")
    issue_row_loads(T[0])
    node_rows_read(S_D)
    e(f"s_mov_b32 s{S_LOADED}, s{S_D}")
    e(f"s_and_b32 s{S_CUR}, s{S_D}, 0xff")
    e(f"s_lshl_b32 s{S_ROW}, s{S_CUR}, 6")
    e(f"s_cmp_lg_u32 s{S_P32}, 0")
    e("s_cbranch_scc1 K2_carry_done")
    e(f"v_readlane_b32 s{S_TMP2}, v{V_F}, 0")
    e(f"s_add_u32 s{S_MIX}, s{S_WAVE}, 40")
    e(f"s_lshl_b32 s{S_MIX}, s{S_MIX}, 8")
    e(f"s_lshr_b32 s{S_TMP2}, s{S_TMP2}, 24")
    e(f"s_cmp_eq_u32 s{S_K0}, 0")
    e(f"s_cselect_b32 s{S_TMP2}, 0x100, s{S_TMP2}")
    e(f"s_cmp_eq_u32 s{S_TMP2}, s{S_CUR}")
    e(f"s_cselect_b32 s{S_ROW}, s{S_MIX}, s{S_ROW}")
    e(f"s_cselect_b32 s{S_TMP2}, s{S_CUR}, 0xff")
    e(f"s_lshl_b32 s{S_TMP}, s{S_WAVE}, 2")
    e(f"v_mov_b32 v{V_A}, s{S_TMP}")
    e(f"v_mov_b32 v{V_F}, s{S_TMP2}")
    e(f"ds_write_b32 v{V_A}, v{V_F} offset:{CN}")
    lab("K2_carry_done")
    e(f"s_mov_b32 s{S_K}, 0")
    e(f"s_cmp_lt_u32 s{S_NBLK}, 2")
    e("s_cbranch_scc1 K2_one_block")
    issue_row_loads(T[1])
    lab("K2_one_block")
    e("s_waitcnt lgkmcnt(0)")
    node_rows_pack()
    if "noprio" not in OPT: e("s_setprio 3")
    e(f"s_cmp_gt_u32 s{S_NBLK}, 2")
    e("s_cbranch_scc0 K2_t0")
    for P in range(3): body(P, True)
    for P in range(3): body(P, False)
    for P in range(3): body_outlined(P, True)
    for P in range(3): body_outlined(P, False)
    atomic_flushes()
    lab("K2_range_end")
    ATOMIC_SITES.clear()
    flush("K2_last")
    e("s_branch K2_main_done")
    lab("K2_empty_range")
    e(f"s_cmp_lg_u32 s{S_P32}, 0")
    e("s_cbranch_scc1 K2_main_done")
    e(f"s_lshl_b32 s{S_TMP}, s{S_WAVE}, 2")
    e(f"v_mov_b32 v{V_A}, s{S_TMP}")
    e(f"v_mov_b32 v{V_F}, 0xff")
    e(f"ds_write_b32 v{V_A}, v{V_F} offset:{CN}")
    lab("K2_main_done")
    if "noprio" not in OPT: e("s_setprio 0")
    stamp(5)
    e(f"s_add_u32 s{S_P32}, s{S_P32}, 32")
    e(f"s_cmp_ge_u32 s{S_P32}, s{S_MAX}")
    e("s_cbranch_scc1 K2_final")
    e(f"s_cmp_lg_u32 s{S_WAVE}, 0")
    e("s_cbranch_scc1 K2_nozc")
    e("v_mov_b32 v76, 0")
    e(f"ds_write_b32 v{V_L4}, v76 offset:{CNT}")
    lab("K2_nozc")
    e("s_waitcnt lgkmcnt(0)")
    e("s_barrier")
    e("s_branch K2_pass")
    lab("K2_final")
    e("s_waitcnt lgkmcnt(0)")
    e("s_barrier")
    stamp(6)
    e(f"s_cmp_ge_u32 s{S_WAVE}, 10")
    e("s_cbranch_scc1 K2_end")
    e("v_lshlrev_b32 v67, 4, v0")
    e(f"ds_read_b128 v[16:19], v67 offset:{ACCN}")
    e(f"ds_read_b128 v[20:23], v67 offset:{ACCD}")
    e(f"ds_read_b128 v[24:27], v67 offset:{T2L}")
    e(f"v_and_b32 v30, 15, v{V_L}")
    e("v_lshlrev_b32 v31, 2, v30")
    e(f"ds_read_b32 v31, v31 offset:{CN}")
    e(f"s_mul_i32 s41, s{S_BIN}, 5120")
    e("v_lshl_add_u32 v66, v0, 3, s41")
    e("s_mov_b32 s42, 0x358637bd")
    e("v_lshrrev_b32 v32, 4, v0")
    e("v_lshlrev_b32 v32, 2, v32")
    e("v_lshlrev_b32 v33, 4, v30")
    e("s_waitcnt lgkmcnt(0)")
    e("v_lshrrev_b32 v34, 4, v31")
    e(f"v_cmp_eq_u32 vcc, s{S_WAVE}, v34")
    e("s_and_b32 s44, vcc_lo, 0xffff")
    lab("K2_merge")
    e("s_cmp_eq_u32 s44, 0")
    e("s_cbranch_scc1 K2_merged")
    e("s_ff1_i32_b32 s45, s44")
    e("s_bitset0_b32 s44, s45")
    e("v_readlane_b32 s46, v31, s45")
    e("s_add_u32 s45, s45, 40")
    e("s_lshl_b32 s45, s45, 8")
    e("v_add_u32 v35, s45, v33")
    e(f"ds_read_b128 v[36:39], v35 offset:{ACCN}")
    e(f"ds_read_b128 v[40:43], v35 offset:{ACCD}")
    e("v_cmp_eq_u32 vcc, s46, v32")
    e("s_waitcnt lgkmcnt(0)")
    e("s_mov_b64 exec, vcc")
    for r in range(4):
        e(f"v_add_f32 v{16+r}, v{16+r}, v{36+r}")
        e(f"v_add_f32 v{20+r}, v{20+r}, v{40+r}")
    e("s_mov_b64 exec, -1")
    e("s_branch K2_merge")
    lab("K2_merged")
    for r in range(4):
        e(f"v_add_f32 v{20+r}, s42, v{20+r}")
    for r in range(4):
        e(f"v_rcp_f32 v{20+r}, v{20+r}")
    for r in range(4):
        e(f"v_and_b32 v{24+r}, 0xffff0000, v{24+r}")
    for r in range(4):
        e(f"v_fma_f32 v{16+r}, v{16+r}, v{20+r}, v{24+r}")
    for r in range(4):
        e(f"v_mul_f32 v{20+r}, 0, v{16+r}")
    for r in range(4):
        e(f"v_cmp_lt_f32 vcc, 0, v{16+r}")
        nop(2)
        e(f"v_cndmask_b32 v{16+r}, v{20+r}, v{16+r}, vcc")
    e(f"v_lshlrev_b32 v24, 16, v{V_X}")
    e(f"v_and_b32 v25, 0xffff0000, v{V_X}")
    e(f"v_lshlrev_b32 v26, 16, v{V_X+1}")
    e(f"v_and_b32 v27, 0xffff0000, v{V_X+1}")
    for r in range(4):
        e(f"v_add_f32 v{16+r}, v{16+r}, v{24+r}")
    e("v_cvt_pk_bf16_f32 v28, v16, v17")
    e("v_cvt_pk_bf16_f32 v29, v18, v19")
    e("global_store_dwordx2 v66, v[28:29], s[22:23]")
    lab("K2_end")
    stamp(7)
    stamp_store(8, S_WAVE, WS_STAMP, S_BIN)
    lab("K2_done")
    e("s_endpgm")
    lab("K2_idle")
    e(f"v_readfirstlane_b32 s{S_WAVE}, v0")
    e("s_waitcnt lgkmcnt(0)")
    e(f"s_lshr_b32 s{S_WAVE}, s{S_WAVE}, 6")
    warm_table()
    e("s_endpgm")
    atomic_flushes()

def kd(name, vgpr, sgpr):
    out.append(".p2align 6")
    out.append(f".amdhsa_kernel {name}")
    out.append(f"  .amdhsa_next_free_vgpr {vgpr}")
    out.append(f"  .amdhsa_next_free_sgpr {sgpr}")
    out.append(f"  .amdhsa_accum_offset {(vgpr+3)//4*4}")
    out.append("  .amdhsa_group_segment_fixed_size 0")
    out.append("  .amdhsa_kernarg_size 96")
    out.append("  .amdhsa_user_sgpr_count 2")
    out.append("  .amdhsa_user_sgpr_kernarg_segment_ptr 1")
    out.append("  .amdhsa_system_sgpr_workgroup_id_x 1")
    out.append(".end_amdhsa_kernel")

HEADER = f"""; Kernarg layout (96 bytes, ptrs only, base s[0:1]):
; @launch kernel={PREP} grid=(375,1,1) block=(640,1,1) lds={K1_LDS}
; @launch kernel={MAIN} grid=({K2_GRID},1,1) block=(1024,1,1) lds={K2_LDS}
.amdgcn_target "amdgcn-amd-amdhsa--gfx950"
.text"""

def main():
    global STAMPS
    if "--stamps" in sys.argv:
        STAMPS = True
        sys.argv.remove("--stamps")
    for a in list(sys.argv):
        if a.startswith("--opt="):
            OPT.update(a[6:].split(","))
            sys.argv.remove(a)
    out.append(HEADER)
    gen_k1()
    gen_k2()
    out.append('.section .rodata,"a"')
    kd(PREP, 64, 102 if STAMPS else 48)
    kd(MAIN, K2_VGPRS, 102 if STAMPS else 80)
    path = sys.argv[1] if len(sys.argv) > 1 else "standalone__edge_featured_mpnn_gatedgcn__graph.s"
    open(path, "w").write("\n".join(out) + "\n")
    print("wrote", path, len(out), "lines")

if __name__ == "__main__":
    main()
```

```python
import sys

MAIN = "standalone__edge_featured_mpnn_gatedgcn__graph_kernel"
PREP = "gcn_prep_kernel"

N_NODES = 10000
NB = 250
EPC = 2560
NPB = 40
WS_T = 0
WS_T2 = 0x280000
WS_TAB = 0x500000
WS_REC = 0x580000
REC_STRIDE = EPC * 12
NEG_L2E = 0xBFB8AA3B

out = []
def e(s): out.append("    " + s)
def lab(s): out.append(s + ":")
def cmt(s): out.append("    ; " + s)
def nop(n):
    while n > 0:
        k = min(n, 16)
        e(f"s_nop {k-1}")
        n -= k

STAMPS = False
OPT = set()
WS_STAMP = 0x2000000
def stamp(k):
    if STAMPS and not ("segs" in OPT and k >= 2):
        e(f"{'s_memrealtime' if 'rt' in OPT else 's_memtime'} s[{80+2*k}:{81+2*k}]")
def seg(k):
    if "segs" in OPT:
        e("s_memtime s[98:99]")
        e("s_waitcnt lgkmcnt(0)")
        e("s_sub_u32 s100, s98, s79")
        e(f"s_add_u32 s{84+k}, s{84+k}, s100")
        e("s_mov_b32 s79, s98")
def stamp_store(nst, wave_sreg, base_off, wg_sreg=2):
    if not STAMPS: return
    e("s_waitcnt vmcnt(0) lgkmcnt(0)")
    e("s_mov_b64 exec, 1")
    e(f"s_lshl_b32 s98, s{wg_sreg}, 4")
    e(f"s_add_u32 s98, s98, s{wave_sreg}")
    e(f"s_lshl_b32 s98, s98, 7")
    e(f"s_add_u32 s98, s98, {base_off:#x}")
    e("s_add_u32 s96, s26, s98")
    e("s_addc_u32 s97, s27, 0")
    e("v_mov_b32 v0, 0")
    for k in range(nst):
        e(f"v_mov_b32 v2, s{80+2*k}")
        e(f"v_mov_b32 v3, s{81+2*k}")
        e(f"global_store_dwordx2 v0, v[2:3], s[96:97] offset:{8*k}")
        e("s_nop 1")
    e("s_waitcnt vmcnt(0)")
    e("s_mov_b64 exec, -1")

def dpp_scan(v):
    for ctl in ("row_shr:1 row_mask:0xf bank_mask:0xf", "row_shr:2 row_mask:0xf bank_mask:0xf",
                "row_shr:4 row_mask:0xf bank_mask:0xf", "row_shr:8 row_mask:0xf bank_mask:0xf",
                "row_bcast:15 row_mask:0xa bank_mask:0xf", "row_bcast:31 row_mask:0xc bank_mask:0xf"):
        nop(2)
        e(f"v_add_u32_dpp v{v}, v{v}, v{v} {ctl}")

def load_kernargs():
    e("s_load_dwordx16 s[4:19], s[0:1], 0")
    e("s_load_dwordx8 s[20:27], s[0:1], 64")

def add64(d, s, imm):
    e(f"s_add_u32 s{d}, s{s}, {imm:#x}")
    e(f"s_addc_u32 s{d+1}, s{s+1}, 0")

K1_STG, K1_HIST, K1_OFF = 0, 30720, 33280
K1_LDS = 36864
W_PITCH = 144
W_MAT = 64 * W_PITCH

def WT():
    for o in OPT:
        if o.startswith("wt="): return " " + o[3:].replace("+", " ") if o[3:] != "none" else ""
    return " sc1"

def gen_k1():
    out.append(f".globl {PREP}")
    out.append(".p2align 8")
    out.append(f".type {PREP},@function")
    lab(PREP)
    e("s_cmp_ge_u32 s2, 375")
    e("s_cbranch_scc1 K1_done")
    stamp(0)
    load_kernargs()
    e("s_cmp_ge_u32 s2, 250")
    e("s_cbranch_scc1 K1_tables")
    e("s_mul_i32 s28, s2, 10240")
    e("v_lshl_add_u32 v1, v0, 4, s28")
    e("s_lshl_b32 s29, s28, 1")
    e("v_lshl_add_u32 v2, v0, 5, s29")
    e("v_lshlrev_b32 v3, 2, v0")
    e("v_mov_b32 v20, 0")
    e(f"ds_write_b32 v3, v20 offset:{K1_HIST}")
    e("s_waitcnt lgkmcnt(0)")
    ldf = " nt" if "ntld" in OPT else ""
    e(f"global_load_dwordx4 v[4:7], v1, s[10:11]{ldf}")
    e(f"global_load_dwordx4 v[8:11], v1, s[8:9]{ldf}")
    e(f"global_load_dwordx4 v[12:15], v2, s[6:7]{ldf}")
    e(f"global_load_dwordx4 v[16:19], v2, s[6:7] offset:16{ldf}")
    e("s_mov_b32 s30, 52429")
    e("s_movk_i32 s31, -40")
    e("v_mov_b32 v60, 1")
    e("v_readfirstlane_b32 s33, v0")
    e("s_barrier")
    e("s_lshr_b32 s33, s33, 6")
    e("s_waitcnt vmcnt(3)")
    stamp(1)
    for i in range(4):
        e(f"v_mul_u32_u24 v{20+i}, s30, v{4+i}")
    for i in range(4):
        e(f"v_lshrrev_b32 v{20+i}, 21, v{20+i}")
    for i in range(4):
        e(f"v_mad_i32_i24 v{28+i}, v{20+i}, s31, v{4+i}")
    for i in range(4):
        e(f"v_lshlrev_b32 v{20+i}, 2, v{20+i}")
    for i in range(4):
        e(f"ds_add_rtn_u32 v{24+i}, v{20+i}, v60 offset:{K1_HIST}")
    e("s_waitcnt vmcnt(2)")
    for i in range(4):
        e(f"v_lshlrev_b32 v{8+i}, 8, v{8+i}")
    for i in range(4):
        e(f"v_lshl_or_b32 v{28+i}, v{28+i}, 26, v{8+i}")
    e("v_and_b32 v32, 63, v0")
    e("v_lshlrev_b32 v32, 4, v32")
    e("s_waitcnt lgkmcnt(0)")
    e("s_barrier")
    stamp(2)
    e(f"ds_read_b128 v[36:39], v32 offset:{K1_HIST}")
    e("s_waitcnt lgkmcnt(0)")
    e("v_add_u32 v40, v36, v37")
    e("v_add_u32 v41, v40, v38")
    e("v_add_u32 v42, v41, v39")
    e("v_mov_b32 v43, v42")
    dpp_scan(43)
    e("v_sub_u32 v44, v43, v42")
    e("v_add_u32 v45, v44, v36")
    e("v_add_u32 v46, v44, v40")
    e("v_add_u32 v47, v44, v41")
    e(f"ds_write_b128 v32, v[44:47] offset:{K1_OFF}")
    for i in range(4):
        e(f"ds_read_b32 v{52+i}, v{20+i} offset:{K1_OFF}")
    e("s_cmp_lg_u32 s33, 0")
    e("s_cbranch_scc1 K1_notab")
    for k in range(4):
        e(f"v_lshl_or_b32 v{48+k}, v{36+k}, 16, v{44+k}")
    e("s_lshl_b32 s34, s2, 10")
    e("v_add_u32 v33, s34, v32")
    add64(36, 26, WS_TAB)
    e(f"global_store_dwordx4 v33, v[48:51], s[36:37]{WT()}")
    lab("K1_notab")
    e("s_waitcnt lgkmcnt(0)")
    for i in range(4):
        e(f"v_add_u32 v{52+i}, v{52+i}, v{24+i}")
    for i in range(4):
        e(f"v_mul_u32_u24 v{52+i}, 12, v{52+i}")
    e("s_waitcnt vmcnt(0)")
    for i in range(4):
        e(f"ds_write2_b32 v{52+i}, v{12+2*i}, v{13+2*i} offset0:0 offset1:1")
        e(f"ds_write_b32 v{52+i}, v{28+i} offset:8")
    e("s_mul_i32 s34, s2, %d" % REC_STRIDE)
    add64(38, 26, WS_REC)
    e("s_add_u32 s38, s38, s34")
    e("s_addc_u32 s39, s39, 0")
    add64(40, 38, 10240)
    add64(42, 38, 20480)
    e("v_lshlrev_b32 v3, 4, v0")
    e("s_waitcnt lgkmcnt(0)")
    e("s_barrier")
    stamp(3)
    e("ds_read_b128 v[4:7], v3")
    e("ds_read_b128 v[8:11], v3 offset:10240")
    e("ds_read_b128 v[12:15], v3 offset:20480")
    e("s_waitcnt lgkmcnt(2)")
    e(f"global_store_dwordx4 v3, v[4:7], s[38:39]{WT()}")
    e("s_waitcnt lgkmcnt(1)")
    e(f"global_store_dwordx4 v3, v[8:11], s[40:41]{WT()}")
    e("s_waitcnt lgkmcnt(0)")
    e(f"global_store_dwordx4 v3, v[12:15], s[42:43]{WT()}")
    stamp(4)
    if STAMPS:
        e("s_waitcnt vmcnt(0)")
        stamp(5)
    stamp_store(6, 33, WS_STAMP + 0x100000)
    e("s_endpgm")
    lab("K1_tables")
    e("s_sub_u32 s28, s2, 250")
    e("v_readfirstlane_b32 s33, v0")
    e("v_and_b32 v1, 63, v0")
    e("s_lshr_b32 s33, s33, 6")
    e("s_lshr_b32 s34, s33, 1")
    e("s_and_b32 s35, s33, 1")
    e("s_mul_i32 s36, s28, 80")
    e("s_lshl_b32 s37, s34, 4")
    e("s_add_u32 s36, s36, s37")
    e("v_and_b32 v2, 15, v1")
    e("v_lshrrev_b32 v3, 4, v1")
    e("v_add_u32 v60, s36, v2")
    e("v_lshlrev_b32 v61, 7, v60")
    e("v_lshl_add_u32 v61, v3, 4, v61")
    e("s_waitcnt lgkmcnt(0)")
    e("global_load_dwordx4 v[20:23], v61, s[4:5]")
    e("global_load_dwordx4 v[24:27], v61, s[4:5] offset:64")
    e("s_cmp_ge_u32 s33, 8")
    e("s_cbranch_scc1 K1_nostage")
    e("v_lshlrev_b32 v62, 4, v0")
    e("global_load_dwordx4 v[4:7], v62, s[14:15]")
    e("global_load_dwordx4 v[8:11], v62, s[20:21]")
    e("global_load_dwordx4 v[12:15], v62, s[12:13]")
    e("global_load_dwordx4 v[16:19], v62, s[18:19]")
    e("v_lshrrev_b32 v62, 3, v0")
    e(f"v_mul_u32_u24 v62, {W_PITCH}, v62")
    e("v_and_b32 v63, 7, v0")
    e("v_lshl_add_u32 v62, v63, 4, v62")
    e("s_waitcnt vmcnt(0)")
    for m in range(4):
        e(f"ds_write_b128 v62, v[{4+4*m}:{7+4*m}] offset:{m*W_MAT}")
    lab("K1_nostage")
    e("v_lshrrev_b32 v62, 2, v2")
    e("v_lshl_add_u32 v62, v3, 3, v62")
    e(f"v_mul_u32_u24 v62, {W_PITCH}, v62")
    e("v_and_b32 v63, 3, v2")
    e("v_lshl_add_u32 v62, v63, 3, v62")
    e(f"s_mul_i32 s37, s35, {2*W_MAT}")
    e("v_add_u32 v62, s37, v62")
    e("v_lshlrev_b32 v61, 8, v60")
    e("v_lshl_add_u32 v61, v3, 4, v61")
    e(f"s_mul_i32 s37, s35, {WS_T2}")
    e("s_add_u32 s38, s26, s37")
    e("s_addc_u32 s39, s27, 0")
    e(f"s_mov_b32 s40, {NEG_L2E:#x}")
    e("s_brev_b32 s41, 1")
    e("s_mov_b32 s42, 0x7fff0000")
    e("s_waitcnt vmcnt(0) lgkmcnt(0)")
    stamp(1)
    e("s_barrier")
    stamp(2)
    def wreads(ft, base):
        for mp in range(2):
            for ks in range(2):
                for half in range(2):
                    r = base + 8*mp + 4*ks + 2*half
                    off = mp*W_MAT + (32*ks + 4*half)*W_PITCH + ft*32
                    e(f"ds_read_b64_tr_b16 v[{r}:{r+1}], v62 offset:{off}")
    wreads(0, 28)
    for ft in range(4):
        base = 28 if ft % 2 == 0 else 44
        e("s_waitcnt lgkmcnt(0)")
        if ft < 3:
            wreads(ft+1, 44 if ft % 2 == 0 else 28)
        e(f"v_mfma_f32_16x16x32_bf16 v[4:7], v[{base}:{base+3}], v[20:23], 0")
        e(f"v_mfma_f32_16x16x32_bf16 v[8:11], v[{base+8}:{base+11}], v[20:23], 0")
        e(f"v_mfma_f32_16x16x32_bf16 v[4:7], v[{base+4}:{base+7}], v[24:27], v[4:7]")
        e(f"v_mfma_f32_16x16x32_bf16 v[8:11], v[{base+12}:{base+15}], v[24:27], v[8:11]")
        nop(8)
        for r in range(4):
            e(f"v_mul_f32 v{4+r}, s40, v{4+r}")
        e("s_cmp_eq_u32 s35, 0")
        e(f"s_cbranch_scc1 K1_T_{ft}")
        for r in range(4):
            e(f"v_cvt_pk_bf16_f32 v{12+r}, v{4+r}, v{8+r}")
        e(f"s_branch K1_st_{ft}")
        lab(f"K1_T_{ft}")
        e("v_cvt_pk_bf16_f32 v16, v4, v5")
        e("v_cvt_pk_bf16_f32 v17, v6, v7")
        e("v_and_b32 v4, 0xffff, v16")
        e("v_lshrrev_b32 v5, 16, v16")
        e("v_and_b32 v6, 0xffff, v17")
        e("v_lshrrev_b32 v7, 16, v17")
        for r in range(4):
            e(f"v_and_b32 v18, 0x7fffffff, v{8+r}")
            e("v_add_u32 v18, 0x8000, v18")
            e(f"v_sub_u32_e64 v18, v18, v{4+r} clamp")
            e(f"v_and_or_b32 v19, v{8+r}, s41, v{4+r}")
            e(f"v_bfi_b32 v{12+r}, s42, v18, v19")
        lab(f"K1_st_{ft}")
        e(f"global_store_dwordx4 v61, v[12:15], s[38:39] offset:{ft*64}{WT()}")
        nop(2)
    stamp(3)
    if STAMPS:
        e("s_waitcnt vmcnt(0)")
        stamp(4)
        stamp(5)
    stamp_store(6, 33, WS_STAMP + 0x100000)
    e("s_or_b32 s37, s28, s33")
    e("s_cmp_lg_u32 s37, 0")
    e("s_cbranch_scc1 K1_done")
    e("v_lshlrev_b32 v2, 2, v1")
    e(f"v_add_u32 v2, {N_NODES*256:#x}, v2")
    e("v_mov_b32 v3, 0x7f00")
    e(f"global_store_dword v2, v3, s[26:27]{WT()}")
    lab("K1_done")
    e("s_endpgm")

ACCN, ACCD = 0, 14336
CNT, MAXC, ZERO, CN = 28672, 28928, 28944, 28960
ZERO_END = 29184
START = 29184
T2L = 29440
GN = 39680
CAPP = 8160
IDX = GN + 2048
ATTR = IDX + 4*CAPP
K2_LDS = ATTR + 8*CAPP
DUMMY = N_NODES * 256
K2_GRID = 256

V_L, V_L4 = 1, 2
V_AI, V_AE, V_ESTR, V_EBASE = 3, 4, 5, 6
V_DB, V_DESC = 7, 8
V_X = 12
V_END, V_A = 14, 15
T = (16, 32, 48)
D = 64
SEL, EO, BE, ONE = 80, 84, 88, 92
DEN, NUM = 96, 98
V_M = 100
V_F = 104
V_LT2 = 106
V_PF = 108
K2_VGPRS = 112
S_T = 28
S_BIN, S_WAVE, S_P32, S_MAX = 37, 38, 39, 40
S_MASK = 44
S_K0, S_NBLK, S_K, S_CUR, S_D, S_DN, S_LOADED = 60, 61, 62, 63, 64, 65, 66
S_MIX, S_ROW, S_TMP, S_TMP2, S_PERM = 67, 68, 69, 70, 71
S_KC = 72

def slot(i, jj): return 16 + 4*(i + 4*jj)
def smask(i, jj): return S_MASK + 2*(i + 4*jj)

def issue_row_loads(tb):
    for v in range(tb, tb+16):
        if "noload" in OPT: e("s_nop 0")
        else: e(f"buffer_load_dword v{v}, v{v}, s[{S_T}:{S_T+3}], 0 offen")

def warm_table():
    if "nopf" in OPT: return
    e("s_lshr_b32 s41, s2, 3")
    e("s_mul_i32 s41, s41, 81920")
    e(f"v_lshl_add_u32 v{V_PF+1}, v0, 6, s41")
    e(f"global_load_dword v{V_PF}, v{V_PF+1}, s[26:27]")
    e(f"s_cmp_ge_u32 s{S_WAVE}, 4")
    e("s_cbranch_scc1 K2_pf_done%d" % len(out))
    tag = "K2_pf_done%d" % (len(out) - 1)
    e(f"v_add_u32 v{V_PF+1}, 0x10000, v{V_PF+1}")
    e(f"global_load_dword v{V_PF}, v{V_PF+1}, s[26:27]")
    lab(tag)

def idx_reads(tb):
    for q in range(4):
        e(f"ds_read_b128 v[{tb+4*q}:{tb+4*q+3}], v{V_AI} offset:{IDX+16*q}")
    e(f"v_add_u32 v{V_AI}, 64, v{V_AI}")

def attr_read():
    e(f"ds_read_b64 v[{EO}:{EO+1}], v{V_AE}")
    e(f"v_add_u32 v{V_AE}, v{V_ESTR}, v{V_AE}")

def node_rows_read(sdesc):
    for g in range(4):
        e(f"s_bfe_u32 s{S_TMP}, s{sdesc}, {(8 << 16) | (8*g):#x}")
        e(f"s_lshl_b32 s{S_TMP}, s{S_TMP}, 6")
        e(f"v_add_u32 v{V_A}, s{S_TMP}, v{V_LT2}")
        e(f"ds_read_b32 v{V_M+g}, v{V_A}")

def node_rows_pack():
    e(f"v_perm_b32 v{BE+2}, v{V_M+1}, v{V_M}, s{S_PERM}")
    e(f"v_perm_b32 v{BE+3}, v{V_M+3}, v{V_M+2}, s{S_PERM}")

def flush(tag):
    e(f"v_add_u32 v{V_A}, s{S_ROW}, v{V_L4}")
    e(f"v_add_f32 v{V_F}, v{DEN}, v{DEN+1}")
    e(f"v_add_f32 v{V_F+1}, v{NUM}, v{NUM+1}")
    e(f"s_cmp_lg_u32 s{S_P32}, 0")
    e(f"s_cbranch_scc1 {tag}_atomic")
    e(f"ds_write_b32 v{V_A}, v{V_F} offset:{ACCD}")
    e(f"ds_write_b32 v{V_A}, v{V_F+1} offset:{ACCN}")
    lab(f"{tag}_flushed")
    ATOMIC_SITES.append(tag)

ATOMIC_SITES = []
def atomic_flushes():
    for tag in ATOMIC_SITES:
        lab(f"{tag}_atomic")
        e(f"ds_add_f32 v{V_A}, v{V_F} offset:{ACCD}")
        e(f"ds_add_f32 v{V_A}, v{V_F+1} offset:{ACCN}")
        e(f"s_branch {tag}_flushed")

def acc_group(tp, g):
    for k in (2*g, 2*g+1):
        e(f"v_pk_add_f32 v[{DEN}:{DEN+1}], v[{DEN}:{DEN+1}], v[{D+2*k}:{D+2*k+1}]")
        e(f"v_pk_fma_f32 v[{NUM}:{NUM+1}], v[{D+2*k}:{D+2*k+1}], v[{tp+2*k}:{tp+2*k+1}], v[{NUM}:{NUM+1}]")

def acc_group_init(tp, g):
    a = 4*g
    e(f"v_pk_add_f32 v[{DEN}:{DEN+1}], v[{D+a}:{D+a+1}], v[{D+a+2}:{D+a+3}]")
    e(f"v_pk_mul_f32 v[{NUM}:{NUM+1}], v[{D+a}:{D+a+1}], v[{tp+a}:{tp+a+1}]")
    e(f"v_pk_fma_f32 v[{NUM}:{NUM+1}], v[{D+a+2}:{D+a+3}], v[{tp+a+2}:{tp+a+3}], v[{NUM}:{NUM+1}]")

def body(P, main):
    tp, tr = T[P], T[(P+2) % 3]
    tag = f"K2_{'m' if main else 't'}{P}"
    lab(tag)
    if "noprio" not in OPT and not main: e("s_setprio 0")
    e("s_waitcnt lgkmcnt(0)")
    if "nomfma" not in OPT: e(f"v_mfma_f32_32x32x16_bf16 v[{D}:{D+15}], v[{EO}:{EO+3}], v[{BE}:{BE+3}], 0")
    e(f"s_add_u32 s{S_K}, s{S_K}, 1")
    if main and "nolds" not in OPT: idx_reads(tr)
    if "nolds" not in OPT: attr_read()
    e(f"v_readlane_b32 s{S_DN}, v{V_DB}, s{S_K}")
    e(f"s_mov_b32 s{S_MIX}, 0")
    e(f"s_cmp_eq_u32 s{S_DN}, s{S_LOADED}")
    if "noreload" not in OPT: e(f"s_cbranch_scc0 {tag}_reload")
    lab(f"{tag}_loaded")
    early = "late" not in OPT
    if main and early:
        e("s_waitcnt lgkmcnt(1)")
        issue_row_loads(tr)
        e("s_waitcnt vmcnt(32)")
    elif main:
        e("s_waitcnt vmcnt(16)")
    else:
        nop(4)
        e("s_waitcnt vmcnt(0)")
    for q in range(4 if "nomfma" not in OPT else 0):
        e(f"v_mfma_f32_16x16x32_bf16 v[{D+4*q}:{D+4*q+3}], v[{SEL}:{SEL+3}], v[{tp+4*q}:{tp+4*q+3}], v[{D+4*q}:{D+4*q+3}]")
    if main and not early:
        e("s_waitcnt lgkmcnt(1)")
        issue_row_loads(tr)
    else:
        nop(8)
    for v in range(16):
        if "novalu" not in OPT: e(f"v_exp_f32 v{D+v}, v{D+v}")
    nop(2)
    if "nomfma" not in OPT: e(f"v_mfma_f32_32x32x16_bf16 v[{D}:{D+15}], v[{ONE}:{ONE+3}], v[{ONE}:{ONE+3}], v[{D}:{D+15}]")
    e(f"s_cmp_lg_u32 s{S_MIX}, 0")
    e(f"s_cbranch_scc1 {tag}_pack")
    lab(f"{tag}_packed")
    e(f"s_and_b32 s{S_TMP}, s{S_D}, 0xff")
    e(f"s_mul_i32 s{S_TMP}, s{S_TMP}, 0x01010101")
    e(f"s_and_b32 s{S_TMP2}, s{S_D}, 0xff")
    e(f"s_xor_b32 s{S_TMP}, s{S_TMP}, s{S_D}")
    e(f"s_xor_b32 s{S_TMP2}, s{S_TMP2}, s{S_CUR}")
    e(f"s_or_b32 s{S_TMP}, s{S_TMP}, s{S_TMP2}")
    nop(4)
    for v in range(16):
        if "novalu" not in OPT: e(f"v_rcp_f32 v{D+v}, v{D+v}")
    if "noslow" not in OPT: e(f"s_cbranch_scc1 {tag}_slow")
    if "novalu" not in OPT:
        for g in range(4): acc_group(tp, g)
    lab(f"{tag}_next")
    e(f"s_mov_b32 s{S_D}, s{S_DN}")
    nP = (P+1) % 3
    if main:
        e(f"s_add_u32 s{S_TMP}, s{S_K}, 2")
        e(f"s_cmp_lt_u32 s{S_TMP}, s{S_NBLK}")
        e(f"s_cbranch_scc0 K2_t{nP}")
        if P == 2:
            if "noprio" not in OPT:
                e(f"s_cmp_lt_u32 s{S_K}, 6")
                e("s_cbranch_scc0 K2_prio1")
                e("s_setprio 2")
                e("s_branch K2_m0")
                lab("K2_prio1")
                e("s_setprio 1")
            e("s_branch K2_m0")
    else:
        e(f"s_cmp_lt_u32 s{S_K}, s{S_NBLK}")
        e("s_cbranch_scc0 K2_range_end")
        if P == 2: e("s_branch K2_t0")

def body_outlined(P, main):
    tp = T[P]
    tag = f"K2_{'m' if main else 't'}{P}"
    lab(f"{tag}_reload")
    node_rows_read(S_DN)
    e(f"s_mov_b32 s{S_LOADED}, s{S_DN}")
    e(f"s_mov_b32 s{S_MIX}, 1")
    e(f"s_branch {tag}_loaded")
    lab(f"{tag}_pack")
    e("s_waitcnt lgkmcnt(0)")
    node_rows_pack()
    e(f"s_branch {tag}_packed")
    lab(f"{tag}_slow")
    for g in range(4):
        e(f"s_bfe_u32 s{S_TMP2}, s{S_D}, {(8 << 16) | (8*g):#x}")
        e(f"s_cmp_eq_u32 s{S_TMP2}, s{S_CUR}")
        e(f"s_cbranch_scc1 {tag}_cont{g}")
        flush(f"{tag}_f{g}")
        e(f"s_mov_b32 s{S_CUR}, s{S_TMP2}")
        e(f"s_lshl_b32 s{S_ROW}, s{S_TMP2}, 6")
        acc_group_init(tp, g)
        e(f"s_branch {tag}_g{g}")
        lab(f"{tag}_cont{g}")
        acc_group(tp, g)
        lab(f"{tag}_g{g}")
    e(f"s_branch {tag}_next")

def gen_k2():
    out.append(f".globl {MAIN}")
    out.append(".p2align 8")
    out.append(f".type {MAIN},@function")
    lab(MAIN)
    e(f"s_cmp_ge_u32 s2, {K2_GRID}")
    e("s_cbranch_scc1 K2_done")
    e("s_and_b32 s3, s2, 7")
    e("s_lshl_b32 s3, s3, 5")
    e(f"s_lshr_b32 s{S_BIN}, s2, 3")
    e(f"s_add_u32 s{S_BIN}, s{S_BIN}, s3")
    stamp(0)
    load_kernargs()
    e(f"s_cmp_ge_u32 s{S_BIN}, {NB}")
    e("s_cbranch_scc1 K2_idle")
    e(f"v_readfirstlane_b32 s{S_WAVE}, v0")
    e(f"v_and_b32 v{V_L}, 63, v0")
    e(f"v_lshlrev_b32 v{V_L4}, 2, v{V_L}")
    e(f"s_lshr_b32 s{S_WAVE}, s{S_WAVE}, 6")
    e(f"v_lshrrev_b32 v64, 4, v{V_L}")
    e(f"s_lshl_b32 s{S_TMP}, s{S_WAVE}, 2")
    e(f"v_add_u32 v64, s{S_TMP}, v64")
    e("v_lshlrev_b32 v64, 2, v64")
    e(f"s_lshl_b32 s41, s{S_BIN}, 2")
    e("v_lshl_add_u32 v65, v64, 10, s41")
    e(f"v_lshlrev_b32 v66, 1, v{V_L}")
    e("s_waitcnt lgkmcnt(0)")
    add64(32, 26, WS_TAB)
    for i in range(4):
        e(f"global_load_dword v{V_DESC+i}, v65, s[32:33] offset:{1024*i}")
    for c in range(4):
        e(f"global_load_ushort v{72+c}, v66, s[16:17] offset:{128*c}")
    add64(34, 26, WS_REC)
    e(f"s_cmp_ge_u32 s{S_WAVE}, 10")
    e("s_cbranch_scc1 K2_no_t2")
    e(f"s_mul_i32 s41, s{S_BIN}, 10240")
    e("v_lshl_add_u32 v66, v0, 4, s41")
    add64(42, 26, WS_T2)
    e("global_load_dwordx4 v[68:71], v66, s[42:43]")
    e(f"s_mul_i32 s41, s{S_BIN}, 5120")
    e("v_lshl_add_u32 v66, v0, 3, s41")
    e(f"global_load_dwordx2 v[{V_X}:{V_X+1}], v66, s[4:5]")
    lab("K2_no_t2")
    e(f"s_mov_b32 s{S_T}, s26")
    e(f"s_and_b32 s{S_T+1}, s27, 0xffff")
    e(f"s_or_b32 s{S_T+1}, s{S_T+1}, 0x40000")
    e(f"s_mov_b32 s{S_T+2}, {(N_NODES+1)*256}")
    e(f"s_mov_b32 s{S_T+3}, 0x00800000")
    for r in range(76, 80):
        e(f"v_mov_b32 v{r}, 0")
    e("v_lshlrev_b32 v67, 4, v0")
    e("ds_write_b128 v67, v[76:79]")
    e(f"v_cmp_gt_u32 vcc, {(ZERO_END-16384)//16}, v0")
    e("s_mov_b64 exec, vcc")
    e("ds_write_b128 v67, v[76:79] offset:16384")
    e("s_mov_b64 exec, -1")
    e(f"v_and_b32 v16, 31, v{V_L}")
    e(f"v_lshrrev_b32 v17, 5, v{V_L}")
    e("v_bfe_u32 v18, v16, 2, 1")
    e("v_lshrrev_b32 v19, 3, v16")
    e("v_and_b32 v16, 3, v16")
    e("v_lshl_add_u32 v16, v19, 2, v16")
    e("v_cmp_eq_u32 vcc, v17, v18")
    e("v_mov_b32 v20, 0x80")
    e("v_lshlrev_b32 v16, 3, v16")
    e(f"v_cndmask_b32 v{V_ESTR}, 0, v20, vcc")
    e(f"v_add_u32 v16, {ATTR}, v16")
    e(f"v_mov_b32 v20, {ZERO}")
    e(f"v_cndmask_b32 v{V_EBASE}, v20, v16, vcc")
    e("v_and_b32 v21, 1, v19")
    e("v_lshlrev_b32 v21, 4, v21")
    e("v_mov_b32 v22, 0x3f80")
    e("v_lshlrev_b32 v21, v21, v22")
    e("v_cndmask_b32 v21, 0, v21, vcc")
    e("v_cmp_gt_u32 vcc, 2, v19")
    e(f"v_mov_b32 v{ONE+1}, 0")
    e(f"v_mov_b32 v{ONE+2}, 0")
    e(f"v_cndmask_b32 v{EO+2}, 0, v21, vcc")
    e(f"v_sub_u32 v{EO+3}, v21, v{EO+2}")
    e(f"v_cmp_gt_u32 vcc, 32, v{V_L}")
    e(f"v_mov_b32 v{ONE+3}, 0")
    e(f"v_add_u32 v{V_LT2}, {T2L}, v{V_L4}")
    e(f"v_cndmask_b32 v{ONE}, 0, v22, vcc")
    e(f"v_bfe_u32 v16, v{V_L}, 2, 2")
    e(f"v_lshrrev_b32 v17, 4, v{V_L}")
    e(f"v_and_b32 v18, 3, v{V_L}")
    e("v_cmp_eq_u32 vcc, v16, v17")
    e("v_mov_b32 v19, 31")
    e(f"s_mov_b32 s{S_PERM}, 0x05040100")
    e("v_cndmask_b32 v18, v19, v18, vcc")
    e("v_lshlrev_b32 v18, v18, 1")
    for k in range(4):
        e(f"v_bfe_u32 v{SEL+k}, v18, {k}, 1")
    for k in range(4):
        e(f"v_mul_u32_u24 v{SEL+k}, v22, v{SEL+k}")
    for i in range(4):
        e(f"s_mov_b32 s{S_KC+i}, {i*REC_STRIDE}")
    e(f"s_mov_b32 s{S_P32}, 0")
    e("s_waitcnt vmcnt(4)")
    stamp(1)
    for i in range(4):
        e(f"v_add_u32 v{16+i}, {i}, v64")
    e(f"s_movk_i32 s41, {NB}")
    for i in range(4):
        e(f"v_cmp_gt_u32 s[{S_MASK+2*i}:{S_MASK+2*i+1}], s41, v{16+i}")
    nop(1)
    for i in range(4):
        e(f"v_cndmask_b32 v{V_DESC+i}, 0, v{V_DESC+i}, s[{S_MASK+2*i}:{S_MASK+2*i+1}]")

    def slot_loads(jj):
        vj = 76 + jj
        for i in range(4):
            r, m = slot(i, jj), smask(i, jj)
            e(f"v_lshrrev_b32 v79, 16, v{V_DESC+i}")
            e(f"v_cmp_gt_u32 s[{m}:{m+1}], v79, v{vj}")
            e(f"v_and_b32 v79, 0xffff, v{V_DESC+i}")
            e(f"v_add3_u32 v79, v79, v{vj}, v78")
            e(f"v_mad_u32_u24 v79, v79, 12, s{S_KC+i}")
            e(f"s_mov_b64 exec, s[{m}:{m+1}]")
            e(f"global_load_dwordx3 v[{r}:{r+2}], v79, s[34:35]")
            e("s_mov_b64 exec, -1")
    def pass_addr():
        e(f"v_lshrrev_b32 v78, 4, v{V_L}")
        e(f"s_lshl_b32 s{S_TMP}, s{S_WAVE}, 2")
        e(f"v_add_u32 v78, s{S_TMP}, v78")
        e(f"v_mul_u32_u24 v78, {4*EPC}, v78")
        e(f"v_and_b32 v76, 15, v{V_L}")
        e(f"v_add_u32 v76, s{S_P32}, v76")
        e("v_add_u32 v77, 16, v76")
    lab("K2_pass")
    pass_addr()
    slot_loads(0)
    for i in range(4):
        e(f"s_mov_b64 s[{smask(i,1)}:{smask(i,1)+1}], 0")
    e(f"v_lshrrev_b32 v79, 16, v{V_DESC}")
    e(f"v_lshrrev_b32 v{V_A}, 16, v{V_DESC+1}")
    e(f"v_max_u32 v79, v79, v{V_A}")
    e(f"v_lshrrev_b32 v{V_A}, 16, v{V_DESC+2}")
    e(f"v_max_u32 v79, v79, v{V_A}")
    e(f"v_lshrrev_b32 v{V_A}, 16, v{V_DESC+3}")
    e(f"v_max_u32 v{V_DB}, v79, v{V_A}")
    e(f"v_cmp_gt_u32 vcc, v{V_DB}, v77")
    e(f"s_mov_b32 s{S_MIX}, 0")
    e("s_cbranch_vccz K2_no_second")
    slot_loads(1)
    e(f"s_mov_b32 s{S_MIX}, 1")
    lab("K2_no_second")
    e(f"s_cmp_lg_u32 s{S_P32}, 0")
    e("s_cbranch_scc1 K2_tables_done")
    e("s_waitcnt vmcnt(4)")
    warm_table()
    e(f"s_cmp_ge_u32 s{S_WAVE}, 10")
    e("s_cbranch_scc1 K2_no_t2w")
    e(f"ds_write_b128 v67, v[68:71] offset:{T2L}")
    lab("K2_no_t2w")
    e(f"s_mov_b32 s{S_TMP}, {NEG_L2E:#x}")
    for c in range(4):
        e(f"v_lshlrev_b32 v{72+c}, 16, v{72+c}")
    for c in range(4):
        e(f"v_mul_f32 v{72+c}, s{S_TMP}, v{72+c}")
    e(f"v_cvt_pk_bf16_f32 v{BE}, v72, v73")
    e(f"v_cvt_pk_bf16_f32 v{BE+1}, v74, v75")
    e("s_waitcnt lgkmcnt(0)")
    e("s_barrier")
    e(f"v_cmp_lt_u32 vcc, 32, v{V_DB}")
    e("s_cbranch_vccz K2_tables_done")
    e(f"v_mov_b32 v79, {MAXC}")
    e(f"ds_max_u32 v79, v{V_DB}")
    lab("K2_tables_done")

    def for_slots(fn, name):
        for i in range(4):
            m = smask(i, 0)
            e(f"s_mov_b64 exec, s[{m}:{m+1}]")
            fn(i, 0, slot(i, 0))
        e("s_mov_b64 exec, -1")
        e(f"s_cmp_eq_u32 s{S_MIX}, 0")
        e(f"s_cbranch_scc1 K2_{name}_skip")
        for i in range(4):
            m = smask(i, 1)
            e(f"s_mov_b64 exec, s[{m}:{m+1}]")
            fn(i, 1, slot(i, 1))
        e("s_mov_b64 exec, -1")
        lab(f"K2_{name}_skip")
    e("v_mov_b32 v78, 1")
    if "nopf" in OPT:
        e("s_waitcnt vmcnt(0)")
    else:
        e(f"s_cmp_lg_u32 s{S_P32}, 0")
        e("s_cbranch_scc1 K2_wait_all")
        e(f"s_cmp_lt_u32 s{S_WAVE}, 4")
        e("s_cbranch_scc1 K2_wait_two")
        e("s_waitcnt vmcnt(1)")
        e("s_branch K2_waited")
        lab("K2_wait_two")
        e("s_waitcnt vmcnt(2)")
        e("s_branch K2_waited")
        lab("K2_wait_all")
        e("s_waitcnt vmcnt(0)")
        lab("K2_waited")
    stamp(2)
    def cnt_fn(i, jj, r):
        t = D + i + 4*jj
        e(f"v_lshrrev_b32 v{t}, 24, v{r+2}")
        e(f"ds_add_rtn_u32 v{r+3}, v{t}, v78 offset:{CNT}")
    for_slots(cnt_fn, "cnt")
    e("s_waitcnt lgkmcnt(0)")
    e("s_barrier")
    stamp(3)
    e(f"ds_read_b32 v76, v{V_L4} offset:{CNT}")
    e(f"v_mov_b32 v79, {MAXC}")
    e("ds_read_b32 v79, v79")
    e("s_waitcnt lgkmcnt(0)")
    e(f"v_readfirstlane_b32 s{S_MAX}, v79")
    e("v_add_u32 v77, 3, v76")
    e("v_and_b32 v77, -4, v77")
    e(f"v_mov_b32 v{V_END}, v77")
    dpp_scan(V_END)
    e(f"v_sub_u32 v75, v{V_END}, v77")
    e(f"ds_write_b32 v{V_L4}, v75 offset:{START}")
    def st_fn(i, jj, r):
        t = D + i + 4*jj
        e(f"ds_read_b32 v{T[2]+i+4*jj}, v{t} offset:{START}")
    for_slots(st_fn, "st")
    e(f"v_readlane_b32 s{S_NBLK}, v{V_END}, 63")
    e(f"s_cmp_lg_u32 s{S_WAVE}, 15")
    e("s_cbranch_scc1 K2_nopad")
    e("v_add_u32 v75, v75, v76")
    e(f"v_mov_b32 v74, {DUMMY:#x}")
    e("v_mov_b32 v72, 0")
    e("v_mov_b32 v73, 0")
    def pad_write(cond_hi):
        e(f"v_cmp_lt_u32 vcc, v75, {cond_hi}")
        e("v_lshlrev_b32 v79, 2, v75")
        e("v_lshlrev_b32 v78, 3, v75")
        e(f"v_add_u32 v78, {ATTR}, v78")
        e("s_mov_b64 exec, vcc")
        e(f"ds_write_b32 v79, v74 offset:{IDX}")
        e("ds_write_b64 v78, v[72:73]")
        e("s_mov_b64 exec, -1")
    for k in range(3):
        pad_write(f"v{V_END}")
        e("v_add_u32 v75, 1, v75")
    e(f"s_add_u32 s{S_TMP}, s{S_NBLK}, 15")
    e(f"s_and_b32 s{S_TMP}, s{S_TMP}, -16")
    e(f"v_mov_b32 v77, s{S_TMP}")
    e(f"v_add_u32 v75, s{S_NBLK}, v{V_L}")
    pad_write("v77")
    e("v_lshrrev_b32 v75, 2, v75")
    e("v_mov_b32 v74, 160")
    e("s_mov_b64 exec, vcc")
    e(f"ds_write_b8 v75, v74 offset:{GN}")
    e("s_mov_b64 exec, -1")
    lab("K2_nopad")
    e("s_waitcnt lgkmcnt(0)")
    e(f"s_mov_b32 s{S_TMP2}, {ATTR}")
    def sc_fn(i, jj, r):
        t = D + i + 4*jj
        p = T[2] + i + 4*jj
        e(f"v_add_u32 v{p}, v{p}, v{r+3}")
        e(f"v_and_b32 v{r+2}, 0xffffff, v{r+2}")
        e(f"v_lshl_add_u32 v{r+3}, v{p}, 3, s{S_TMP2}")
        e(f"ds_write_b64 v{r+3}, v[{r}:{r+1}]")
        e(f"v_lshrrev_b32 v{r+3}, 2, v{p}")
        e(f"v_lshlrev_b32 v{p}, 2, v{p}")
        e(f"ds_write_b32 v{p}, v{r+2} offset:{IDX}")
        e(f"ds_write_b8 v{r+3}, v{t} offset:{GN}")
    for_slots(sc_fn, "sc")
    e("s_waitcnt lgkmcnt(0)")
    e("s_barrier")
    stamp(4)
    e(f"s_add_u32 s{S_TMP}, s{S_NBLK}, 15")
    e(f"s_lshr_b32 s{S_TMP}, s{S_TMP}, 4")
    e(f"s_mul_i32 s{S_K0}, s{S_TMP}, s{S_WAVE}")
    e(f"s_add_u32 s{S_NBLK}, s{S_K0}, s{S_TMP}")
    e(f"s_lshr_b32 s{S_K0}, s{S_K0}, 4")
    e(f"s_lshr_b32 s{S_NBLK}, s{S_NBLK}, 4")
    e(f"s_sub_u32 s{S_NBLK}, s{S_NBLK}, s{S_K0}")
    e(f"s_cmp_eq_u32 s{S_NBLK}, 0")
    e("s_cbranch_scc1 K2_empty_range")
    e(f"v_add_u32 v{V_A}, s{S_K0}, v{V_L}")
    e(f"v_lshlrev_b32 v{V_A}, 2, v{V_A}")
    e(f"ds_read_b32 v{V_DB}, v{V_A} offset:{GN}")
    e(f"ds_read_b32 v{V_F}, v{V_A} offset:{GN-4}")
    e(f"s_lshl_b32 s{S_TMP}, s{S_K0}, 6")
    e(f"v_mov_b32 v{V_AI}, s{S_TMP}")
    e(f"v_mad_u32_u24 v{V_AE}, v{V_ESTR}, s{S_K0}, v{V_EBASE}")
    idx_reads(T[0])
    idx_reads(T[1])
    attr_read()
    for r in (DEN, DEN+1, NUM, NUM+1):
        e(f"v_mov_b32 v{r}, 0")
    e("s_waitcnt lgkmcnt(0)")
    e(f"v_readlane_b32 s{S_D}, v{V_DB}, 0")
    issue_row_loads(T[0])
    node_rows_read(S_D)
    e(f"s_mov_b32 s{S_LOADED}, s{S_D}")
    e(f"s_and_b32 s{S_CUR}, s{S_D}, 0xff")
    e(f"s_lshl_b32 s{S_ROW}, s{S_CUR}, 6")
    e(f"s_cmp_lg_u32 s{S_P32}, 0")
    e("s_cbranch_scc1 K2_carry_done")
    e(f"v_readlane_b32 s{S_TMP2}, v{V_F}, 0")
    e(f"s_add_u32 s{S_MIX}, s{S_WAVE}, 40")
    e(f"s_lshl_b32 s{S_MIX}, s{S_MIX}, 8")
    e(f"s_lshr_b32 s{S_TMP2}, s{S_TMP2}, 24")
    e(f"s_cmp_eq_u32 s{S_K0}, 0")
    e(f"s_cselect_b32 s{S_TMP2}, 0x100, s{S_TMP2}")
    e(f"s_cmp_eq_u32 s{S_TMP2}, s{S_CUR}")
    e(f"s_cselect_b32 s{S_ROW}, s{S_MIX}, s{S_ROW}")
    e(f"s_cselect_b32 s{S_TMP2}, s{S_CUR}, 0xff")
    e(f"s_lshl_b32 s{S_TMP}, s{S_WAVE}, 2")
    e(f"v_mov_b32 v{V_A}, s{S_TMP}")
    e(f"v_mov_b32 v{V_F}, s{S_TMP2}")
    e(f"ds_write_b32 v{V_A}, v{V_F} offset:{CN}")
    lab("K2_carry_done")
    e(f"s_mov_b32 s{S_K}, 0")
    e(f"s_cmp_lt_u32 s{S_NBLK}, 2")
    e("s_cbranch_scc1 K2_one_block")
    issue_row_loads(T[1])
    lab("K2_one_block")
    e("s_waitcnt lgkmcnt(0)")
    node_rows_pack()
    if "noprio" not in OPT: e("s_setprio 3")
    e(f"s_cmp_gt_u32 s{S_NBLK}, 2")
    e("s_cbranch_scc0 K2_t0")
    for P in range(3): body(P, True)
    for P in range(3): body(P, False)
    for P in range(3): body_outlined(P, True)
    for P in range(3): body_outlined(P, False)
    atomic_flushes()
    lab("K2_range_end")
    ATOMIC_SITES.clear()
    flush("K2_last")
    e("s_branch K2_main_done")
    lab("K2_empty_range")
    e(f"s_cmp_lg_u32 s{S_P32}, 0")
    e("s_cbranch_scc1 K2_main_done")
    e(f"s_lshl_b32 s{S_TMP}, s{S_WAVE}, 2")
    e(f"v_mov_b32 v{V_A}, s{S_TMP}")
    e(f"v_mov_b32 v{V_F}, 0xff")
    e(f"ds_write_b32 v{V_A}, v{V_F} offset:{CN}")
    lab("K2_main_done")
    if "noprio" not in OPT: e("s_setprio 0")
    stamp(5)
    e(f"s_add_u32 s{S_P32}, s{S_P32}, 32")
    e(f"s_cmp_ge_u32 s{S_P32}, s{S_MAX}")
    e("s_cbranch_scc1 K2_final")
    e(f"s_cmp_lg_u32 s{S_WAVE}, 0")
    e("s_cbranch_scc1 K2_nozc")
    e("v_mov_b32 v76, 0")
    e(f"ds_write_b32 v{V_L4}, v76 offset:{CNT}")
    lab("K2_nozc")
    e("s_waitcnt lgkmcnt(0)")
    e("s_barrier")
    e("s_branch K2_pass")
    lab("K2_final")
    e("s_waitcnt lgkmcnt(0)")
    e("s_barrier")
    stamp(6)
    e(f"s_cmp_ge_u32 s{S_WAVE}, 10")
    e("s_cbranch_scc1 K2_end")
    e("v_lshlrev_b32 v67, 4, v0")
    e(f"ds_read_b128 v[16:19], v67 offset:{ACCN}")
    e(f"ds_read_b128 v[20:23], v67 offset:{ACCD}")
    e(f"ds_read_b128 v[24:27], v67 offset:{T2L}")
    e(f"v_and_b32 v30, 15, v{V_L}")
    e("v_lshlrev_b32 v31, 2, v30")
    e(f"ds_read_b32 v31, v31 offset:{CN}")
    e(f"s_mul_i32 s41, s{S_BIN}, 5120")
    e("v_lshl_add_u32 v66, v0, 3, s41")
    e("s_mov_b32 s42, 0x358637bd")
    e("v_lshrrev_b32 v32, 4, v0")
    e("v_lshlrev_b32 v32, 2, v32")
    e("v_lshlrev_b32 v33, 4, v30")
    e("s_waitcnt lgkmcnt(0)")
    e("v_lshrrev_b32 v34, 4, v31")
    e(f"v_cmp_eq_u32 vcc, s{S_WAVE}, v34")
    e("s_and_b32 s44, vcc_lo, 0xffff")
    lab("K2_merge")
    e("s_cmp_eq_u32 s44, 0")
    e("s_cbranch_scc1 K2_merged")
    e("s_ff1_i32_b32 s45, s44")
    e("s_bitset0_b32 s44, s45")
    e("v_readlane_b32 s46, v31, s45")
    e("s_add_u32 s45, s45, 40")
    e("s_lshl_b32 s45, s45, 8")
    e("v_add_u32 v35, s45, v33")
    e(f"ds_read_b128 v[36:39], v35 offset:{ACCN}")
    e(f"ds_read_b128 v[40:43], v35 offset:{ACCD}")
    e("v_cmp_eq_u32 vcc, s46, v32")
    e("s_waitcnt lgkmcnt(0)")
    e("s_mov_b64 exec, vcc")
    for r in range(4):
        e(f"v_add_f32 v{16+r}, v{16+r}, v{36+r}")
        e(f"v_add_f32 v{20+r}, v{20+r}, v{40+r}")
    e("s_mov_b64 exec, -1")
    e("s_branch K2_merge")
    lab("K2_merged")
    for r in range(4):
        e(f"v_add_f32 v{20+r}, s42, v{20+r}")
    for r in range(4):
        e(f"v_rcp_f32 v{20+r}, v{20+r}")
    for r in range(4):
        e(f"v_and_b32 v{24+r}, 0xffff0000, v{24+r}")
    for r in range(4):
        e(f"v_fma_f32 v{16+r}, v{16+r}, v{20+r}, v{24+r}")
    for r in range(4):
        e(f"v_mul_f32 v{20+r}, 0, v{16+r}")
    for r in range(4):
        e(f"v_cmp_lt_f32 vcc, 0, v{16+r}")
        nop(2)
        e(f"v_cndmask_b32 v{16+r}, v{20+r}, v{16+r}, vcc")
    e(f"v_lshlrev_b32 v24, 16, v{V_X}")
    e(f"v_and_b32 v25, 0xffff0000, v{V_X}")
    e(f"v_lshlrev_b32 v26, 16, v{V_X+1}")
    e(f"v_and_b32 v27, 0xffff0000, v{V_X+1}")
    for r in range(4):
        e(f"v_add_f32 v{16+r}, v{16+r}, v{24+r}")
    e("v_cvt_pk_bf16_f32 v28, v16, v17")
    e("v_cvt_pk_bf16_f32 v29, v18, v19")
    e("global_store_dwordx2 v66, v[28:29], s[22:23]")
    lab("K2_end")
    stamp(7)
    stamp_store(8, S_WAVE, WS_STAMP, S_BIN)
    lab("K2_done")
    e("s_endpgm")
    lab("K2_idle")
    e(f"v_readfirstlane_b32 s{S_WAVE}, v0")
    e("s_waitcnt lgkmcnt(0)")
    e(f"s_lshr_b32 s{S_WAVE}, s{S_WAVE}, 6")
    warm_table()
    e("s_endpgm")
    atomic_flushes()

def kd(name, vgpr, sgpr):
    out.append(".p2align 6")
    out.append(f".amdhsa_kernel {name}")
    out.append(f"  .amdhsa_next_free_vgpr {vgpr}")
    out.append(f"  .amdhsa_next_free_sgpr {sgpr}")
    out.append(f"  .amdhsa_accum_offset {(vgpr+3)//4*4}")
    out.append("  .amdhsa_group_segment_fixed_size 0")
    out.append("  .amdhsa_kernarg_size 96")
    out.append("  .amdhsa_user_sgpr_count 2")
    out.append("  .amdhsa_user_sgpr_kernarg_segment_ptr 1")
    out.append("  .amdhsa_system_sgpr_workgroup_id_x 1")
    out.append(".end_amdhsa_kernel")

HEADER = f"""; Kernarg layout (96 bytes, ptrs only, base s[0:1]):
; @launch kernel={PREP} grid=(375,1,1) block=(640,1,1) lds={K1_LDS}
; @launch kernel={MAIN} grid=({K2_GRID},1,1) block=(1024,1,1) lds={K2_LDS}
.amdgcn_target "amdgcn-amd-amdhsa--gfx950"
.text"""

def main():
    global STAMPS
    if "--stamps" in sys.argv:
        STAMPS = True
        sys.argv.remove("--stamps")
    for a in list(sys.argv):
        if a.startswith("--opt="):
            OPT.update(a[6:].split(","))
            sys.argv.remove(a)
    out.append(HEADER)
    gen_k1()
    gen_k2()
    out.append('.section .rodata,"a"')
    kd(PREP, 64, 102 if STAMPS else 48)
    kd(MAIN, K2_VGPRS, 102 if STAMPS else 80)
    path = sys.argv[1] if len(sys.argv) > 1 else "standalone__edge_featured_mpnn_gatedgcn__graph.s"
    open(path, "w").write("\n".join(out) + "\n")
    print("wrote", path, len(out), "lines")

if __name__ == "__main__":
    main()
```

```python
import sys

MAIN = "standalone__edge_featured_mpnn_gatedgcn__graph_kernel"
PREP = "gcn_prep_kernel"

N_NODES = 10000
NB = 250
EPC = 2560
NPB = 40
WS_T = 0
WS_T2 = 0x280000
WS_TAB = 0x500000
WS_REC = 0x580000
REC_STRIDE = EPC * 12
NEG_L2E = 0xBFB8AA3B

out = []
def e(s): out.append("    " + s)
def lab(s): out.append(s + ":")
def cmt(s): out.append("    ; " + s)
def nop(n):
    while n > 0:
        k = min(n, 16)
        e(f"s_nop {k-1}")
        n -= k

STAMPS = False
OPT = set()
WS_STAMP = 0x2000000
def stamp(k):
    if STAMPS and not ("segs" in OPT and k >= 2):
        e(f"{'s_memrealtime' if 'rt' in OPT else 's_memtime'} s[{80+2*k}:{81+2*k}]")
def seg(k):
    if "segs" in OPT:
        e("s_memtime s[98:99]")
        e("s_waitcnt lgkmcnt(0)")
        e("s_sub_u32 s100, s98, s79")
        e(f"s_add_u32 s{84+k}, s{84+k}, s100")
        e("s_mov_b32 s79, s98")
def stamp_store(nst, wave_sreg, base_off, wg_sreg=2):
    if not STAMPS: return
    e("s_waitcnt vmcnt(0) lgkmcnt(0)")
    e("s_mov_b64 exec, 1")
    e(f"s_lshl_b32 s98, s{wg_sreg}, 4")
    e(f"s_add_u32 s98, s98, s{wave_sreg}")
    e(f"s_lshl_b32 s98, s98, 7")
    e(f"s_add_u32 s98, s98, {base_off:#x}")
    e("s_add_u32 s96, s26, s98")
    e("s_addc_u32 s97, s27, 0")
    e("v_mov_b32 v0, 0")
    for k in range(nst):
        e(f"v_mov_b32 v2, s{80+2*k}")
        e(f"v_mov_b32 v3, s{81+2*k}")
        e(f"global_store_dwordx2 v0, v[2:3], s[96:97] offset:{8*k}")
        e("s_nop 1")
    e("s_waitcnt vmcnt(0)")
    e("s_mov_b64 exec, -1")

def dpp_scan(v):
    for ctl in ("row_shr:1 row_mask:0xf bank_mask:0xf", "row_shr:2 row_mask:0xf bank_mask:0xf",
                "row_shr:4 row_mask:0xf bank_mask:0xf", "row_shr:8 row_mask:0xf bank_mask:0xf",
                "row_bcast:15 row_mask:0xa bank_mask:0xf", "row_bcast:31 row_mask:0xc bank_mask:0xf"):
        nop(2)
        e(f"v_add_u32_dpp v{v}, v{v}, v{v} {ctl}")

def load_kernargs():
    e("s_load_dwordx16 s[4:19], s[0:1], 0")
    e("s_load_dwordx8 s[20:27], s[0:1], 64")

def add64(d, s, imm):
    e(f"s_add_u32 s{d}, s{s}, {imm:#x}")
    e(f"s_addc_u32 s{d+1}, s{s+1}, 0")

K1_STG, K1_HIST, K1_OFF = 0, 30720, 33280
K1_LDS = 36864
W_PITCH = 144
W_MAT = 64 * W_PITCH

def WT():
    for o in OPT:
        if o.startswith("wt="): return " " + o[3:].replace("+", " ") if o[3:] != "none" else ""
    return " sc1"

def gen_k1():
    out.append(f".globl {PREP}")
    out.append(".p2align 8")
    out.append(f".type {PREP},@function")
    lab(PREP)
    e("s_cmp_ge_u32 s2, 375")
    e("s_cbranch_scc1 K1_done")
    stamp(0)
    load_kernargs()
    e("s_cmp_ge_u32 s2, 250")
    e("s_cbranch_scc1 K1_tables")
    e("s_mul_i32 s28, s2, 10240")
    e("v_lshl_add_u32 v1, v0, 4, s28")
    e("s_lshl_b32 s29, s28, 1")
    e("v_lshl_add_u32 v2, v0, 5, s29")
    e("v_lshlrev_b32 v3, 2, v0")
    e("v_mov_b32 v20, 0")
    e(f"ds_write_b32 v3, v20 offset:{K1_HIST}")
    e("s_waitcnt lgkmcnt(0)")
    ldf = " nt" if "ntld" in OPT else ""
    e(f"global_load_dwordx4 v[4:7], v1, s[10:11]{ldf}")
    e(f"global_load_dwordx4 v[8:11], v1, s[8:9]{ldf}")
    e(f"global_load_dwordx4 v[12:15], v2, s[6:7]{ldf}")
    e(f"global_load_dwordx4 v[16:19], v2, s[6:7] offset:16{ldf}")
    e("s_mov_b32 s30, 52429")
    e("s_movk_i32 s31, -40")
    e("v_mov_b32 v60, 1")
    e("v_readfirstlane_b32 s33, v0")
    e("s_barrier")
    e("s_lshr_b32 s33, s33, 6")
    e("s_waitcnt vmcnt(3)")
    stamp(1)
    for i in range(4):
        e(f"v_mul_u32_u24 v{20+i}, s30, v{4+i}")
    for i in range(4):
        e(f"v_lshrrev_b32 v{20+i}, 21, v{20+i}")
    for i in range(4):
        e(f"v_mad_i32_i24 v{28+i}, v{20+i}, s31, v{4+i}")
    for i in range(4):
        e(f"v_lshlrev_b32 v{20+i}, 2, v{20+i}")
    for i in range(4):
        e(f"ds_add_rtn_u32 v{24+i}, v{20+i}, v60 offset:{K1_HIST}")
    e("s_waitcnt vmcnt(2)")
    for i in range(4):
        e(f"v_lshlrev_b32 v{8+i}, 8, v{8+i}")
    for i in range(4):
        e(f"v_lshl_or_b32 v{28+i}, v{28+i}, 26, v{8+i}")
    e("v_and_b32 v32, 63, v0")
    e("v_lshlrev_b32 v32, 4, v32")
    e("s_waitcnt lgkmcnt(0)")
    e("s_barrier")
    stamp(2)
    e(f"ds_read_b128 v[36:39], v32 offset:{K1_HIST}")
    e("s_waitcnt lgkmcnt(0)")
    e("v_add_u32 v40, v36, v37")
    e("v_add_u32 v41, v40, v38")
    e("v_add_u32 v42, v41, v39")
    e("v_mov_b32 v43, v42")
    dpp_scan(43)
    e("v_sub_u32 v44, v43, v42")
    e("v_add_u32 v45, v44, v36")
    e("v_add_u32 v46, v44, v40")
    e("v_add_u32 v47, v44, v41")
    e(f"ds_write_b128 v32, v[44:47] offset:{K1_OFF}")
    for i in range(4):
        e(f"ds_read_b32 v{52+i}, v{20+i} offset:{K1_OFF}")
    e("s_cmp_lg_u32 s33, 0")
    e("s_cbranch_scc1 K1_notab")
    for k in range(4):
        e(f"v_lshl_or_b32 v{48+k}, v{36+k}, 16, v{44+k}")
    e("s_lshl_b32 s34, s2, 10")
    e("v_add_u32 v33, s34, v32")
    add64(36, 26, WS_TAB)
    e(f"global_store_dwordx4 v33, v[48:51], s[36:37]{WT()}")
    lab("K1_notab")
    e("s_waitcnt lgkmcnt(0)")
    for i in range(4):
        e(f"v_add_u32 v{52+i}, v{52+i}, v{24+i}")
    for i in range(4):
        e(f"v_mul_u32_u24 v{52+i}, 12, v{52+i}")
    e("s_waitcnt vmcnt(0)")
    for i in range(4):
        e(f"ds_write2_b32 v{52+i}, v{12+2*i}, v{13+2*i} offset0:0 offset1:1")
        e(f"ds_write_b32 v{52+i}, v{28+i} offset:8")
    e("s_mul_i32 s34, s2, %d" % REC_STRIDE)
    add64(38, 26, WS_REC)
    e("s_add_u32 s38, s38, s34")
    e("s_addc_u32 s39, s39, 0")
    add64(40, 38, 10240)
    add64(42, 38, 20480)
    e("v_lshlrev_b32 v3, 4, v0")
    e("s_waitcnt lgkmcnt(0)")
    e("s_barrier")
    stamp(3)
    e("ds_read_b128 v[4:7], v3")
    e("ds_read_b128 v[8:11], v3 offset:10240")
    e("ds_read_b128 v[12:15], v3 offset:20480")
    e("s_waitcnt lgkmcnt(2)")
    e(f"global_store_dwordx4 v3, v[4:7], s[38:39]{WT()}")
    e("s_waitcnt lgkmcnt(1)")
    e(f"global_store_dwordx4 v3, v[8:11], s[40:41]{WT()}")
    e("s_waitcnt lgkmcnt(0)")
    e(f"global_store_dwordx4 v3, v[12:15], s[42:43]{WT()}")
    stamp(4)
    if STAMPS:
        e("s_waitcnt vmcnt(0)")
        stamp(5)
    stamp_store(6, 33, WS_STAMP + 0x100000)
    e("s_endpgm")
    lab("K1_tables")
    e("s_sub_u32 s28, s2, 250")
    e("v_readfirstlane_b32 s33, v0")
    e("v_and_b32 v1, 63, v0")
    e("s_lshr_b32 s33, s33, 6")
    e("s_lshr_b32 s34, s33, 1")
    e("s_and_b32 s35, s33, 1")
    e("s_mul_i32 s36, s28, 80")
    e("s_lshl_b32 s37, s34, 4")
    e("s_add_u32 s36, s36, s37")
    e("v_and_b32 v2, 15, v1")
    e("v_lshrrev_b32 v3, 4, v1")
    e("v_add_u32 v60, s36, v2")
    e("v_lshlrev_b32 v61, 7, v60")
    e("v_lshl_add_u32 v61, v3, 4, v61")
    e("s_waitcnt lgkmcnt(0)")
    e("global_load_dwordx4 v[20:23], v61, s[4:5]")
    e("global_load_dwordx4 v[24:27], v61, s[4:5] offset:64")
    e("s_cmp_ge_u32 s33, 8")
    e("s_cbranch_scc1 K1_nostage")
    e("v_lshlrev_b32 v62, 4, v0")
    e("global_load_dwordx4 v[4:7], v62, s[14:15]")
    e("global_load_dwordx4 v[8:11], v62, s[20:21]")
    e("global_load_dwordx4 v[12:15], v62, s[12:13]")
    e("global_load_dwordx4 v[16:19], v62, s[18:19]")
    e("v_lshrrev_b32 v62, 3, v0")
    e(f"v_mul_u32_u24 v62, {W_PITCH}, v62")
    e("v_and_b32 v63, 7, v0")
    e("v_lshl_add_u32 v62, v63, 4, v62")
    e("s_waitcnt vmcnt(0)")
    for m in range(4):
        e(f"ds_write_b128 v62, v[{4+4*m}:{7+4*m}] offset:{m*W_MAT}")
    lab("K1_nostage")
    e("v_lshrrev_b32 v62, 2, v2")
    e("v_lshl_add_u32 v62, v3, 3, v62")
    e(f"v_mul_u32_u24 v62, {W_PITCH}, v62")
    e("v_and_b32 v63, 3, v2")
    e("v_lshl_add_u32 v62, v63, 3, v62")
    e(f"s_mul_i32 s37, s35, {2*W_MAT}")
    e("v_add_u32 v62, s37, v62")
    e("v_lshlrev_b32 v61, 8, v60")
    e("v_lshl_add_u32 v61, v3, 4, v61")
    e(f"s_mul_i32 s37, s35, {WS_T2}")
    e("s_add_u32 s38, s26, s37")
    e("s_addc_u32 s39, s27, 0")
    e(f"s_mov_b32 s40, {NEG_L2E:#x}")
    e("s_brev_b32 s41, 1")
    e("s_mov_b32 s42, 0x7fff0000")
    e("s_waitcnt vmcnt(0) lgkmcnt(0)")
    stamp(1)
    e("s_barrier")
    stamp(2)
    def wreads(ft, base):
        for mp in range(2):
            for ks in range(2):
                for half in range(2):
                    r = base + 8*mp + 4*ks + 2*half
                    off = mp*W_MAT + (32*ks + 4*half)*W_PITCH + ft*32
                    e(f"ds_read_b64_tr_b16 v[{r}:{r+1}], v62 offset:{off}")
    wreads(0, 28)
    for ft in range(4):
        base = 28 if ft % 2 == 0 else 44
        e("s_waitcnt lgkmcnt(0)")
        if ft < 3:
            wreads(ft+1, 44 if ft % 2 == 0 else 28)
        e(f"v_mfma_f32_16x16x32_bf16 v[4:7], v[{base}:{base+3}], v[20:23], 0")
        e(f"v_mfma_f32_16x16x32_bf16 v[8:11], v[{base+8}:{base+11}], v[20:23], 0")
        e(f"v_mfma_f32_16x16x32_bf16 v[4:7], v[{base+4}:{base+7}], v[24:27], v[4:7]")
        e(f"v_mfma_f32_16x16x32_bf16 v[8:11], v[{base+12}:{base+15}], v[24:27], v[8:11]")
        nop(8)
        for r in range(4):
            e(f"v_mul_f32 v{4+r}, s40, v{4+r}")
        e("s_cmp_eq_u32 s35, 0")
        e(f"s_cbranch_scc1 K1_T_{ft}")
        for r in range(4):
            e(f"v_cvt_pk_bf16_f32 v{12+r}, v{4+r}, v{8+r}")
        e(f"s_branch K1_st_{ft}")
        lab(f"K1_T_{ft}")
        e("v_cvt_pk_bf16_f32 v16, v4, v5")
        e("v_cvt_pk_bf16_f32 v17, v6, v7")
        e("v_and_b32 v4, 0xffff, v16")
        e("v_lshrrev_b32 v5, 16, v16")
        e("v_and_b32 v6, 0xffff, v17")
        e("v_lshrrev_b32 v7, 16, v17")
        for r in range(4):
            e(f"v_and_b32 v18, 0x7fffffff, v{8+r}")
            e("v_add_u32 v18, 0x8000, v18")
            e(f"v_sub_u32_e64 v18, v18, v{4+r} clamp")
            e(f"v_and_or_b32 v19, v{8+r}, s41, v{4+r}")
            e(f"v_bfi_b32 v{12+r}, s42, v18, v19")
        lab(f"K1_st_{ft}")
        e(f"global_store_dwordx4 v61, v[12:15], s[38:39] offset:{ft*64}{WT()}")
        nop(2)
    stamp(3)
    if STAMPS:
        e("s_waitcnt vmcnt(0)")
        stamp(4)
        stamp(5)
    stamp_store(6, 33, WS_STAMP + 0x100000)
    e("s_or_b32 s37, s28, s33")
    e("s_cmp_lg_u32 s37, 0")
    e("s_cbranch_scc1 K1_done")
    e("v_lshlrev_b32 v2, 2, v1")
    e(f"v_add_u32 v2, {N_NODES*256:#x}, v2")
    e("v_mov_b32 v3, 0x7f00")
    e(f"global_store_dword v2, v3, s[26:27]{WT()}")
    lab("K1_done")
    e("s_endpgm")

ACCN, ACCD = 0, 14336
CNT, MAXC, ZERO, CN = 28672, 28928, 28944, 28960
ZERO_END = 29184
START = 29184
T2L = 29440
GN = 39680
CAPP = 8160
IDX = GN + 2048
ATTR = IDX + 4*CAPP
K2_LDS = ATTR + 8*CAPP
DUMMY = N_NODES * 256
K2_GRID = 256

V_L, V_L4 = 1, 2
V_AI, V_AE, V_ESTR, V_EBASE = 3, 4, 5, 6
V_DB, V_DESC = 7, 8
V_X = 12
V_END, V_A = 14, 15
T = (16, 32, 48)
D = 64
SEL, EO, BE, ONE = 80, 84, 88, 92
DEN, NUM = 96, 98
V_M = 100
V_F = 104
V_LT2 = 106
V_PF = 108
K2_VGPRS = 112
S_T = 28
S_BIN, S_WAVE, S_P32, S_MAX = 37, 38, 39, 40
S_MASK = 44
S_K0, S_NBLK, S_K, S_CUR, S_D, S_DN, S_LOADED = 60, 61, 62, 63, 64, 65, 66
S_MIX, S_ROW, S_TMP, S_TMP2, S_PERM = 67, 68, 69, 70, 71
S_KC = 72

def slot(i, jj): return 16 + 4*(i + 4*jj)
def smask(i, jj): return S_MASK + 2*(i + 4*jj)

def issue_row_loads(tb):
    for v in range(tb, tb+16):
        if "noload" in OPT: e("s_nop 0")
        else: e(f"buffer_load_dword v{v}, v{v}, s[{S_T}:{S_T+3}], 0 offen")

def warm_table():
    if "nopf" in OPT: return
    e("s_lshr_b32 s41, s2, 3")
    e("s_mul_i32 s41, s41, 81920")
    e(f"v_lshl_add_u32 v{V_PF+1}, v0, 6, s41")
    e(f"global_load_dword v{V_PF}, v{V_PF+1}, s[26:27]")
    e(f"s_cmp_ge_u32 s{S_WAVE}, 4")
    e("s_cbranch_scc1 K2_pf_done%d" % len(out))
    tag = "K2_pf_done%d" % (len(out) - 1)
    e(f"v_add_u32 v{V_PF+1}, 0x10000, v{V_PF+1}")
    e(f"global_load_dword v{V_PF}, v{V_PF+1}, s[26:27]")
    lab(tag)

def idx_reads(tb):
    for q in range(4):
        e(f"ds_read_b128 v[{tb+4*q}:{tb+4*q+3}], v{V_AI} offset:{IDX+16*q}")
    e(f"v_add_u32 v{V_AI}, 64, v{V_AI}")

def attr_read():
    e(f"ds_read_b64 v[{EO}:{EO+1}], v{V_AE}")
    e(f"v_add_u32 v{V_AE}, v{V_ESTR}, v{V_AE}")

def node_rows_read(sdesc):
    for g in range(4):
        e(f"s_bfe_u32 s{S_TMP}, s{sdesc}, {(8 << 16) | (8*g):#x}")
        e(f"s_lshl_b32 s{S_TMP}, s{S_TMP}, 6")
        e(f"v_add_u32 v{V_A}, s{S_TMP}, v{V_LT2}")
        e(f"ds_read_b32 v{V_M+g}, v{V_A}")

def node_rows_pack():
    e(f"v_perm_b32 v{BE+2}, v{V_M+1}, v{V_M}, s{S_PERM}")
    e(f"v_perm_b32 v{BE+3}, v{V_M+3}, v{V_M+2}, s{S_PERM}")

def flush(tag):
    e(f"v_add_u32 v{V_A}, s{S_ROW}, v{V_L4}")
    e(f"v_add_f32 v{V_F}, v{DEN}, v{DEN+1}")
    e(f"v_add_f32 v{V_F+1}, v{NUM}, v{NUM+1}")
    e(f"s_cmp_lg_u32 s{S_P32}, 0")
    e(f"s_cbranch_scc1 {tag}_atomic")
    e(f"ds_write_b32 v{V_A}, v{V_F} offset:{ACCD}")
    e(f"ds_write_b32 v{V_A}, v{V_F+1} offset:{ACCN}")
    lab(f"{tag}_flushed")
    ATOMIC_SITES.append(tag)

ATOMIC_SITES = []
def atomic_flushes():
    for tag in ATOMIC_SITES:
        lab(f"{tag}_atomic")
        e(f"ds_add_f32 v{V_A}, v{V_F} offset:{ACCD}")
        e(f"ds_add_f32 v{V_A}, v{V_F+1} offset:{ACCN}")
        e(f"s_branch {tag}_flushed")

def acc_group(tp, g):
    for k in (2*g, 2*g+1):
        e(f"v_pk_add_f32 v[{DEN}:{DEN+1}], v[{DEN}:{DEN+1}], v[{D+2*k}:{D+2*k+1}]")
        e(f"v_pk_fma_f32 v[{NUM}:{NUM+1}], v[{D+2*k}:{D+2*k+1}], v[{tp+2*k}:{tp+2*k+1}], v[{NUM}:{NUM+1}]")

def acc_group_init(tp, g):
    a = 4*g
    e(f"v_pk_add_f32 v[{DEN}:{DEN+1}], v[{D+a}:{D+a+1}], v[{D+a+2}:{D+a+3}]")
    e(f"v_pk_mul_f32 v[{NUM}:{NUM+1}], v[{D+a}:{D+a+1}], v[{tp+a}:{tp+a+1}]")
    e(f"v_pk_fma_f32 v[{NUM}:{NUM+1}], v[{D+a+2}:{D+a+3}], v[{tp+a+2}:{tp+a+3}], v[{NUM}:{NUM+1}]")

def body(P, main):
    tp, tr = T[P], T[(P+2) % 3]
    tag = f"K2_{'m' if main else 't'}{P}"
    lab(tag)
    if "noprio" not in OPT and not main: e("s_setprio 0")
    e("s_waitcnt lgkmcnt(0)")
    if "nomfma" not in OPT: e(f"v_mfma_f32_32x32x16_bf16 v[{D}:{D+15}], v[{EO}:{EO+3}], v[{BE}:{BE+3}], 0")
    e(f"s_add_u32 s{S_K}, s{S_K}, 1")
    if main and "nolds" not in OPT: idx_reads(tr)
    if "nolds" not in OPT: attr_read()
    e(f"v_readlane_b32 s{S_DN}, v{V_DB}, s{S_K}")
    e(f"s_mov_b32 s{S_MIX}, 0")
    e(f"s_cmp_eq_u32 s{S_DN}, s{S_LOADED}")
    if "noreload" not in OPT: e(f"s_cbranch_scc0 {tag}_reload")
    lab(f"{tag}_loaded")
    early = "late" not in OPT
    if main and early:
        e("s_waitcnt lgkmcnt(1)")
        issue_row_loads(tr)
        e("s_waitcnt vmcnt(32)")
    elif main:
        e("s_waitcnt vmcnt(16)")
    else:
        nop(4)
        e("s_waitcnt vmcnt(0)")
    for q in range(4 if "nomfma" not in OPT else 0):
        e(f"v_mfma_f32_16x16x32_bf16 v[{D+4*q}:{D+4*q+3}], v[{SEL}:{SEL+3}], v[{tp+4*q}:{tp+4*q+3}], v[{D+4*q}:{D+4*q+3}]")
    if main and not early:
        e("s_waitcnt lgkmcnt(1)")
        issue_row_loads(tr)
    else:
        nop(8)
    for v in range(16):
        if "novalu" not in OPT: e(f"v_exp_f32 v{D+v}, v{D+v}")
    nop(2)
    if "nomfma" not in OPT: e(f"v_mfma_f32_32x32x16_bf16 v[{D}:{D+15}], v[{ONE}:{ONE+3}], v[{ONE}:{ONE+3}], v[{D}:{D+15}]")
    e(f"s_cmp_lg_u32 s{S_MIX}, 0")
    e(f"s_cbranch_scc1 {tag}_pack")
    lab(f"{tag}_packed")
    e(f"s_and_b32 s{S_TMP}, s{S_D}, 0xff")
    e(f"s_mul_i32 s{S_TMP}, s{S_TMP}, 0x01010101")
    e(f"s_and_b32 s{S_TMP2}, s{S_D}, 0xff")
    e(f"s_xor_b32 s{S_TMP}, s{S_TMP}, s{S_D}")
    e(f"s_xor_b32 s{S_TMP2}, s{S_TMP2}, s{S_CUR}")
    e(f"s_or_b32 s{S_TMP}, s{S_TMP}, s{S_TMP2}")
    nop(4)
    for v in range(16):
        if "novalu" not in OPT: e(f"v_rcp_f32 v{D+v}, v{D+v}")
    if "noslow" not in OPT: e(f"s_cbranch_scc1 {tag}_slow")
    if "novalu" not in OPT:
        for g in range(4): acc_group(tp, g)
    lab(f"{tag}_next")
    e(f"s_mov_b32 s{S_D}, s{S_DN}")
    nP = (P+1) % 3
    if main:
        e(f"s_add_u32 s{S_TMP}, s{S_K}, 2")
        e(f"s_cmp_lt_u32 s{S_TMP}, s{S_NBLK}")
        e(f"s_cbranch_scc0 K2_t{nP}")
        if P == 2:
            if "noprio" not in OPT:
                e(f"s_cmp_lt_u32 s{S_K}, 6")
                e("s_cbranch_scc0 K2_prio1")
                e("s_setprio 2")
                e("s_branch K2_m0")
                lab("K2_prio1")
                e("s_setprio 1")
            e("s_branch K2_m0")
    else:
        e(f"s_cmp_lt_u32 s{S_K}, s{S_NBLK}")
        e("s_cbranch_scc0 K2_range_end")
        if P == 2: e("s_branch K2_t0")

def body_outlined(P, main):
    tp = T[P]
    tag = f"K2_{'m' if main else 't'}{P}"
    lab(f"{tag}_reload")
    node_rows_read(S_DN)
    e(f"s_mov_b32 s{S_LOADED}, s{S_DN}")
    e(f"s_mov_b32 s{S_MIX}, 1")
    e(f"s_branch {tag}_loaded")
    lab(f"{tag}_pack")
    e("s_waitcnt lgkmcnt(0)")
    node_rows_pack()
    e(f"s_branch {tag}_packed")
    lab(f"{tag}_slow")
    for g in range(4):
        e(f"s_bfe_u32 s{S_TMP2}, s{S_D}, {(8 << 16) | (8*g):#x}")
        e(f"s_cmp_eq_u32 s{S_TMP2}, s{S_CUR}")
        e(f"s_cbranch_scc1 {tag}_cont{g}")
        flush(f"{tag}_f{g}")
        e(f"s_mov_b32 s{S_CUR}, s{S_TMP2}")
        e(f"s_lshl_b32 s{S_ROW}, s{S_TMP2}, 6")
        acc_group_init(tp, g)
        e(f"s_branch {tag}_g{g}")
        lab(f"{tag}_cont{g}")
        acc_group(tp, g)
        lab(f"{tag}_g{g}")
    e(f"s_branch {tag}_next")

def gen_k2():
    out.append(f".globl {MAIN}")
    out.append(".p2align 8")
    out.append(f".type {MAIN},@function")
    lab(MAIN)
    e(f"s_cmp_ge_u32 s2, {K2_GRID}")
    e("s_cbranch_scc1 K2_done")
    e("s_and_b32 s3, s2, 7")
    e("s_lshl_b32 s3, s3, 5")
    e(f"s_lshr_b32 s{S_BIN}, s2, 3")
    e(f"s_add_u32 s{S_BIN}, s{S_BIN}, s3")
    stamp(0)
    load_kernargs()
    e(f"s_cmp_ge_u32 s{S_BIN}, {NB}")
    e("s_cbranch_scc1 K2_idle")
    e(f"v_readfirstlane_b32 s{S_WAVE}, v0")
    e(f"v_and_b32 v{V_L}, 63, v0")
    e(f"v_lshlrev_b32 v{V_L4}, 2, v{V_L}")
    e(f"s_lshr_b32 s{S_WAVE}, s{S_WAVE}, 6")
    e(f"v_lshrrev_b32 v64, 4, v{V_L}")
    e(f"s_lshl_b32 s{S_TMP}, s{S_WAVE}, 2")
    e(f"v_add_u32 v64, s{S_TMP}, v64")
    e("v_lshlrev_b32 v64, 2, v64")
    e(f"s_lshl_b32 s41, s{S_BIN}, 2")
    e("v_lshl_add_u32 v65, v64, 10, s41")
    e(f"v_lshlrev_b32 v66, 1, v{V_L}")
    e("s_waitcnt lgkmcnt(0)")
    add64(32, 26, WS_TAB)
    for i in range(4):
        e(f"global_load_dword v{V_DESC+i}, v65, s[32:33] offset:{1024*i}")
    for c in range(4):
        e(f"global_load_ushort v{72+c}, v66, s[16:17] offset:{128*c}")
    add64(34, 26, WS_REC)
    e(f"s_cmp_ge_u32 s{S_WAVE}, 10")
    e("s_cbranch_scc1 K2_no_t2")
    e(f"s_mul_i32 s41, s{S_BIN}, 10240")
    e("v_lshl_add_u32 v66, v0, 4, s41")
    add64(42, 26, WS_T2)
    e("global_load_dwordx4 v[68:71], v66, s[42:43]")
    e(f"s_mul_i32 s41, s{S_BIN}, 5120")
    e("v_lshl_add_u32 v66, v0, 3, s41")
    e(f"global_load_dwordx2 v[{V_X}:{V_X+1}], v66, s[4:5]")
    lab("K2_no_t2")
    e(f"s_mov_b32 s{S_T}, s26")
    e(f"s_and_b32 s{S_T+1}, s27, 0xffff")
    e(f"s_or_b32 s{S_T+1}, s{S_T+1}, 0x40000")
    e(f"s_mov_b32 s{S_T+2}, {(N_NODES+1)*256}")
    e(f"s_mov_b32 s{S_T+3}, 0x00800000")
    for r in range(76, 80):
        e(f"v_mov_b32 v{r}, 0")
    e("v_lshlrev_b32 v67, 4, v0")
    e("ds_write_b128 v67, v[76:79]")
    e(f"v_cmp_gt_u32 vcc, {(ZERO_END-16384)//16}, v0")
    e("s_mov_b64 exec, vcc")
    e("ds_write_b128 v67, v[76:79] offset:16384")
    e("s_mov_b64 exec, -1")
    e(f"v_and_b32 v16, 31, v{V_L}")
    e(f"v_lshrrev_b32 v17, 5, v{V_L}")
    e("v_bfe_u32 v18, v16, 2, 1")
    e("v_lshrrev_b32 v19, 3, v16")
    e("v_and_b32 v16, 3, v16")
    e("v_lshl_add_u32 v16, v19, 2, v16")
    e("v_cmp_eq_u32 vcc, v17, v18")
    e("v_mov_b32 v20, 0x80")
    e("v_lshlrev_b32 v16, 3, v16")
    e(f"v_cndmask_b32 v{V_ESTR}, 0, v20, vcc")
    e(f"v_add_u32 v16, {ATTR}, v16")
    e(f"v_mov_b32 v20, {ZERO}")
    e(f"v_cndmask_b32 v{V_EBASE}, v20, v16, vcc")
    e("v_and_b32 v21, 1, v19")
    e("v_lshlrev_b32 v21, 4, v21")
    e("v_mov_b32 v22, 0x3f80")
    e("v_lshlrev_b32 v21, v21, v22")
    e("v_cndmask_b32 v21, 0, v21, vcc")
    e("v_cmp_gt_u32 vcc, 2, v19")
    e(f"v_mov_b32 v{ONE+1}, 0")
    e(f"v_mov_b32 v{ONE+2}, 0")
    e(f"v_cndmask_b32 v{EO+2}, 0, v21, vcc")
    e(f"v_sub_u32 v{EO+3}, v21, v{EO+2}")
    e(f"v_cmp_gt_u32 vcc, 32, v{V_L}")
    e(f"v_mov_b32 v{ONE+3}, 0")
    e(f"v_add_u32 v{V_LT2}, {T2L}, v{V_L4}")
    e(f"v_cndmask_b32 v{ONE}, 0, v22, vcc")
    e(f"v_bfe_u32 v16, v{V_L}, 2, 2")
    e(f"v_lshrrev_b32 v17, 4, v{V_L}")
    e(f"v_and_b32 v18, 3, v{V_L}")
    e("v_cmp_eq_u32 vcc, v16, v17")
    e("v_mov_b32 v19, 31")
    e(f"s_mov_b32 s{S_PERM}, 0x05040100")
    e("v_cndmask_b32 v18, v19, v18, vcc")
    e("v_lshlrev_b32 v18, v18, 1")
    for k in range(4):
        e(f"v_bfe_u32 v{SEL+k}, v18, {k}, 1")
    for k in range(4):
        e(f"v_mul_u32_u24 v{SEL+k}, v22, v{SEL+k}")
    for i in range(4):
        e(f"s_mov_b32 s{S_KC+i}, {i*REC_STRIDE}")
    e(f"s_mov_b32 s{S_P32}, 0")
    e("s_waitcnt vmcnt(4)")
    stamp(1)
    for i in range(4):
        e(f"v_add_u32 v{16+i}, {i}, v64")
    e(f"s_movk_i32 s41, {NB}")
    for i in range(4):
        e(f"v_cmp_gt_u32 s[{S_MASK+2*i}:{S_MASK+2*i+1}], s41, v{16+i}")
    nop(1)
    for i in range(4):
        e(f"v_cndmask_b32 v{V_DESC+i}, 0, v{V_DESC+i}, s[{S_MASK+2*i}:{S_MASK+2*i+1}]")

    def slot_loads(jj):
        vj = 76 + jj
        for i in range(4):
            r, m = slot(i, jj), smask(i, jj)
            e(f"v_lshrrev_b32 v79, 16, v{V_DESC+i}")
            e(f"v_cmp_gt_u32 s[{m}:{m+1}], v79, v{vj}")
            e(f"v_and_b32 v79, 0xffff, v{V_DESC+i}")
            e(f"v_add3_u32 v79, v79, v{vj}, v78")
            e(f"v_mad_u32_u24 v79, v79, 12, s{S_KC+i}")
            e(f"s_mov_b64 exec, s[{m}:{m+1}]")
            e(f"global_load_dwordx3 v[{r}:{r+2}], v79, s[34:35]")
            e("s_mov_b64 exec, -1")
    def pass_addr():
        e(f"v_lshrrev_b32 v78, 4, v{V_L}")
        e(f"s_lshl_b32 s{S_TMP}, s{S_WAVE}, 2")
        e(f"v_add_u32 v78, s{S_TMP}, v78")
        e(f"v_mul_u32_u24 v78, {4*EPC}, v78")
        e(f"v_and_b32 v76, 15, v{V_L}")
        e(f"v_add_u32 v76, s{S_P32}, v76")
        e("v_add_u32 v77, 16, v76")
    lab("K2_pass")
    pass_addr()
    slot_loads(0)
    for i in range(4):
        e(f"s_mov_b64 s[{smask(i,1)}:{smask(i,1)+1}], 0")
    e(f"v_lshrrev_b32 v79, 16, v{V_DESC}")
    e(f"v_lshrrev_b32 v{V_A}, 16, v{V_DESC+1}")
    e(f"v_max_u32 v79, v79, v{V_A}")
    e(f"v_lshrrev_b32 v{V_A}, 16, v{V_DESC+2}")
    e(f"v_max_u32 v79, v79, v{V_A}")
    e(f"v_lshrrev_b32 v{V_A}, 16, v{V_DESC+3}")
    e(f"v_max_u32 v{V_DB}, v79, v{V_A}")
    e(f"v_cmp_gt_u32 vcc, v{V_DB}, v77")
    e(f"s_mov_b32 s{S_MIX}, 0")
    e("s_cbranch_vccz K2_no_second")
    slot_loads(1)
    e(f"s_mov_b32 s{S_MIX}, 1")
    lab("K2_no_second")
    e(f"s_cmp_lg_u32 s{S_P32}, 0")
    e("s_cbranch_scc1 K2_tables_done")
    e("s_waitcnt vmcnt(4)")
    warm_table()
    e(f"s_cmp_ge_u32 s{S_WAVE}, 10")
    e("s_cbranch_scc1 K2_no_t2w")
    e(f"ds_write_b128 v67, v[68:71] offset:{T2L}")
    lab("K2_no_t2w")
    e(f"s_mov_b32 s{S_TMP}, {NEG_L2E:#x}")
    for c in range(4):
        e(f"v_lshlrev_b32 v{72+c}, 16, v{72+c}")
    for c in range(4):
        e(f"v_mul_f32 v{72+c}, s{S_TMP}, v{72+c}")
    e(f"v_cvt_pk_bf16_f32 v{BE}, v72, v73")
    e(f"v_cvt_pk_bf16_f32 v{BE+1}, v74, v75")
    e("s_waitcnt lgkmcnt(0)")
    e("s_barrier")
    e(f"v_cmp_lt_u32 vcc, 32, v{V_DB}")
    e("s_cbranch_vccz K2_tables_done")
    e(f"v_mov_b32 v79, {MAXC}")
    e(f"ds_max_u32 v79, v{V_DB}")
    lab("K2_tables_done")

    def for_slots(fn, name):
        for i in range(4):
            m = smask(i, 0)
            e(f"s_mov_b64 exec, s[{m}:{m+1}]")
            fn(i, 0, slot(i, 0))
        e("s_mov_b64 exec, -1")
        e(f"s_cmp_eq_u32 s{S_MIX}, 0")
        e(f"s_cbranch_scc1 K2_{name}_skip")
        for i in range(4):
            m = smask(i, 1)
            e(f"s_mov_b64 exec, s[{m}:{m+1}]")
            fn(i, 1, slot(i, 1))
        e("s_mov_b64 exec, -1")
        lab(f"K2_{name}_skip")
    e("v_mov_b32 v78, 1")
    if "nopf" in OPT:
        e("s_waitcnt vmcnt(0)")
    else:
        e(f"s_cmp_lg_u32 s{S_P32}, 0")
        e("s_cbranch_scc1 K2_wait_all")
        e(f"s_cmp_lt_u32 s{S_WAVE}, 4")
        e("s_cbranch_scc1 K2_wait_two")
        e("s_waitcnt vmcnt(1)")
        e("s_branch K2_waited")
        lab("K2_wait_two")
        e("s_waitcnt vmcnt(2)")
        e("s_branch K2_waited")
        lab("K2_wait_all")
        e("s_waitcnt vmcnt(0)")
        lab("K2_waited")
    stamp(2)
    def cnt_fn(i, jj, r):
        t = D + i + 4*jj
        e(f"v_lshrrev_b32 v{t}, 24, v{r+2}")
        e(f"ds_add_rtn_u32 v{r+3}, v{t}, v78 offset:{CNT}")
    for_slots(cnt_fn, "cnt")
    e("s_waitcnt lgkmcnt(0)")
    e("s_barrier")
    stamp(3)
    e(f"ds_read_b32 v76, v{V_L4} offset:{CNT}")
    e(f"v_mov_b32 v79, {MAXC}")
    e("ds_read_b32 v79, v79")
    e("s_waitcnt lgkmcnt(0)")
    e(f"v_readfirstlane_b32 s{S_MAX}, v79")
    e("v_add_u32 v77, 3, v76")
    e("v_and_b32 v77, -4, v77")
    e(f"v_mov_b32 v{V_END}, v77")
    dpp_scan(V_END)
    e(f"v_sub_u32 v75, v{V_END}, v77")
    e(f"ds_write_b32 v{V_L4}, v75 offset:{START}")
    def st_fn(i, jj, r):
        t = D + i + 4*jj
        e(f"ds_read_b32 v{T[2]+i+4*jj}, v{t} offset:{START}")
    for_slots(st_fn, "st")
    e(f"v_readlane_b32 s{S_NBLK}, v{V_END}, 63")
    e(f"s_cmp_lg_u32 s{S_WAVE}, 15")
    e("s_cbranch_scc1 K2_nopad")
    e("v_add_u32 v75, v75, v76")
    e(f"v_mov_b32 v74, {DUMMY:#x}")
    e("v_mov_b32 v72, 0")
    e("v_mov_b32 v73, 0")
    def pad_write(cond_hi):
        e(f"v_cmp_lt_u32 vcc, v75, {cond_hi}")
        e("v_lshlrev_b32 v79, 2, v75")
        e("v_lshlrev_b32 v78, 3, v75")
        e(f"v_add_u32 v78, {ATTR}, v78")
        e("s_mov_b64 exec, vcc")
        e(f"ds_write_b32 v79, v74 offset:{IDX}")
        e("ds_write_b64 v78, v[72:73]")
        e("s_mov_b64 exec, -1")
    for k in range(3):
        pad_write(f"v{V_END}")
        e("v_add_u32 v75, 1, v75")
    e(f"s_add_u32 s{S_TMP}, s{S_NBLK}, 15")
    e(f"s_and_b32 s{S_TMP}, s{S_TMP}, -16")
    e(f"v_mov_b32 v77, s{S_TMP}")
    e(f"v_add_u32 v75, s{S_NBLK}, v{V_L}")
    pad_write("v77")
    e("v_lshrrev_b32 v75, 2, v75")
    e("v_mov_b32 v74, 160")
    e("s_mov_b64 exec, vcc")
    e(f"ds_write_b8 v75, v74 offset:{GN}")
    e("s_mov_b64 exec, -1")
    lab("K2_nopad")
    e("s_waitcnt lgkmcnt(0)")
    e(f"s_mov_b32 s{S_TMP2}, {ATTR}")
    def sc_fn(i, jj, r):
        t = D + i + 4*jj
        p = T[2] + i + 4*jj
        e(f"v_add_u32 v{p}, v{p}, v{r+3}")
        e(f"v_and_b32 v{r+2}, 0xffffff, v{r+2}")
        e(f"v_lshl_add_u32 v{r+3}, v{p}, 3, s{S_TMP2}")
        e(f"ds_write_b64 v{r+3}, v[{r}:{r+1}]")
        e(f"v_lshrrev_b32 v{r+3}, 2, v{p}")
        e(f"v_lshlrev_b32 v{p}, 2, v{p}")
        e(f"ds_write_b32 v{p}, v{r+2} offset:{IDX}")
        e(f"ds_write_b8 v{r+3}, v{t} offset:{GN}")
    for_slots(sc_fn, "sc")
    e("s_waitcnt lgkmcnt(0)")
    e("s_barrier")
    stamp(4)
    e(f"s_add_u32 s{S_TMP}, s{S_NBLK}, 15")
    e(f"s_lshr_b32 s{S_TMP}, s{S_TMP}, 4")
    e(f"s_mul_i32 s{S_K0}, s{S_TMP}, s{S_WAVE}")
    e(f"s_add_u32 s{S_NBLK}, s{S_K0}, s{S_TMP}")
    e(f"s_lshr_b32 s{S_K0}, s{S_K0}, 4")
    e(f"s_lshr_b32 s{S_NBLK}, s{S_NBLK}, 4")
    e(f"s_sub_u32 s{S_NBLK}, s{S_NBLK}, s{S_K0}")
    e(f"s_cmp_eq_u32 s{S_NBLK}, 0")
    e("s_cbranch_scc1 K2_empty_range")
    e(f"v_add_u32 v{V_A}, s{S_K0}, v{V_L}")
    e(f"v_lshlrev_b32 v{V_A}, 2, v{V_A}")
    e(f"ds_read_b32 v{V_DB}, v{V_A} offset:{GN}")
    e(f"ds_read_b32 v{V_F}, v{V_A} offset:{GN-4}")
    e(f"s_lshl_b32 s{S_TMP}, s{S_K0}, 6")
    e(f"v_mov_b32 v{V_AI}, s{S_TMP}")
    e(f"v_mad_u32_u24 v{V_AE}, v{V_ESTR}, s{S_K0}, v{V_EBASE}")
    idx_reads(T[0])
    idx_reads(T[1])
    attr_read()
    for r in (DEN, DEN+1, NUM, NUM+1):
        e(f"v_mov_b32 v{r}, 0")
    e("s_waitcnt lgkmcnt(0)")
    e(f"v_readlane_b32 s{S_D}, v{V_DB}, 0")
    issue_row_loads(T[0])
    node_rows_read(S_D)
    e(f"s_mov_b32 s{S_LOADED}, s{S_D}")
    e(f"s_and_b32 s{S_CUR}, s{S_D}, 0xff")
    e(f"s_lshl_b32 s{S_ROW}, s{S_CUR}, 6")
    e(f"s_cmp_lg_u32 s{S_P32}, 0")
    e("s_cbranch_scc1 K2_carry_done")
    e(f"v_readlane_b32 s{S_TMP2}, v{V_F}, 0")
    e(f"s_add_u32 s{S_MIX}, s{S_WAVE}, 40")
    e(f"s_lshl_b32 s{S_MIX}, s{S_MIX}, 8")
    e(f"s_lshr_b32 s{S_TMP2}, s{S_TMP2}, 24")
    e(f"s_cmp_eq_u32 s{S_K0}, 0")
    e(f"s_cselect_b32 s{S_TMP2}, 0x100, s{S_TMP2}")
    e(f"s_cmp_eq_u32 s{S_TMP2}, s{S_CUR}")
    e(f"s_cselect_b32 s{S_ROW}, s{S_MIX}, s{S_ROW}")
    e(f"s_cselect_b32 s{S_TMP2}, s{S_CUR}, 0xff")
    e(f"s_lshl_b32 s{S_TMP}, s{S_WAVE}, 2")
    e(f"v_mov_b32 v{V_A}, s{S_TMP}")
    e(f"v_mov_b32 v{V_F}, s{S_TMP2}")
    e(f"ds_write_b32 v{V_A}, v{V_F} offset:{CN}")
    lab("K2_carry_done")
    e(f"s_mov_b32 s{S_K}, 0")
    e(f"s_cmp_lt_u32 s{S_NBLK}, 2")
    e("s_cbranch_scc1 K2_one_block")
    issue_row_loads(T[1])
    lab("K2_one_block")
    e("s_waitcnt lgkmcnt(0)")
    node_rows_pack()
    if "noprio" not in OPT: e("s_setprio 3")
    e(f"s_cmp_gt_u32 s{S_NBLK}, 2")
    e("s_cbranch_scc0 K2_t0")
    for P in range(3): body(P, True)
    for P in range(3): body(P, False)
    for P in range(3): body_outlined(P, True)
    for P in range(3): body_outlined(P, False)
    atomic_flushes()
    lab("K2_range_end")
    ATOMIC_SITES.clear()
    flush("K2_last")
    e("s_branch K2_main_done")
    lab("K2_empty_range")
    e(f"s_cmp_lg_u32 s{S_P32}, 0")
    e("s_cbranch_scc1 K2_main_done")
    e(f"s_lshl_b32 s{S_TMP}, s{S_WAVE}, 2")
    e(f"v_mov_b32 v{V_A}, s{S_TMP}")
    e(f"v_mov_b32 v{V_F}, 0xff")
    e(f"ds_write_b32 v{V_A}, v{V_F} offset:{CN}")
    lab("K2_main_done")
    if "noprio" not in OPT: e("s_setprio 0")
    stamp(5)
    e(f"s_add_u32 s{S_P32}, s{S_P32}, 32")
    e(f"s_cmp_ge_u32 s{S_P32}, s{S_MAX}")
    e("s_cbranch_scc1 K2_final")
    e(f"s_cmp_lg_u32 s{S_WAVE}, 0")
    e("s_cbranch_scc1 K2_nozc")
    e("v_mov_b32 v76, 0")
    e(f"ds_write_b32 v{V_L4}, v76 offset:{CNT}")
    lab("K2_nozc")
    e("s_waitcnt lgkmcnt(0)")
    e("s_barrier")
    e("s_branch K2_pass")
    lab("K2_final")
    e("s_waitcnt lgkmcnt(0)")
    e("s_barrier")
    stamp(6)
    e(f"s_cmp_ge_u32 s{S_WAVE}, 10")
    e("s_cbranch_scc1 K2_end")
    e("v_lshlrev_b32 v67, 4, v0")
    e(f"ds_read_b128 v[16:19], v67 offset:{ACCN}")
    e(f"ds_read_b128 v[20:23], v67 offset:{ACCD}")
    e(f"ds_read_b128 v[24:27], v67 offset:{T2L}")
    e(f"v_and_b32 v30, 15, v{V_L}")
    e("v_lshlrev_b32 v31, 2, v30")
    e(f"ds_read_b32 v31, v31 offset:{CN}")
    e(f"s_mul_i32 s41, s{S_BIN}, 5120")
    e("v_lshl_add_u32 v66, v0, 3, s41")
    e("s_mov_b32 s42, 0x358637bd")
    e("v_lshrrev_b32 v32, 4, v0")
    e("v_lshlrev_b32 v32, 2, v32")
    e("v_lshlrev_b32 v33, 4, v30")
    e("s_waitcnt lgkmcnt(0)")
    e("v_lshrrev_b32 v34, 4, v31")
    e(f"v_cmp_eq_u32 vcc, s{S_WAVE}, v34")
    e("s_and_b32 s44, vcc_lo, 0xffff")
    lab("K2_merge")
    e("s_cmp_eq_u32 s44, 0")
    e("s_cbranch_scc1 K2_merged")
    e("s_ff1_i32_b32 s45, s44")
    e("s_bitset0_b32 s44, s45")
    e("v_readlane_b32 s46, v31, s45")
    e("s_add_u32 s45, s45, 40")
    e("s_lshl_b32 s45, s45, 8")
    e("v_add_u32 v35, s45, v33")
    e(f"ds_read_b128 v[36:39], v35 offset:{ACCN}")
    e(f"ds_read_b128 v[40:43], v35 offset:{ACCD}")
    e("v_cmp_eq_u32 vcc, s46, v32")
    e("s_waitcnt lgkmcnt(0)")
    e("s_mov_b64 exec, vcc")
    for r in range(4):
        e(f"v_add_f32 v{16+r}, v{16+r}, v{36+r}")
        e(f"v_add_f32 v{20+r}, v{20+r}, v{40+r}")
    e("s_mov_b64 exec, -1")
    e("s_branch K2_merge")
    lab("K2_merged")
    for r in range(4):
        e(f"v_add_f32 v{20+r}, s42, v{20+r}")
    for r in range(4):
        e(f"v_rcp_f32 v{20+r}, v{20+r}")
    for r in range(4):
        e(f"v_and_b32 v{24+r}, 0xffff0000, v{24+r}")
    for r in range(4):
        e(f"v_fma_f32 v{16+r}, v{16+r}, v{20+r}, v{24+r}")
    for r in range(4):
        e(f"v_mul_f32 v{20+r}, 0, v{16+r}")
    for r in range(4):
        e(f"v_cmp_lt_f32 vcc, 0, v{16+r}")
        nop(2)
        e(f"v_cndmask_b32 v{16+r}, v{20+r}, v{16+r}, vcc")
    e(f"v_lshlrev_b32 v24, 16, v{V_X}")
    e(f"v_and_b32 v25, 0xffff0000, v{V_X}")
    e(f"v_lshlrev_b32 v26, 16, v{V_X+1}")
    e(f"v_and_b32 v27, 0xffff0000, v{V_X+1}")
    for r in range(4):
        e(f"v_add_f32 v{16+r}, v{16+r}, v{24+r}")
    e("v_cvt_pk_bf16_f32 v28, v16, v17")
    e("v_cvt_pk_bf16_f32 v29, v18, v19")
    e("global_store_dwordx2 v66, v[28:29], s[22:23]")
    lab("K2_end")
    stamp(7)
    stamp_store(8, S_WAVE, WS_STAMP, S_BIN)
    lab("K2_done")
    e("s_endpgm")
    lab("K2_idle")
    e(f"v_readfirstlane_b32 s{S_WAVE}, v0")
    e("s_waitcnt lgkmcnt(0)")
    e(f"s_lshr_b32 s{S_WAVE}, s{S_WAVE}, 6")
    warm_table()
    e("s_endpgm")
    atomic_flushes()

def gen_diag(spec):
    ka, sa, ra, kb, sb, rb = spec
    out.append(".globl diag_kernel")
    out.append(".p2align 8")
    out.append(".type diag_kernel,@function")
    lab("diag_kernel")
    e("s_cmp_ge_u32 s2, 1")
    e("s_cbranch_scc1 DG_done")
    e("s_load_dwordx2 s[26:27], s[0:1], 88")
    e("s_waitcnt lgkmcnt(0)")
    e(f"s_add_u32 s4, s26, {WS_STAMP + 0x100000:#x}")
    e("s_addc_u32 s5, s27, 0")
    e("s_load_dword s20, s[4:5], 0")
    e("v_mov_b32 v20, 0")
    e("v_mov_b32 v21, 0x7fffffff")
    e("v_mov_b32 v22, 0x80000000")
    e(f"ds_write_b32 v20, v{21 if ra == 'min' else 22} offset:0")
    e(f"ds_write_b32 v20, v{21 if rb == 'min' else 22} offset:4")
    e("s_waitcnt lgkmcnt(0)")
    e("s_barrier")
    def reduce(kern, st, red, off, tag):
        base = WS_STAMP + (0x100000 if kern[0] == '1' else 0)
        w0, w1, nw = {'1b': (0, 250, 10), '1t': (250, 375, 10), '1': (0, 375, 10), '2': (0, 250, 16)}[kern]
        e(f"s_add_u32 s4, s26, {base + 8*st:#x}")
        e("s_addc_u32 s5, s27, 0")
        for r in range(6):
            e(f"v_add_u32 v1, {w0*16 + 1024*r}, v0")
            e("v_and_b32 v3, 15, v1")
            e(f"v_cmp_gt_u32 vcc, {nw}, v3")
            e(f"v_cmp_gt_u32 s[10:11], s30, v1".replace("s30", "s30"))
            e("s_and_b64 vcc, vcc, s[10:11]")
            e("s_and_saveexec_b64 s[12:13], vcc")
            e(f"s_cbranch_execz DG_{tag}{r}")
            e("v_lshlrev_b32 v1, 7, v1")
            e("global_load_dword v2, v1, s[4:5]")
            e("s_waitcnt vmcnt(0)")
            e("v_subrev_u32 v2, s20, v2")
            e(f"ds_{red}_i32 v20, v2 offset:{off}")
            lab(f"DG_{tag}{r}")
            e("s_mov_b64 exec, s[12:13]")
    def bound(kern):
        w1 = {'1b': 250, '1t': 375, '1': 375, '2': 250}[kern]
        e(f"s_mov_b32 s30, {w1*16}")
    bound(ka); reduce(ka, sa, ra, 0, "a")
    bound(kb); reduce(kb, sb, rb, 4, "b")
    e("s_waitcnt lgkmcnt(0)")
    e("s_barrier")
    e("ds_read_b64 v[4:5], v20")
    e("s_waitcnt lgkmcnt(0)")
    e("v_readfirstlane_b32 s21, v4")
    e("v_readfirstlane_b32 s12, v5")
    e("s_nop 3")
    e("s_sub_u32 s22, s12, s21")
    e("s_max_i32 s22, s22, 0")
    e("s_min_i32 s22, s22, 4000")
    e("s_mul_i32 s22, s22, 20")
    e("s_memrealtime s[14:15]")
    e("s_waitcnt lgkmcnt(0)")
    lab("DG_spin")
    e("s_memrealtime s[16:17]")
    e("s_waitcnt lgkmcnt(0)")
    e("s_sub_u32 s18, s16, s14")
    e("s_cmp_lt_u32 s18, s22")
    e("s_cbranch_scc1 DG_spin")
    lab("DG_done")
    e("s_endpgm")

def kd(name, vgpr, sgpr):
    out.append(".p2align 6")
    out.append(f".amdhsa_kernel {name}")
    out.append(f"  .amdhsa_next_free_vgpr {vgpr}")
    out.append(f"  .amdhsa_next_free_sgpr {sgpr}")
    out.append(f"  .amdhsa_accum_offset {(vgpr+3)//4*4}")
    out.append("  .amdhsa_group_segment_fixed_size 0")
    out.append("  .amdhsa_kernarg_size 96")
    out.append("  .amdhsa_user_sgpr_count 2")
    out.append("  .amdhsa_user_sgpr_kernarg_segment_ptr 1")
    out.append("  .amdhsa_system_sgpr_workgroup_id_x 1")
    out.append(".end_amdhsa_kernel")

HEADER = f"""; Kernarg layout (96 bytes, ptrs only, base s[0:1]):
; @launch kernel={PREP} grid=(375,1,1) block=(640,1,1) lds={K1_LDS}
; @launch kernel={MAIN} grid=({K2_GRID},1,1) block=(1024,1,1) lds={K2_LDS}
.amdgcn_target "amdgcn-amd-amdhsa--gfx950"
.text"""

def main():
    global STAMPS
    if "--stamps" in sys.argv:
        STAMPS = True
        sys.argv.remove("--stamps")
    for a in list(sys.argv):
        if a.startswith("--opt="):
            OPT.update(a[6:].split(","))
            sys.argv.remove(a)
    diag = [o for o in OPT if o.startswith("diag=")]
    hdr = HEADER
    if diag:
        hdr = hdr.replace(".amdgcn_target", "; @launch kernel=diag_kernel grid=(1,1,1) block=(1024,1,1) lds=64\n.amdgcn_target")
    out.append(hdr)
    gen_k1()
    gen_k2()
    if diag: gen_diag([int(x) if x.isdigit() and i in (1, 4) else x for i, x in enumerate(diag[0][5:].split(":"))])
    out.append('.section .rodata,"a"')
    if diag: kd("diag_kernel", 32, 48)
    kd(PREP, 64, 102 if STAMPS else 48)
    kd(MAIN, K2_VGPRS, 102 if STAMPS else 80)
    path = sys.argv[1] if len(sys.argv) > 1 else "standalone__edge_featured_mpnn_gatedgcn__graph.s"
    open(path, "w").write("\n".join(out) + "\n")
    print("wrote", path, len(out), "lines")

if __name__ == "__main__":
    main()
```

```python
import sys

MAIN = "standalone__edge_featured_mpnn_gatedgcn__graph_kernel"
PREP = "gcn_prep_kernel"

N_NODES = 10000
NB = 250
EPC = 2560
NPB = 40
WS_T = 0
WS_T2 = 0x280000
WS_TAB = 0x500000
WS_REC = 0x580000
REC_STRIDE = EPC * 12
NEG_L2E = 0xBFB8AA3B

out = []
def e(s): out.append("    " + s)
def lab(s): out.append(s + ":")
def cmt(s): out.append("    ; " + s)
def nop(n):
    while n > 0:
        k = min(n, 16)
        e(f"s_nop {k-1}")
        n -= k

STAMPS = False
OPT = set()
WS_STAMP = 0x2000000
def stamp(k):
    if STAMPS and not ("segs" in OPT and k >= 2):
        e(f"{'s_memrealtime' if 'rt' in OPT else 's_memtime'} s[{80+2*k}:{81+2*k}]")
def seg(k):
    if "segs" in OPT:
        e("s_memtime s[98:99]")
        e("s_waitcnt lgkmcnt(0)")
        e("s_sub_u32 s100, s98, s79")
        e(f"s_add_u32 s{84+k}, s{84+k}, s100")
        e("s_mov_b32 s79, s98")
def stamp_store(nst, wave_sreg, base_off, wg_sreg=2):
    if not STAMPS: return
    e("s_waitcnt vmcnt(0) lgkmcnt(0)")
    e("s_mov_b64 exec, 1")
    e(f"s_lshl_b32 s98, s{wg_sreg}, 4")
    e(f"s_add_u32 s98, s98, s{wave_sreg}")
    e(f"s_lshl_b32 s98, s98, 7")
    e(f"s_add_u32 s98, s98, {base_off:#x}")
    e("s_add_u32 s96, s26, s98")
    e("s_addc_u32 s97, s27, 0")
    e("v_mov_b32 v0, 0")
    for k in range(nst):
        e(f"v_mov_b32 v2, s{80+2*k}")
        e(f"v_mov_b32 v3, s{81+2*k}")
        e(f"global_store_dwordx2 v0, v[2:3], s[96:97] offset:{8*k}")
        e("s_nop 1")
    e("s_waitcnt vmcnt(0)")
    e("s_mov_b64 exec, -1")

def dpp_scan(v):
    for ctl in ("row_shr:1 row_mask:0xf bank_mask:0xf", "row_shr:2 row_mask:0xf bank_mask:0xf",
                "row_shr:4 row_mask:0xf bank_mask:0xf", "row_shr:8 row_mask:0xf bank_mask:0xf",
                "row_bcast:15 row_mask:0xa bank_mask:0xf", "row_bcast:31 row_mask:0xc bank_mask:0xf"):
        nop(2)
        e(f"v_add_u32_dpp v{v}, v{v}, v{v} {ctl}")

def load_kernargs():
    e("s_load_dwordx16 s[4:19], s[0:1], 0")
    e("s_load_dwordx8 s[20:27], s[0:1], 64")

def add64(d, s, imm):
    e(f"s_add_u32 s{d}, s{s}, {imm:#x}")
    e(f"s_addc_u32 s{d+1}, s{s+1}, 0")

K1_STG, K1_HIST, K1_OFF = 0, 30720, 33280
K1_W = 34304
W_PITCH = 144
W_MAT = 64 * W_PITCH
K1_LDS = K1_W + 4*W_MAT

def WT():
    for o in OPT:
        if o.startswith("wt="): return " " + o[3:].replace("+", " ") if o[3:] != "none" else ""
    return " sc1"

def gen_k1():
    out.append(f".globl {PREP}")
    out.append(".p2align 8")
    out.append(f".type {PREP},@function")
    lab(PREP)
    e(f"s_cmp_ge_u32 s2, {NB}")
    e("s_cbranch_scc1 K1_done")
    stamp(0)
    load_kernargs()
    e("v_readfirstlane_b32 s33, v0")
    e("v_and_b32 v1, 63, v0")
    e("v_and_b32 v60, 0x1ff, v0")
    e("v_lshlrev_b32 v61, 4, v60")
    e("v_lshrrev_b32 v62, 3, v60")
    e(f"v_mul_u32_u24 v62, {W_PITCH}, v62")
    e("v_and_b32 v63, 7, v60")
    e("v_lshl_add_u32 v62, v63, 4, v62")
    e("s_lshr_b32 s33, s33, 6")
    e("s_lshr_b32 s34, s33, 3")
    e(f"s_mul_i32 s35, s34, {W_MAT}")
    e(f"s_add_u32 s35, s35, {K1_W}")
    e("v_add_u32 v62, s35, v62")
    e("v_lshlrev_b32 v3, 2, v0")
    e("v_mov_b32 v20, 0")
    e("s_cmp_ge_u32 s33, 10")
    e("s_cbranch_scc1 K1_tables")
    ldf = " nt" if "ntld" in OPT else ""
    e("s_mul_i32 s28, s2, 10240")
    e("v_lshl_add_u32 v58, v0, 4, s28")
    e("s_lshl_b32 s29, s28, 1")
    e("v_lshl_add_u32 v59, v0, 5, s29")
    e(f"ds_write_b32 v3, v20 offset:{K1_HIST}")
    e("s_waitcnt lgkmcnt(0)")
    e("s_cmp_eq_u32 s34, 0")
    e("s_cselect_b32 s44, s14, s20")
    e("s_cselect_b32 s45, s15, s21")
    e("s_cselect_b32 s46, s12, s18")
    e("s_cselect_b32 s47, s13, s19")
    e(f"global_load_dwordx4 v[4:7], v58, s[10:11]{ldf}")
    e("global_load_dwordx4 v[40:43], v61, s[44:45]")
    e("global_load_dwordx4 v[44:47], v61, s[46:47]")
    e(f"global_load_dwordx4 v[8:11], v58, s[8:9]{ldf}")
    e(f"global_load_dwordx4 v[12:15], v59, s[6:7]{ldf}")
    e(f"global_load_dwordx4 v[16:19], v59, s[6:7] offset:16{ldf}")
    e("s_mov_b32 s30, 52429")
    e("s_movk_i32 s31, -40")
    e("v_mov_b32 v57, 1")
    e("s_barrier")
    e("s_waitcnt vmcnt(5)")
    stamp(1)
    for i in range(4):
        e(f"v_mul_u32_u24 v{20+i}, s30, v{4+i}")
    for i in range(4):
        e(f"v_lshrrev_b32 v{20+i}, 21, v{20+i}")
    for i in range(4):
        e(f"v_mad_i32_i24 v{28+i}, v{20+i}, s31, v{4+i}")
    for i in range(4):
        e(f"v_lshlrev_b32 v{20+i}, 2, v{20+i}")
    for i in range(4):
        e(f"ds_add_rtn_u32 v{24+i}, v{20+i}, v57 offset:{K1_HIST}")
    e("v_lshlrev_b32 v32, 4, v1")
    e("s_waitcnt vmcnt(3)")
    e("ds_write_b128 v62, v[40:43]")
    e(f"ds_write_b128 v62, v[44:47] offset:{2*W_MAT}")
    e("s_waitcnt lgkmcnt(0)")
    e("s_barrier")
    stamp(2)
    e(f"ds_read_b128 v[36:39], v32 offset:{K1_HIST}")
    e("s_waitcnt vmcnt(2)")
    for i in range(4):
        e(f"v_lshlrev_b32 v{8+i}, 8, v{8+i}")
    for i in range(4):
        e(f"v_lshl_or_b32 v{28+i}, v{28+i}, 26, v{8+i}")
    e("s_waitcnt lgkmcnt(0)")
    e("v_add_u32 v40, v36, v37")
    e("v_add_u32 v41, v40, v38")
    e("v_add_u32 v42, v41, v39")
    e("v_mov_b32 v43, v42")
    dpp_scan(43)
    e("v_sub_u32 v44, v43, v42")
    e("v_add_u32 v45, v44, v36")
    e("v_add_u32 v46, v44, v40")
    e("v_add_u32 v47, v44, v41")
    e(f"ds_write_b128 v32, v[44:47] offset:{K1_OFF}")
    for i in range(4):
        e(f"ds_read_b32 v{52+i}, v{20+i} offset:{K1_OFF}")
    e("s_cmp_lg_u32 s33, 0")
    e("s_cbranch_scc1 K1_notab")
    for k in range(4):
        e(f"v_lshl_or_b32 v{48+k}, v{36+k}, 16, v{44+k}")
    e("s_lshl_b32 s34, s2, 10")
    e("v_add_u32 v33, s34, v32")
    add64(36, 26, WS_TAB)
    e(f"global_store_dwordx4 v33, v[48:51], s[36:37]{WT()}")
    lab("K1_notab")
    e("s_waitcnt lgkmcnt(0)")
    for i in range(4):
        e(f"v_add_u32 v{52+i}, v{52+i}, v{24+i}")
    for i in range(4):
        e(f"v_mul_u32_u24 v{52+i}, 12, v{52+i}")
    e("s_waitcnt vmcnt(1)")
    e("s_cmp_lg_u32 s33, 0")
    e("s_cbranch_scc0 K1_attr_ready")
    e("s_waitcnt vmcnt(0)")
    lab("K1_attr_ready")
    for i in range(4):
        e(f"ds_write2_b32 v{52+i}, v{12+2*i}, v{13+2*i} offset0:0 offset1:1")
        e(f"ds_write_b32 v{52+i}, v{28+i} offset:8")
    e("s_mul_i32 s34, s2, %d" % REC_STRIDE)
    add64(38, 26, WS_REC)
    e("s_add_u32 s38, s38, s34")
    e("s_addc_u32 s39, s39, 0")
    add64(40, 38, 10240)
    add64(42, 38, 20480)
    e("v_lshlrev_b32 v3, 4, v0")
    e("s_waitcnt lgkmcnt(0)")
    e("s_barrier")
    stamp(3)
    e("ds_read_b128 v[4:7], v3")
    e("ds_read_b128 v[8:11], v3 offset:10240")
    e("ds_read_b128 v[12:15], v3 offset:20480")
    e("s_waitcnt lgkmcnt(2)")
    if "norec" not in OPT: e(f"global_store_dwordx4 v3, v[4:7], s[38:39]{WT()}")
    e("s_waitcnt lgkmcnt(1)")
    if "norec" not in OPT: e(f"global_store_dwordx4 v3, v[8:11], s[40:41]{WT()}")
    e("s_waitcnt lgkmcnt(0)")
    if "norec" not in OPT: e(f"global_store_dwordx4 v3, v[12:15], s[42:43]{WT()}")
    stamp(4)
    if STAMPS:
        e("s_waitcnt vmcnt(0)")
        stamp(5)
    stamp_store(6, 33, WS_STAMP + 0x100000)
    e("s_endpgm")
    lab("K1_tables")
    e("s_sub_u32 s34, s33, 10")
    e("s_and_b32 s35, s34, 1")
    e("s_lshr_b32 s34, s34, 1")
    e("s_mul_i32 s36, s2, 40")
    e("s_lshl_b32 s37, s34, 4")
    e("s_add_u32 s36, s36, s37")
    e("v_and_b32 v2, 15, v1")
    e("v_lshrrev_b32 v3, 4, v1")
    e("v_add_u32 v60, s36, v2")
    e(f"v_min_u32 v59, {N_NODES-1}, v60")
    e("v_lshlrev_b32 v59, 7, v59")
    e("v_lshl_add_u32 v59, v3, 4, v59")
    e("s_waitcnt lgkmcnt(0)")
    e("global_load_dwordx4 v[40:43], v61, s[20:21]")
    e("global_load_dwordx4 v[44:47], v61, s[18:19]")
    e("global_load_dwordx4 v[20:23], v59, s[4:5]")
    e("global_load_dwordx4 v[24:27], v59, s[4:5] offset:64")
    e("s_barrier")
    e("v_lshrrev_b32 v124, 2, v2")
    e("v_lshl_add_u32 v124, v3, 3, v124")
    e(f"v_mul_u32_u24 v124, {W_PITCH}, v124")
    e("v_and_b32 v63, 3, v2")
    e("v_lshl_add_u32 v124, v63, 3, v124")
    e(f"s_mul_i32 s37, s35, {2*W_MAT}")
    e(f"s_add_u32 s37, s37, {K1_W}")
    e("v_add_u32 v124, s37, v124")
    e(f"s_mul_i32 s37, s35, {WS_T2}")
    e("s_add_u32 s38, s26, s37")
    e("s_addc_u32 s39, s27, 0")
    e(f"s_mov_b32 s40, {NEG_L2E:#x}")
    e("s_brev_b32 s41, 1")
    e("s_mov_b32 s42, 0x7fff0000")
    e("s_waitcnt vmcnt(2)")
    e("ds_write_b128 v62, v[40:43]")
    e(f"ds_write_b128 v62, v[44:47] offset:{2*W_MAT}")
    e("s_waitcnt lgkmcnt(0)")
    stamp(1)
    e("s_barrier")
    stamp(2)
    WB, DB = 28, 92
    def wreg(ft, mp, ks): return WB + 16*ft + 8*mp + 4*ks
    def wreads(ft):
        for mp in range(2):
            for ks in range(2):
                for half in range(2):
                    r = wreg(ft, mp, ks) + 2*half
                    off = mp*W_MAT + (32*ks + 4*half)*W_PITCH + ft*32
                    e(f"ds_read_b64_tr_b16 v[{r}:{r+1}], v124 offset:{off}")
    def mfmas(ft):
        d1, d2 = DB + 8*ft, DB + 8*ft + 4
        e(f"v_mfma_f32_16x16x32_bf16 v[{d1}:{d1+3}], v[{wreg(ft,0,0)}:{wreg(ft,0,0)+3}], v[20:23], 0")
        e(f"v_mfma_f32_16x16x32_bf16 v[{d2}:{d2+3}], v[{wreg(ft,1,0)}:{wreg(ft,1,0)+3}], v[20:23], 0")
        e(f"v_mfma_f32_16x16x32_bf16 v[{d1}:{d1+3}], v[{wreg(ft,0,1)}:{wreg(ft,0,1)+3}], v[24:27], v[{d1}:{d1+3}]")
        e(f"v_mfma_f32_16x16x32_bf16 v[{d2}:{d2+3}], v[{wreg(ft,1,1)}:{wreg(ft,1,1)+3}], v[24:27], v[{d2}:{d2+3}]")
    wreads(0)
    e("s_waitcnt vmcnt(0)")
    for ft in range(4):
        if ft < 3:
            e("s_waitcnt lgkmcnt(0)" if ft == 0 else "s_waitcnt lgkmcnt(0)")
            wreads(ft+1)
        else:
            e("s_waitcnt lgkmcnt(0)")
        mfmas(ft)
    e("s_barrier")
    stamp(3)
    for ft in range(4):
        for r in range(4):
            e(f"v_mul_f32 v{DB+8*ft+r}, s40, v{DB+8*ft+r}")
    e("s_cmp_eq_u32 s35, 0")
    e("s_cbranch_scc1 K1_T")
    for ft in range(4):
        for r in range(4):
            e(f"v_cvt_pk_bf16_f32 v{28+4*ft+r}, v{DB+8*ft+r}, v{DB+8*ft+4+r}")
    e("s_branch K1_store")
    lab("K1_T")
    for ft in range(4):
        b = DB + 8*ft
        e(f"v_cvt_pk_bf16_f32 v{44+2*ft}, v{b}, v{b+1}")
        e(f"v_cvt_pk_bf16_f32 v{45+2*ft}, v{b+2}, v{b+3}")
    for ft in range(4):
        b = DB + 8*ft
        e(f"v_and_b32 v{b}, 0xffff, v{44+2*ft}")
        e(f"v_lshrrev_b32 v{b+1}, 16, v{44+2*ft}")
        e(f"v_and_b32 v{b+2}, 0xffff, v{45+2*ft}")
        e(f"v_lshrrev_b32 v{b+3}, 16, v{45+2*ft}")
    el = [(DB+8*ft+r, DB+8*ft+4+r, 28+4*ft+r, 64+4*ft+r) for ft in range(4) for r in range(4)]
    for lo, hv, o, t in el: e(f"v_and_b32 v{t}, 0x7fffffff, v{hv}")
    for lo, hv, o, t in el: e(f"v_add_u32 v{t}, 0x8000, v{t}")
    for lo, hv, o, t in el: e(f"v_sub_u32_e64 v{t}, v{t}, v{lo} clamp")
    for lo, hv, o, t in el: e(f"v_and_or_b32 v{o}, v{hv}, s41, v{lo}")
    for lo, hv, o, t in el: e(f"v_bfi_b32 v{o}, s42, v{t}, v{o}")
    lab("K1_store")
    e("s_sub_u32 s37, s33, 10")
    e(f"s_mul_i32 s37, s37, {16*272}")
    e(f"s_add_u32 s37, s37, {K1_W}")
    e("v_mul_u32_u24 v60, 272, v2")
    e("v_lshl_add_u32 v60, v3, 4, v60")
    e("v_add_u32 v60, s37, v60")
    e("v_mul_u32_u24 v61, 272, v3")
    e("v_lshl_add_u32 v61, v2, 4, v61")
    e("v_add_u32 v61, s37, v61")
    for ft in range(4):
        e(f"ds_write_b128 v60, v[{28+4*ft}:{31+4*ft}] offset:{ft*64}")
    e("v_add_u32 v62, s36, v3")
    e("v_lshlrev_b32 v62, 8, v62")
    e("v_lshl_add_u32 v62, v2, 4, v62")
    e("s_waitcnt lgkmcnt(0)")
    for i in range(4):
        e(f"ds_read_b128 v[{44+4*i}:{47+4*i}], v61 offset:{i*4*272}")
    if "not2" in OPT:
        e("s_cmp_lg_u32 s35, 0")
        e("s_cbranch_scc1 K1_nost")
    for i in range(4 if "notab" not in OPT else 0):
        if i == 2:
            e("s_cmp_eq_u32 s34, 2")
            e("s_cbranch_scc1 K1_nost")
        e(f"s_waitcnt lgkmcnt({3-i})")
        e(f"global_store_dwordx4 v62, v[{44+4*i}:{47+4*i}], s[38:39] offset:{i*1024}{WT()}")
    lab("K1_nost")
    e("s_mov_b64 exec, -1")
    stamp(4)
    if STAMPS:
        e("s_waitcnt vmcnt(0)")
        stamp(5)
    stamp_store(6, 33, WS_STAMP + 0x100000)
    e("s_sub_u32 s37, s33, 10")
    e("s_or_b32 s37, s37, s2")
    e("s_cmp_lg_u32 s37, 0")
    e("s_cbranch_scc1 K1_done")
    e("v_lshlrev_b32 v2, 2, v1")
    e(f"v_add_u32 v2, {N_NODES*256:#x}, v2")
    e("v_mov_b32 v3, 0x7f00")
    e(f"global_store_dword v2, v3, s[26:27]{WT()}")
    lab("K1_done")
    e("s_endpgm")

ACCN, ACCD = 0, 14336
CNT, MAXC, CN, ZERO = 28672, 28928, 28944, 29008
ZERO_END = 29440
START = 29440
T2L = 29696
AA = 39936
GN = 50432
CAPP = 8160
IDX = GN + 2048
ATTR = IDX + 4*CAPP
K2_LDS = ATTR + 8*CAPP
DUMMY = N_NODES * 256
K2_GRID = 256

V_L, V_L4 = 1, 2
V_AI, V_AE, V_ESTR, V_EBASE = 3, 4, 5, 6
V_DB, V_DESC = 7, 8
V_X = 12
V_END, V_A = 14, 15
T = (16, 32, 48)
D = 64
SEL, EO, BE, ONE = 80, 84, 88, 92
DEN, NUM = 96, 98
V_M = 100
V_F = 104
V_LT2 = 106
V_PF = 108
K2_VGPRS = 112
S_T = 28
S_BIN, S_WAVE, S_P32, S_MAX = 37, 38, 39, 40
S_MASK = 44
S_K0, S_NBLK, S_K, S_CUR, S_D, S_DN, S_LOADED = 60, 61, 62, 63, 64, 65, 66
S_MIX, S_ROW, S_TMP, S_TMP2, S_PERM = 67, 68, 69, 70, 71
S_KC = 72
S_RNG = 76

def slot(i, jj): return 16 + 4*(i + 4*jj)
def smask(i, jj): return S_MASK + 2*(i + 4*jj)

def issue_row_loads(tb):
    for v in range(tb, tb+16):
        if "noload" in OPT: e("s_nop 0")
        else: e(f"buffer_load_dword v{v}, v{v}, s[{S_T}:{S_T+3}], 0 offen")

def warm_table(idle=False):
    kb = 0
    for o in OPT:
        if o.startswith("pf="): kb = int(o[3:])
    if idle: kb = 80 if kb else 0
    if kb == 0: return
    e("s_lshr_b32 s41, s2, 3")
    e("s_mul_i32 s41, s41, 81920")
    e(f"v_lshl_add_u32 v{V_PF+1}, v0, 6, s41")
    tag = "K2_pf%d" % len(out)
    if kb < 64:
        e(f"s_cmp_ge_u32 s{S_WAVE}, {kb // 4}")
        e(f"s_cbranch_scc1 {tag}")
    e(f"global_load_dword v{V_PF}, v{V_PF+1}, s[26:27]")
    if kb > 64:
        e(f"s_cmp_ge_u32 s{S_WAVE}, {(kb - 64) // 4}")
        e(f"s_cbranch_scc1 {tag}")
        e(f"v_add_u32 v{V_PF+1}, 0x10000, v{V_PF+1}")
        e(f"global_load_dword v{V_PF}, v{V_PF+1}, s[26:27]")
    lab(tag)

def idx_reads(tb, blk):
    for q in range(4):
        e(f"ds_read_b128 v[{tb+4*q}:{tb+4*q+3}], v{V_AI} offset:{IDX+64*blk+16*q}")

def attr_read(blk):
    e(f"ds_read_b64 v[{EO}:{EO+1}], v{V_AE} offset:{128*blk}")

def node_rows_read(sdesc):
    for g in range(4):
        e(f"s_bfe_u32 s{S_TMP}, s{sdesc}, {(8 << 16) | (8*g):#x}")
        e(f"s_lshl_b32 s{S_TMP}, s{S_TMP}, 6")
        e(f"v_add_u32 v{V_A}, s{S_TMP}, v{V_LT2}")
        e(f"ds_read_b32 v{V_M+g}, v{V_A}")

def node_rows_pack():
    e(f"v_perm_b32 v{BE+2}, v{V_M+1}, v{V_M}, s{S_PERM}")
    e(f"v_perm_b32 v{BE+3}, v{V_M+3}, v{V_M+2}, s{S_PERM}")

def flush(tag):
    e(f"v_add_u32 v{V_A}, s{S_ROW}, v{V_L4}")
    e(f"v_add_f32 v{V_F}, v{DEN}, v{DEN+1}")
    e(f"v_add_f32 v{V_F+1}, v{NUM}, v{NUM+1}")
    e(f"s_cmp_lg_u32 s{S_P32}, 0")
    e(f"s_cbranch_scc1 {tag}_atomic")
    e(f"ds_write_b32 v{V_A}, v{V_F} offset:{ACCD}")
    e(f"ds_write_b32 v{V_A}, v{V_F+1} offset:{ACCN}")
    lab(f"{tag}_flushed")
    ATOMIC_SITES.append(tag)

ATOMIC_SITES = []
def atomic_flushes():
    for tag in ATOMIC_SITES:
        lab(f"{tag}_atomic")
        e(f"ds_add_f32 v{V_A}, v{V_F} offset:{ACCD}")
        e(f"ds_add_f32 v{V_A}, v{V_F+1} offset:{ACCN}")
        e(f"s_branch {tag}_flushed")

def acc_group(tp, g):
    for k in (2*g, 2*g+1):
        e(f"v_pk_add_f32 v[{DEN}:{DEN+1}], v[{DEN}:{DEN+1}], v[{D+2*k}:{D+2*k+1}]")
        e(f"v_pk_fma_f32 v[{NUM}:{NUM+1}], v[{D+2*k}:{D+2*k+1}], v[{tp+2*k}:{tp+2*k+1}], v[{NUM}:{NUM+1}]")

def acc_group_init(tp, g):
    a = 4*g
    e(f"v_pk_add_f32 v[{DEN}:{DEN+1}], v[{D+a}:{D+a+1}], v[{D+a+2}:{D+a+3}]")
    e(f"v_pk_mul_f32 v[{NUM}:{NUM+1}], v[{D+a}:{D+a+1}], v[{tp+a}:{tp+a+1}]")
    e(f"v_pk_fma_f32 v[{NUM}:{NUM+1}], v[{D+a+2}:{D+a+3}], v[{tp+a+2}:{tp+a+3}], v[{NUM}:{NUM+1}]")

def body(P, main):
    tp, tr = T[P], T[(P+2) % 3]
    tag = f"K2_{'m' if main else 't'}{P}"
    lab(tag)
    if "noprio" not in OPT and not main: e("s_setprio 0")
    e("s_waitcnt lgkmcnt(0)")
    if "nomfma" not in OPT: e(f"v_mfma_f32_32x32x16_bf16 v[{D}:{D+15}], v[{EO}:{EO+3}], v[{BE}:{BE+3}], 0")
    e(f"s_add_u32 s{S_K}, s{S_K}, 1")
    if main and "nolds" not in OPT: idx_reads(tr, P+2)
    if "nolds" not in OPT: attr_read(P+1)
    if P == 2:
        if main: e(f"v_add_u32 v{V_AI}, 0xc0, v{V_AI}")
        e(f"v_add_u32 v{V_AE}, v{V_ESTR}, v{V_AE}")
    e(f"v_readlane_b32 s{S_DN}, v{V_DB}, s{S_K}")
    e(f"s_mov_b32 s{S_MIX}, 0")
    e(f"s_cmp_eq_u32 s{S_DN}, s{S_LOADED}")
    if "noreload" not in OPT: e(f"s_cbranch_scc0 {tag}_reload")
    lab(f"{tag}_loaded")
    early = "late" not in OPT
    if main and early:
        e("s_waitcnt lgkmcnt(1)")
        issue_row_loads(tr)
        e("s_waitcnt vmcnt(32)")
    elif main:
        e("s_waitcnt vmcnt(16)")
    else:
        nop(4)
        e("s_waitcnt vmcnt(0)")
    for q in range(4 if "nomfma" not in OPT else 0):
        e(f"v_mfma_f32_16x16x32_bf16 v[{D+4*q}:{D+4*q+3}], v[{SEL}:{SEL+3}], v[{tp+4*q}:{tp+4*q+3}], v[{D+4*q}:{D+4*q+3}]")
    if main and not early:
        e("s_waitcnt lgkmcnt(1)")
        issue_row_loads(tr)
    else:
        nop(8)
    for v in range(16):
        if "novalu" not in OPT: e(f"v_exp_f32 v{D+v}, v{D+v}")
    nop(2)
    if "nomfma" not in OPT: e(f"v_mfma_f32_32x32x16_bf16 v[{D}:{D+15}], v[{ONE}:{ONE+3}], v[{ONE}:{ONE+3}], v[{D}:{D+15}]")
    e(f"s_cmp_lg_u32 s{S_MIX}, 0")
    e(f"s_cbranch_scc1 {tag}_pack")
    lab(f"{tag}_packed")
    e(f"s_and_b32 s{S_TMP}, s{S_D}, 0xff")
    e(f"s_mul_i32 s{S_TMP}, s{S_TMP}, 0x01010101")
    e(f"s_and_b32 s{S_TMP2}, s{S_D}, 0xff")
    e(f"s_xor_b32 s{S_TMP}, s{S_TMP}, s{S_D}")
    e(f"s_xor_b32 s{S_TMP2}, s{S_TMP2}, s{S_CUR}")
    e(f"s_or_b32 s{S_TMP}, s{S_TMP}, s{S_TMP2}")
    nop(4)
    for v in range(16):
        if "novalu" not in OPT: e(f"v_rcp_f32 v{D+v}, v{D+v}")
    if "noslow" not in OPT: e(f"s_cbranch_scc1 {tag}_slow")
    if "novalu" not in OPT:
        for g in range(4): acc_group(tp, g)
    lab(f"{tag}_next")
    e(f"s_mov_b32 s{S_D}, s{S_DN}")
    nP = (P+1) % 3
    if main:
        e(f"s_add_u32 s{S_TMP}, s{S_K}, 2")
        e(f"s_cmp_lt_u32 s{S_TMP}, s{S_NBLK}")
        e(f"s_cbranch_scc0 K2_t{nP}")
        if P == 2:
            if "noprio" not in OPT:
                e(f"s_cmp_lt_u32 s{S_K}, 6")
                e("s_cbranch_scc0 K2_prio1")
                e("s_setprio 2")
                e("s_branch K2_m0")
                lab("K2_prio1")
                e("s_setprio 1")
            e("s_branch K2_m0")
    else:
        e(f"s_cmp_lt_u32 s{S_K}, s{S_NBLK}")
        e("s_cbranch_scc0 K2_range_end")
        if P == 2: e("s_branch K2_t0")

def body_outlined(P, main):
    tp = T[P]
    tag = f"K2_{'m' if main else 't'}{P}"
    lab(f"{tag}_reload")
    e(f"s_mov_b32 s{S_LOADED}, s{S_DN}")
    e(f"s_and_b32 s{S_TMP}, s{S_DN}, 0xff")
    e(f"s_mul_i32 s{S_TMP2}, s{S_TMP}, 0x01010101")
    e(f"s_cmp_eq_u32 s{S_TMP2}, s{S_DN}")
    e(f"s_cbranch_scc0 {tag}_mixed")
    e(f"s_lshl_b32 s{S_TMP}, s{S_TMP}, 6")
    e(f"v_add_u32 v{V_A}, s{S_TMP}, v{V_LT2}")
    e(f"ds_read2_b32 v[{BE+2}:{BE+3}], v{V_A} offset0:0 offset1:0")
    e(f"s_branch {tag}_loaded")
    lab(f"{tag}_mixed")
    node_rows_read(S_DN)
    e(f"s_mov_b32 s{S_MIX}, 1")
    e(f"s_branch {tag}_loaded")
    lab(f"{tag}_pack")
    e("s_waitcnt lgkmcnt(0)")
    node_rows_pack()
    e(f"s_branch {tag}_packed")
    lab(f"{tag}_slow")
    for g in range(4):
        e(f"s_bfe_u32 s{S_TMP2}, s{S_D}, {(8 << 16) | (8*g):#x}")
        e(f"s_cmp_eq_u32 s{S_TMP2}, s{S_CUR}")
        e(f"s_cbranch_scc0 {tag}_new{g}")
        acc_group(tp, g)
        lab(f"{tag}_g{g}")
    e(f"s_branch {tag}_next")
    for g in range(4):
        lab(f"{tag}_new{g}")
        flush(f"{tag}_f{g}")
        e(f"s_mov_b32 s{S_CUR}, s{S_TMP2}")
        e(f"s_lshl_b32 s{S_ROW}, s{S_TMP2}, 6")
        acc_group_init(tp, g)
        e(f"s_branch {tag}_g{g}")

def gen_k2():
    out.append(f".globl {MAIN}")
    out.append(".p2align 8")
    out.append(f".type {MAIN},@function")
    lab(MAIN)
    e(f"s_cmp_ge_u32 s2, {K2_GRID}")
    e("s_cbranch_scc1 K2_done")
    e("s_and_b32 s3, s2, 7")
    e("s_lshl_b32 s3, s3, 5")
    e(f"s_lshr_b32 s{S_BIN}, s2, 3")
    e(f"s_add_u32 s{S_BIN}, s{S_BIN}, s3")
    stamp(0)
    load_kernargs()
    e(f"s_cmp_ge_u32 s{S_BIN}, {NB}")
    e("s_cbranch_scc1 K2_idle")
    e(f"v_readfirstlane_b32 s{S_WAVE}, v0")
    e(f"v_and_b32 v{V_L}, 63, v0")
    e(f"v_lshlrev_b32 v{V_L4}, 2, v{V_L}")
    e(f"s_lshr_b32 s{S_WAVE}, s{S_WAVE}, 6")
    e(f"s_and_b32 s{S_RNG}, s{S_WAVE}, 3")
    e(f"s_lshl_b32 s{S_RNG}, s{S_RNG}, 2")
    e(f"s_lshr_b32 s41, s{S_WAVE}, 2")
    e(f"s_add_u32 s{S_RNG}, s{S_RNG}, s41")
    e(f"v_lshrrev_b32 v64, 4, v{V_L}")
    e(f"s_lshl_b32 s{S_TMP}, s{S_WAVE}, 2")
    e(f"v_add_u32 v64, s{S_TMP}, v64")
    e("v_lshlrev_b32 v64, 2, v64")
    e(f"s_lshl_b32 s41, s{S_BIN}, 2")
    e("v_lshl_add_u32 v65, v64, 10, s41")
    e(f"v_lshlrev_b32 v66, 1, v{V_L}")
    e("s_waitcnt lgkmcnt(0)")
    add64(32, 26, WS_TAB)
    for i in range(4):
        e(f"global_load_dword v{V_DESC+i}, v65, s[32:33] offset:{1024*i}")
    for c in range(4):
        e(f"global_load_ushort v{72+c}, v66, s[16:17] offset:{128*c}")
    add64(34, 26, WS_REC)
    e(f"s_cmp_ge_u32 s{S_WAVE}, 10")
    e("s_cbranch_scc1 K2_no_t2")
    e(f"s_mul_i32 s41, s{S_BIN}, 10240")
    e("v_lshl_add_u32 v66, v0, 4, s41")
    add64(42, 26, WS_T2)
    e("global_load_dwordx4 v[68:71], v66, s[42:43]")
    e(f"s_mul_i32 s41, s{S_BIN}, 5120")
    e("v_lshl_add_u32 v66, v0, 3, s41")
    e(f"global_load_dwordx2 v[{V_X}:{V_X+1}], v66, s[4:5]")
    lab("K2_no_t2")
    e(f"s_mov_b32 s{S_T}, s26")
    e(f"s_and_b32 s{S_T+1}, s27, 0xffff")
    e(f"s_or_b32 s{S_T+1}, s{S_T+1}, 0x40000")
    e(f"s_mov_b32 s{S_T+2}, {(N_NODES+1)*256}")
    e(f"s_mov_b32 s{S_T+3}, 0x00800000")
    for r in range(76, 80):
        e(f"v_mov_b32 v{r}, 0")
    e("v_lshlrev_b32 v67, 4, v0")
    e("ds_write_b128 v67, v[76:79]")
    e(f"v_cmp_gt_u32 vcc, {(ZERO_END-16384)//16}, v0")
    e("s_mov_b64 exec, vcc")
    e("ds_write_b128 v67, v[76:79] offset:16384")
    e("s_mov_b64 exec, -1")
    e(f"v_and_b32 v16, 31, v{V_L}")
    e(f"v_lshrrev_b32 v17, 5, v{V_L}")
    e("v_bfe_u32 v18, v16, 2, 1")
    e("v_lshrrev_b32 v19, 3, v16")
    e("v_and_b32 v16, 3, v16")
    e("v_lshl_add_u32 v16, v19, 2, v16")
    e("v_cmp_eq_u32 vcc, v17, v18")
    e("v_mov_b32 v20, 0x80")
    e("v_lshlrev_b32 v16, 3, v16")
    e(f"v_cndmask_b32 v{V_ESTR}, 0, v20, vcc")
    e(f"v_add_u32 v16, {ATTR}, v16")
    e(f"v_mov_b32 v20, {ZERO}")
    e(f"v_cndmask_b32 v{V_EBASE}, v20, v16, vcc")
    e("v_and_b32 v21, 1, v19")
    e("v_lshlrev_b32 v21, 4, v21")
    e("v_mov_b32 v22, 0x3f80")
    e("v_lshlrev_b32 v21, v21, v22")
    e("v_cndmask_b32 v21, 0, v21, vcc")
    e("v_cmp_gt_u32 vcc, 2, v19")
    e(f"v_mov_b32 v{ONE+1}, 0")
    e(f"v_mov_b32 v{ONE+2}, 0")
    e(f"v_cndmask_b32 v{EO+2}, 0, v21, vcc")
    e(f"v_sub_u32 v{EO+3}, v21, v{EO+2}")
    e(f"v_cmp_gt_u32 vcc, 32, v{V_L}")
    e(f"v_mov_b32 v{ONE+3}, 0")
    e(f"v_add_u32 v{V_LT2}, {AA}, v{V_L4}")
    e(f"v_cndmask_b32 v{ONE}, 0, v22, vcc")
    e(f"v_bfe_u32 v16, v{V_L}, 2, 2")
    e(f"v_lshrrev_b32 v17, 4, v{V_L}")
    e(f"v_and_b32 v18, 3, v{V_L}")
    e("v_cmp_eq_u32 vcc, v16, v17")
    e("v_mov_b32 v19, 31")
    e(f"s_mov_b32 s{S_PERM}, 0x05040100")
    e("v_cndmask_b32 v18, v19, v18, vcc")
    e("v_lshlrev_b32 v18, v18, 1")
    for k in range(4):
        e(f"v_bfe_u32 v{SEL+k}, v18, {k}, 1")
    for k in range(4):
        e(f"v_mul_u32_u24 v{SEL+k}, v22, v{SEL+k}")
    for i in range(4):
        e(f"s_mov_b32 s{S_KC+i}, {i*REC_STRIDE}")
    e(f"s_mov_b32 s{S_P32}, 0")
    e("s_waitcnt vmcnt(4)")
    stamp(1)
    for i in range(4):
        e(f"v_add_u32 v{16+i}, {i}, v64")
    e(f"s_movk_i32 s41, {NB}")
    for i in range(4):
        e(f"v_cmp_gt_u32 s[{S_MASK+2*i}:{S_MASK+2*i+1}], s41, v{16+i}")
    nop(1)
    for i in range(4):
        e(f"v_cndmask_b32 v{V_DESC+i}, 0, v{V_DESC+i}, s[{S_MASK+2*i}:{S_MASK+2*i+1}]")

    def slot_loads(jj):
        vj = 76 + jj
        for i in range(4):
            r, m = slot(i, jj), smask(i, jj)
            e(f"v_lshrrev_b32 v79, 16, v{V_DESC+i}")
            e(f"v_cmp_gt_u32 s[{m}:{m+1}], v79, v{vj}")
            e(f"v_and_b32 v79, 0xffff, v{V_DESC+i}")
            e(f"v_add3_u32 v79, v79, v{vj}, v78")
            e(f"v_mad_u32_u24 v79, v79, 12, s{S_KC+i}")
            e(f"s_mov_b64 exec, s[{m}:{m+1}]")
            e(f"global_load_dwordx3 v[{r}:{r+2}], v79, s[34:35]")
            e("s_mov_b64 exec, -1")
    def pass_addr():
        e(f"v_lshrrev_b32 v78, 4, v{V_L}")
        e(f"s_lshl_b32 s{S_TMP}, s{S_WAVE}, 2")
        e(f"v_add_u32 v78, s{S_TMP}, v78")
        e(f"v_mul_u32_u24 v78, {4*EPC}, v78")
        e(f"v_and_b32 v76, 15, v{V_L}")
        e(f"v_add_u32 v76, s{S_P32}, v76")
        e("v_add_u32 v77, 16, v76")
    lab("K2_pass")
    pass_addr()
    slot_loads(0)
    for i in range(4):
        e(f"s_mov_b64 s[{smask(i,1)}:{smask(i,1)+1}], 0")
    e(f"v_lshrrev_b32 v79, 16, v{V_DESC}")
    e(f"v_lshrrev_b32 v{V_A}, 16, v{V_DESC+1}")
    e(f"v_max_u32 v79, v79, v{V_A}")
    e(f"v_lshrrev_b32 v{V_A}, 16, v{V_DESC+2}")
    e(f"v_max_u32 v79, v79, v{V_A}")
    e(f"v_lshrrev_b32 v{V_A}, 16, v{V_DESC+3}")
    e(f"v_max_u32 v{V_DB}, v79, v{V_A}")
    e(f"v_cmp_gt_u32 vcc, v{V_DB}, v77")
    e(f"s_mov_b32 s{S_MIX}, 0")
    e("s_cbranch_vccz K2_no_second")
    slot_loads(1)
    e(f"s_mov_b32 s{S_MIX}, 1")
    lab("K2_no_second")
    e(f"s_cmp_lg_u32 s{S_P32}, 0")
    e("s_cbranch_scc1 K2_tables_done")
    e("s_waitcnt vmcnt(4)")
    e(f"s_cmp_ge_u32 s{S_WAVE}, 10")
    e("s_cbranch_scc1 K2_no_t2w")
    e(f"ds_write_b128 v67, v[68:71] offset:{T2L}")
    e(f"s_mov_b32 s{S_TMP}, 0x01000100")
    for r in range(4):
        e(f"v_perm_b32 v{68+r}, v{68+r}, v{68+r}, s{S_TMP}")
    e(f"ds_write_b128 v67, v[68:71] offset:{AA}")
    lab("K2_no_t2w")
    e(f"v_mov_b32 v68, 0")
    e(f"ds_write_b32 v{V_L4}, v68 offset:{AA + 40*256}")
    e(f"s_mov_b32 s{S_TMP}, {NEG_L2E:#x}")
    for c in range(4):
        e(f"v_lshlrev_b32 v{72+c}, 16, v{72+c}")
    for c in range(4):
        e(f"v_mul_f32 v{72+c}, s{S_TMP}, v{72+c}")
    e(f"v_cvt_pk_bf16_f32 v{BE}, v72, v73")
    e(f"v_cvt_pk_bf16_f32 v{BE+1}, v74, v75")
    e("s_waitcnt lgkmcnt(0)")
    e("s_barrier")
    e(f"v_cmp_lt_u32 vcc, 32, v{V_DB}")
    e("s_cbranch_vccz K2_tables_done")
    e(f"v_mov_b32 v79, {MAXC}")
    e(f"ds_max_u32 v79, v{V_DB}")
    lab("K2_tables_done")

    def for_slots(fn, name):
        for i in range(4):
            m = smask(i, 0)
            e(f"s_mov_b64 exec, s[{m}:{m+1}]")
            fn(i, 0, slot(i, 0))
        e("s_mov_b64 exec, -1")
        e(f"s_cmp_eq_u32 s{S_MIX}, 0")
        e(f"s_cbranch_scc1 K2_{name}_skip")
        for i in range(4):
            m = smask(i, 1)
            e(f"s_mov_b64 exec, s[{m}:{m+1}]")
            fn(i, 1, slot(i, 1))
        e("s_mov_b64 exec, -1")
        lab(f"K2_{name}_skip")
    e("v_mov_b32 v78, 1")
    e("s_waitcnt vmcnt(0)")
    warm_table()
    stamp(2)
    def cnt_fn(i, jj, r):
        t = D + i + 4*jj
        e(f"v_lshrrev_b32 v{t}, 24, v{r+2}")
        e(f"ds_add_rtn_u32 v{r+3}, v{t}, v78 offset:{CNT}")
    for_slots(cnt_fn, "cnt")
    e("s_waitcnt lgkmcnt(0)")
    e("s_barrier")
    stamp(3)
    e(f"ds_read_b32 v76, v{V_L4} offset:{CNT}")
    e(f"v_mov_b32 v79, {MAXC}")
    e("ds_read_b32 v79, v79")
    e("s_waitcnt lgkmcnt(0)")
    e(f"v_readfirstlane_b32 s{S_MAX}, v79")
    e("v_add_u32 v77, 3, v76")
    e("v_and_b32 v77, -4, v77")
    e(f"v_mov_b32 v{V_END}, v77")
    dpp_scan(V_END)
    e(f"v_sub_u32 v75, v{V_END}, v77")
    e(f"ds_write_b32 v{V_L4}, v75 offset:{START}")
    def st_fn(i, jj, r):
        t = D + i + 4*jj
        e(f"ds_read_b32 v{T[2]+i+4*jj}, v{t} offset:{START}")
    for_slots(st_fn, "st")
    e(f"v_readlane_b32 s{S_NBLK}, v{V_END}, 63")
    e(f"s_cmp_lg_u32 s{S_WAVE}, 15")
    e("s_cbranch_scc1 K2_nopad")
    e("v_add_u32 v75, v75, v76")
    e(f"v_mov_b32 v74, {DUMMY:#x}")
    e("v_mov_b32 v72, 0")
    e("v_mov_b32 v73, 0")
    def pad_write(cond_hi):
        e(f"v_cmp_lt_u32 vcc, v75, {cond_hi}")
        e("v_lshlrev_b32 v79, 2, v75")
        e("v_lshlrev_b32 v78, 3, v75")
        e(f"v_add_u32 v78, {ATTR}, v78")
        e("s_mov_b64 exec, vcc")
        e(f"ds_write_b32 v79, v74 offset:{IDX}")
        e("ds_write_b64 v78, v[72:73]")
        e("s_mov_b64 exec, -1")
    for k in range(3):
        pad_write(f"v{V_END}")
        e("v_add_u32 v75, 1, v75")
    e(f"s_add_u32 s{S_TMP}, s{S_NBLK}, 15")
    e(f"s_and_b32 s{S_TMP}, s{S_TMP}, -16")
    e(f"v_mov_b32 v77, s{S_TMP}")
    e(f"v_add_u32 v75, s{S_NBLK}, v{V_L}")
    pad_write("v77")
    e("v_lshrrev_b32 v75, 2, v75")
    e("v_mov_b32 v74, 160")
    e("s_mov_b64 exec, vcc")
    e(f"ds_write_b8 v75, v74 offset:{GN}")
    e("s_mov_b64 exec, -1")
    lab("K2_nopad")
    e("s_waitcnt lgkmcnt(0)")
    e(f"s_mov_b32 s{S_TMP2}, {ATTR}")
    def sc_fn(i, jj, r):
        t = D + i + 4*jj
        p = T[2] + i + 4*jj
        e(f"v_add_u32 v{p}, v{p}, v{r+3}")
        e(f"v_and_b32 v{r+2}, 0xffffff, v{r+2}")
        e(f"v_lshl_add_u32 v{r+3}, v{p}, 3, s{S_TMP2}")
        e(f"ds_write_b64 v{r+3}, v[{r}:{r+1}]")
        e(f"v_lshrrev_b32 v{r+3}, 2, v{p}")
        e(f"v_lshlrev_b32 v{p}, 2, v{p}")
        e(f"ds_write_b32 v{p}, v{r+2} offset:{IDX}")
        e(f"ds_write_b8 v{r+3}, v{t} offset:{GN}")
    for_slots(sc_fn, "sc")
    e("s_waitcnt lgkmcnt(0)")
    e("s_barrier")
    stamp(4)
    e(f"s_add_u32 s{S_TMP}, s{S_NBLK}, 15")
    e(f"s_lshr_b32 s{S_TMP}, s{S_TMP}, 4")
    e(f"s_mul_i32 s{S_K0}, s{S_TMP}, s{S_RNG}")
    e(f"s_add_u32 s{S_NBLK}, s{S_K0}, s{S_TMP}")
    e(f"s_lshr_b32 s{S_K0}, s{S_K0}, 4")
    e(f"s_lshr_b32 s{S_NBLK}, s{S_NBLK}, 4")
    e(f"s_sub_u32 s{S_NBLK}, s{S_NBLK}, s{S_K0}")
    e(f"s_cmp_eq_u32 s{S_NBLK}, 0")
    e("s_cbranch_scc1 K2_empty_range")
    e(f"v_add_u32 v{V_A}, s{S_K0}, v{V_L}")
    e(f"v_lshlrev_b32 v{V_A}, 2, v{V_A}")
    e(f"ds_read_b32 v{V_DB}, v{V_A} offset:{GN}")
    e(f"ds_read_b32 v{V_F}, v{V_A} offset:{GN-4}")
    e(f"s_lshl_b32 s{S_TMP}, s{S_K0}, 6")
    e(f"v_mov_b32 v{V_AI}, s{S_TMP}")
    e(f"v_mad_u32_u24 v{V_AE}, v{V_ESTR}, s{S_K0}, v{V_EBASE}")
    idx_reads(T[0], 0)
    idx_reads(T[1], 1)
    attr_read(0)
    e(f"v_mul_u32_u24 v{V_ESTR}, 3, v{V_ESTR}")
    for r in (DEN, DEN+1, NUM, NUM+1):
        e(f"v_mov_b32 v{r}, 0")
    e("s_waitcnt lgkmcnt(0)")
    e(f"v_readlane_b32 s{S_D}, v{V_DB}, 0")
    issue_row_loads(T[0])
    node_rows_read(S_D)
    e(f"s_mov_b32 s{S_LOADED}, s{S_D}")
    e(f"s_and_b32 s{S_CUR}, s{S_D}, 0xff")
    e(f"s_lshl_b32 s{S_ROW}, s{S_CUR}, 6")
    e(f"s_cmp_lg_u32 s{S_P32}, 0")
    e("s_cbranch_scc1 K2_carry_done")
    e(f"v_readlane_b32 s{S_TMP2}, v{V_F}, 0")
    e(f"s_add_u32 s{S_MIX}, s{S_RNG}, 40")
    e(f"s_lshl_b32 s{S_MIX}, s{S_MIX}, 8")
    e(f"s_lshr_b32 s{S_TMP2}, s{S_TMP2}, 24")
    e(f"s_cmp_eq_u32 s{S_K0}, 0")
    e(f"s_cselect_b32 s{S_TMP2}, 0x100, s{S_TMP2}")
    e(f"s_cmp_eq_u32 s{S_TMP2}, s{S_CUR}")
    e(f"s_cselect_b32 s{S_ROW}, s{S_MIX}, s{S_ROW}")
    e(f"s_cselect_b32 s{S_TMP2}, s{S_CUR}, 0xff")
    e(f"s_lshl_b32 s{S_TMP}, s{S_RNG}, 2")
    e(f"v_mov_b32 v{V_A}, s{S_TMP}")
    e(f"v_mov_b32 v{V_F}, s{S_TMP2}")
    e(f"ds_write_b32 v{V_A}, v{V_F} offset:{CN}")
    lab("K2_carry_done")
    e(f"s_mov_b32 s{S_K}, 0")
    e(f"s_cmp_lt_u32 s{S_NBLK}, 2")
    e("s_cbranch_scc1 K2_one_block")
    issue_row_loads(T[1])
    lab("K2_one_block")
    e("s_waitcnt lgkmcnt(0)")
    node_rows_pack()
    if "noprio" not in OPT: e("s_setprio 3")
    e(f"s_cmp_gt_u32 s{S_NBLK}, 2")
    e("s_cbranch_scc0 K2_t0")
    for P in range(3): body(P, True)
    for P in range(3): body(P, False)
    for P in range(3): body_outlined(P, True)
    for P in range(3): body_outlined(P, False)
    atomic_flushes()
    lab("K2_range_end")
    ATOMIC_SITES.clear()
    flush("K2_last")
    e("s_branch K2_main_done")
    lab("K2_empty_range")
    e(f"s_cmp_lg_u32 s{S_P32}, 0")
    e("s_cbranch_scc1 K2_main_done")
    e(f"s_lshl_b32 s{S_TMP}, s{S_RNG}, 2")
    e(f"v_mov_b32 v{V_A}, s{S_TMP}")
    e(f"v_mov_b32 v{V_F}, 0xff")
    e(f"ds_write_b32 v{V_A}, v{V_F} offset:{CN}")
    lab("K2_main_done")
    if "noprio" not in OPT: e("s_setprio 0")
    stamp(5)
    e(f"s_add_u32 s{S_P32}, s{S_P32}, 32")
    e(f"s_cmp_ge_u32 s{S_P32}, s{S_MAX}")
    e("s_cbranch_scc1 K2_final")
    e(f"s_cmp_lg_u32 s{S_WAVE}, 0")
    e("s_cbranch_scc1 K2_nozc")
    e("v_mov_b32 v76, 0")
    e(f"ds_write_b32 v{V_L4}, v76 offset:{CNT}")
    lab("K2_nozc")
    e(f"v_cmp_ne_u32 vcc, 0, v{V_ESTR}")
    e("v_mov_b32 v76, 0x80")
    nop(1)
    e(f"v_cndmask_b32 v{V_ESTR}, 0, v76, vcc")
    e("s_waitcnt lgkmcnt(0)")
    e("s_barrier")
    e("s_branch K2_pass")
    lab("K2_final")
    e("s_waitcnt lgkmcnt(0)")
    e("s_barrier")
    stamp(6)
    e(f"s_cmp_ge_u32 s{S_WAVE}, 10")
    e("s_cbranch_scc1 K2_end")
    e("v_lshlrev_b32 v67, 4, v0")
    e(f"ds_read_b128 v[16:19], v67 offset:{ACCN}")
    e(f"ds_read_b128 v[20:23], v67 offset:{ACCD}")
    e(f"ds_read_b128 v[24:27], v67 offset:{T2L}")
    e(f"v_and_b32 v30, 15, v{V_L}")
    e("v_lshlrev_b32 v31, 2, v30")
    e(f"ds_read_b32 v31, v31 offset:{CN}")
    e(f"s_mul_i32 s41, s{S_BIN}, 5120")
    e("v_lshl_add_u32 v66, v0, 3, s41")
    e("s_mov_b32 s42, 0x358637bd")
    e("v_lshrrev_b32 v32, 4, v0")
    e("v_lshlrev_b32 v32, 2, v32")
    e("v_lshlrev_b32 v33, 4, v30")
    e("s_waitcnt lgkmcnt(0)")
    e("v_lshrrev_b32 v34, 4, v31")
    e(f"v_cmp_eq_u32 vcc, s{S_WAVE}, v34")
    e("s_and_b32 s44, vcc_lo, 0xffff")
    lab("K2_merge")
    e("s_cmp_eq_u32 s44, 0")
    e("s_cbranch_scc1 K2_merged")
    e("s_ff1_i32_b32 s45, s44")
    e("s_bitset0_b32 s44, s45")
    e("v_readlane_b32 s46, v31, s45")
    e("s_add_u32 s45, s45, 40")
    e("s_lshl_b32 s45, s45, 8")
    e("v_add_u32 v35, s45, v33")
    e(f"ds_read_b128 v[36:39], v35 offset:{ACCN}")
    e(f"ds_read_b128 v[40:43], v35 offset:{ACCD}")
    e("v_cmp_eq_u32 vcc, s46, v32")
    e("s_waitcnt lgkmcnt(0)")
    e("s_mov_b64 exec, vcc")
    for r in range(4):
        e(f"v_add_f32 v{16+r}, v{16+r}, v{36+r}")
        e(f"v_add_f32 v{20+r}, v{20+r}, v{40+r}")
    e("s_mov_b64 exec, -1")
    e("s_branch K2_merge")
    lab("K2_merged")
    for r in range(4):
        e(f"v_add_f32 v{20+r}, s42, v{20+r}")
    for r in range(4):
        e(f"v_rcp_f32 v{20+r}, v{20+r}")
    for r in range(4):
        e(f"v_and_b32 v{24+r}, 0xffff0000, v{24+r}")
    for r in range(4):
        e(f"v_fma_f32 v{16+r}, v{16+r}, v{20+r}, v{24+r}")
    for r in range(4):
        e(f"v_mul_f32 v{20+r}, 0, v{16+r}")
    for r in range(4):
        e(f"v_cmp_lt_f32 vcc, 0, v{16+r}")
        nop(2)
        e(f"v_cndmask_b32 v{16+r}, v{20+r}, v{16+r}, vcc")
    e(f"v_lshlrev_b32 v24, 16, v{V_X}")
    e(f"v_and_b32 v25, 0xffff0000, v{V_X}")
    e(f"v_lshlrev_b32 v26, 16, v{V_X+1}")
    e(f"v_and_b32 v27, 0xffff0000, v{V_X+1}")
    for r in range(4):
        e(f"v_add_f32 v{16+r}, v{16+r}, v{24+r}")
    e("v_cvt_pk_bf16_f32 v28, v16, v17")
    e("v_cvt_pk_bf16_f32 v29, v18, v19")
    e("global_store_dwordx2 v66, v[28:29], s[22:23]")
    lab("K2_end")
    stamp(7)
    stamp_store(8, S_WAVE, WS_STAMP, S_BIN)
    lab("K2_done")
    e("s_endpgm")
    lab("K2_idle")
    e(f"v_readfirstlane_b32 s{S_WAVE}, v0")
    e("s_waitcnt lgkmcnt(0)")
    e(f"s_lshr_b32 s{S_WAVE}, s{S_WAVE}, 6")
    warm_table(idle=True)
    e("s_endpgm")
    atomic_flushes()

def gen_diag(spec):
    ka, sa, ra, kb, sb, rb = spec
    out.append(".globl diag_kernel")
    out.append(".p2align 8")
    out.append(".type diag_kernel,@function")
    lab("diag_kernel")
    e("s_cmp_ge_u32 s2, 1")
    e("s_cbranch_scc1 DG_done")
    e("s_load_dwordx2 s[26:27], s[0:1], 88")
    e("s_waitcnt lgkmcnt(0)")
    e(f"s_add_u32 s4, s26, {WS_STAMP + 0x100000:#x}")
    e("s_addc_u32 s5, s27, 0")
    e("s_load_dword s20, s[4:5], 0")
    e("v_mov_b32 v20, 0")
    e("v_mov_b32 v21, 0x7fffffff")
    e("v_mov_b32 v22, 0x80000000")
    e(f"ds_write_b32 v20, v{21 if ra == 'min' else 22} offset:0")
    e(f"ds_write_b32 v20, v{21 if rb == 'min' else 22} offset:4")
    e("s_waitcnt lgkmcnt(0)")
    e("s_barrier")
    def reduce(kern, st, red, off, tag):
        base = WS_STAMP + (0x100000 if kern[0] == '1' else 0)
        w0, w1, nw = {'1b': (0, 250, 10), '1t': (0, 250, 16), '1': (0, 250, 16), '2': (0, 250, 16)}[kern]
        e(f"s_add_u32 s4, s26, {base + 8*st:#x}")
        e("s_addc_u32 s5, s27, 0")
        for r in range(6):
            e(f"v_add_u32 v1, {w0*16 + 1024*r}, v0")
            e("v_and_b32 v3, 15, v1")
            e(f"v_cmp_gt_u32 vcc, {nw}, v3")
            e(f"v_cmp_gt_u32 s[10:11], s30, v1".replace("s30", "s30"))
            e("s_and_b64 vcc, vcc, s[10:11]")
            e("s_and_saveexec_b64 s[12:13], vcc")
            e(f"s_cbranch_execz DG_{tag}{r}")
            e("v_lshlrev_b32 v1, 7, v1")
            e("global_load_dword v2, v1, s[4:5]")
            e("s_waitcnt vmcnt(0)")
            e("v_subrev_u32 v2, s20, v2")
            e(f"ds_{red}_i32 v20, v2 offset:{off}")
            lab(f"DG_{tag}{r}")
            e("s_mov_b64 exec, s[12:13]")
    def bound(kern):
        w1 = 250
        e(f"s_mov_b32 s30, {w1*16}")
    bound(ka); reduce(ka, sa, ra, 0, "a")
    bound(kb); reduce(kb, sb, rb, 4, "b")
    e("s_waitcnt lgkmcnt(0)")
    e("s_barrier")
    e("ds_read_b64 v[4:5], v20")
    e("s_waitcnt lgkmcnt(0)")
    e("v_readfirstlane_b32 s21, v4")
    e("v_readfirstlane_b32 s12, v5")
    e("s_nop 3")
    e("s_sub_u32 s22, s12, s21")
    e("s_max_i32 s22, s22, 0")
    e("s_min_i32 s22, s22, 4000")
    e("s_mul_i32 s22, s22, 20")
    e("s_memrealtime s[14:15]")
    e("s_waitcnt lgkmcnt(0)")
    lab("DG_spin")
    e("s_memrealtime s[16:17]")
    e("s_waitcnt lgkmcnt(0)")
    e("s_sub_u32 s18, s16, s14")
    e("s_cmp_lt_u32 s18, s22")
    e("s_cbranch_scc1 DG_spin")
    lab("DG_done")
    e("s_endpgm")

def kd(name, vgpr, sgpr):
    out.append(".p2align 6")
    out.append(f".amdhsa_kernel {name}")
    out.append(f"  .amdhsa_next_free_vgpr {vgpr}")
    out.append(f"  .amdhsa_next_free_sgpr {sgpr}")
    out.append(f"  .amdhsa_accum_offset {(vgpr+3)//4*4}")
    out.append("  .amdhsa_group_segment_fixed_size 0")
    out.append("  .amdhsa_kernarg_size 96")
    out.append("  .amdhsa_user_sgpr_count 2")
    out.append("  .amdhsa_user_sgpr_kernarg_segment_ptr 1")
    out.append("  .amdhsa_system_sgpr_workgroup_id_x 1")
    out.append(".end_amdhsa_kernel")

HEADER = f"""; Kernarg layout (96 bytes, ptrs only, base s[0:1]):
; @launch kernel={PREP} grid=({NB},1,1) block=(1024,1,1) lds={K1_LDS}
; @launch kernel={MAIN} grid=({K2_GRID},1,1) block=(1024,1,1) lds={K2_LDS}
.amdgcn_target "amdgcn-amd-amdhsa--gfx950"
.text"""

def main():
    global STAMPS
    if "--stamps" in sys.argv:
        STAMPS = True
        sys.argv.remove("--stamps")
    for a in list(sys.argv):
        if a.startswith("--opt="):
            OPT.update(a[6:].split(","))
            sys.argv.remove(a)
    diag = [o for o in OPT if o.startswith("diag=")]
    hdr = HEADER
    if diag:
        hdr = hdr.replace(".amdgcn_target", "; @launch kernel=diag_kernel grid=(1,1,1) block=(1024,1,1) lds=64\n.amdgcn_target")
    out.append(hdr)
    gen_k1()
    gen_k2()
    if diag: gen_diag([int(x) if x.isdigit() and i in (1, 4) else x for i, x in enumerate(diag[0][5:].split(":"))])
    out.append('.section .rodata,"a"')
    if diag: kd("diag_kernel", 32, 48)
    kd(PREP, 128, 102 if STAMPS else 56)
    kd(MAIN, K2_VGPRS, 102 if STAMPS else 80)
    path = sys.argv[1] if len(sys.argv) > 1 else "standalone__edge_featured_mpnn_gatedgcn__graph.s"
    open(path, "w").write("\n".join(out) + "\n")
    print("wrote", path, len(out), "lines")

if __name__ == "__main__":
    main()
```

```python
import sys

MAIN = "standalone__edge_featured_mpnn_gatedgcn__graph_kernel"
PREP = "gcn_prep_kernel"

N_NODES = 10000
NB = 250
EPC = 2560
NPB = 40
WS_T = 0
WS_T2 = 0x280000
WS_TAB = 0x500000
WS_REC = 0x580000
REC_STRIDE = EPC * 12
NEG_L2E = 0xBFB8AA3B

out = []
def e(s): out.append("    " + s)
def lab(s): out.append(s + ":")
def cmt(s): out.append("    ; " + s)
def nop(n):
    while n > 0:
        k = min(n, 16)
        e(f"s_nop {k-1}")
        n -= k

STAMPS = False
OPT = set()
WS_STAMP = 0x2000000
def fstamp(k):
    if STAMPS and "fine" in OPT: e(f"s_memtime s[{80+2*k}:{81+2*k}]")
def stamp(k):
    if not STAMPS or ("segs" in OPT and k >= 2): return
    if "fine" in OPT:
        if k in (0, 1): e(f"s_memtime s[{80+2*k}:{81+2*k}]")
        return
    if "both" in OPT:
        if k in (4, 6):
            e(f"s_memtime s[{80+2*k}:{81+2*k}]")
            e(f"s_memrealtime s[{82+2*k}:{83+2*k}]")
        elif k not in (5, 7):
            e(f"s_memtime s[{80+2*k}:{81+2*k}]")
        return
    e(f"{'s_memrealtime' if 'rt' in OPT else 's_memtime'} s[{80+2*k}:{81+2*k}]")
def seg(k):
    if "segs" in OPT:
        e("s_memtime s[98:99]")
        e("s_waitcnt lgkmcnt(0)")
        e("s_sub_u32 s100, s98, s79")
        e(f"s_add_u32 s{84+k}, s{84+k}, s100")
        e("s_mov_b32 s79, s98")
def stamp_store(nst, wave_sreg, base_off, wg_sreg=2):
    if not STAMPS: return
    e("s_waitcnt vmcnt(0) lgkmcnt(0)")
    e("s_mov_b64 exec, 1")
    e(f"s_lshl_b32 s98, s{wg_sreg}, 4")
    e(f"s_add_u32 s98, s98, s{wave_sreg}")
    e(f"s_lshl_b32 s98, s98, 7")
    e(f"s_add_u32 s98, s98, {base_off:#x}")
    e("s_add_u32 s96, s26, s98")
    e("s_addc_u32 s97, s27, 0")
    e("v_mov_b32 v0, 0")
    for k in range(nst):
        e(f"v_mov_b32 v2, s{80+2*k}")
        e(f"v_mov_b32 v3, s{81+2*k}")
        e(f"global_store_dwordx2 v0, v[2:3], s[96:97] offset:{8*k}")
        e("s_nop 1")
    e("s_waitcnt vmcnt(0)")
    e("s_mov_b64 exec, -1")

def dpp_scan(v):
    for ctl in ("row_shr:1 row_mask:0xf bank_mask:0xf", "row_shr:2 row_mask:0xf bank_mask:0xf",
                "row_shr:4 row_mask:0xf bank_mask:0xf", "row_shr:8 row_mask:0xf bank_mask:0xf",
                "row_bcast:15 row_mask:0xa bank_mask:0xf", "row_bcast:31 row_mask:0xc bank_mask:0xf"):
        nop(2)
        e(f"v_add_u32_dpp v{v}, v{v}, v{v} {ctl}")

def load_kernargs():
    e("s_load_dwordx16 s[4:19], s[0:1], 0")
    e("s_load_dwordx8 s[20:27], s[0:1], 64")

def add64(d, s, imm):
    e(f"s_add_u32 s{d}, s{s}, {imm:#x}")
    e(f"s_addc_u32 s{d+1}, s{s+1}, 0")

K1_STG, K1_HIST, K1_OFF = 0, 30720, 33280
K1_SYNC = K1_HIST + 4*300
K1_W = 34304
W_PITCH = 144
W_MAT = 64 * W_PITCH
K1_TT = K1_W + 2*W_MAT
K1_LDS = K1_TT + 6*16*144

def WT():
    for o in OPT:
        if o.startswith("wt="): return " " + o[3:].replace("+", " ") if o[3:] != "none" else ""
    return " sc1"

def gen_k1():
    out.append(f".globl {PREP}")
    out.append(".p2align 8")
    out.append(f".type {PREP},@function")
    lab(PREP)
    e(f"s_cmp_ge_u32 s2, {NB}")
    e("s_cbranch_scc1 K1_done")
    stamp(0)
    load_kernargs()
    e("v_readfirstlane_b32 s33, v0")
    e("v_and_b32 v1, 63, v0")
    e("v_and_b32 v60, 0x1ff, v0")
    e("v_lshlrev_b32 v61, 4, v60")
    e("v_lshrrev_b32 v62, 3, v60")
    e(f"v_mul_u32_u24 v62, {W_PITCH}, v62")
    e("v_and_b32 v63, 7, v60")
    e("v_lshl_add_u32 v62, v63, 4, v62")
    e("s_lshr_b32 s33, s33, 6")
    e("s_lshr_b32 s34, s33, 3")
    e(f"s_mul_i32 s35, s34, {W_MAT}")
    e(f"s_add_u32 s35, s35, {K1_W}")
    e("v_add_u32 v62, s35, v62")
    e("v_lshlrev_b32 v3, 2, v0")
    e("v_mov_b32 v20, 0")
    e("s_cmp_ge_u32 s33, 10")
    e("s_cbranch_scc1 K1_tables")
    ldf = " nt" if "ntld" in OPT else ""
    e("s_mul_i32 s28, s2, 10240")
    e("v_lshl_add_u32 v58, v0, 4, s28")
    e("s_lshl_b32 s29, s28, 1")
    e("v_lshl_add_u32 v59, v0, 5, s29")
    e(f"ds_write_b32 v3, v20 offset:{K1_HIST}")
    e("s_waitcnt lgkmcnt(0)")
    e("s_cmp_eq_u32 s34, 0")
    e("s_cselect_b32 s44, s14, s20")
    e("s_cselect_b32 s45, s15, s21")
    e(f"global_load_dwordx4 v[4:7], v58, s[10:11]{ldf}")
    e("global_load_dwordx4 v[40:43], v61, s[44:45]")
    e(f"global_load_dwordx4 v[8:11], v58, s[8:9]{ldf}")
    e(f"global_load_dwordx4 v[12:15], v59, s[6:7]{ldf}")
    e(f"global_load_dwordx4 v[16:19], v59, s[6:7] offset:16{ldf}")
    e("s_mov_b32 s30, 52429")
    e("s_movk_i32 s31, -40")
    e("v_mov_b32 v57, 1")
    e("s_barrier")
    e("s_waitcnt vmcnt(4)")
    stamp(1)
    for i in range(4):
        e(f"v_mul_u32_u24 v{20+i}, s30, v{4+i}")
    for i in range(4):
        e(f"v_lshrrev_b32 v{20+i}, 21, v{20+i}")
    for i in range(4):
        e(f"v_mad_i32_i24 v{28+i}, v{20+i}, s31, v{4+i}")
    for i in range(4):
        e(f"v_lshlrev_b32 v{20+i}, 2, v{20+i}")
    for i in range(4):
        e(f"ds_add_rtn_u32 v{24+i}, v{20+i}, v57 offset:{K1_HIST}")
    e("v_lshlrev_b32 v32, 4, v1")
    e("s_waitcnt vmcnt(3)")
    e("ds_write_b128 v62, v[40:43]")
    e("s_waitcnt lgkmcnt(0)")
    e("s_barrier")
    stamp(2)
    e(f"ds_read_b128 v[36:39], v32 offset:{K1_HIST}")
    e("s_waitcnt vmcnt(2)")
    for i in range(4):
        e(f"v_lshlrev_b32 v{8+i}, 8, v{8+i}")
    for i in range(4):
        e(f"v_lshl_or_b32 v{28+i}, v{28+i}, 26, v{8+i}")
    e("s_waitcnt lgkmcnt(0)")
    e("v_add_u32 v40, v36, v37")
    e("v_add_u32 v41, v40, v38")
    e("v_add_u32 v42, v41, v39")
    e("v_mov_b32 v43, v42")
    dpp_scan(43)
    e("v_sub_u32 v44, v43, v42")
    e("v_add_u32 v45, v44, v36")
    e("v_add_u32 v46, v44, v40")
    e("v_add_u32 v47, v44, v41")
    e(f"ds_write_b128 v32, v[44:47] offset:{K1_OFF}")
    for i in range(4):
        e(f"ds_read_b32 v{52+i}, v{20+i} offset:{K1_OFF}")
    e("s_cmp_lg_u32 s33, 0")
    e("s_cbranch_scc1 K1_notab")
    for k in range(4):
        e(f"v_mul_u32_u24 v{48+k}, 12, v{44+k}")
    for k in range(4):
        e(f"v_lshl_or_b32 v{48+k}, v{36+k}, 16, v{48+k}")
    e("s_lshl_b32 s34, s2, 10")
    e("v_add_u32 v33, s34, v32")
    add64(36, 26, WS_TAB)
    e(f"global_store_dwordx4 v33, v[48:51], s[36:37]{WT()}")
    e("s_cmp_ge_u32 s2, 6")
    e("s_cbranch_scc1 K1_notab")
    for k in range(4):
        e(f"v_mov_b32 v{48+k}, 0")
    e(f"v_add_u32 v33, {NB*1024}, v33")
    e(f"global_store_dwordx4 v33, v[48:51], s[36:37]{WT()}")
    lab("K1_notab")
    e("s_waitcnt lgkmcnt(0)")
    for i in range(4):
        e(f"v_add_u32 v{52+i}, v{52+i}, v{24+i}")
    for i in range(4):
        e(f"v_mul_u32_u24 v{52+i}, 12, v{52+i}")
    e("s_cmp_lg_u32 s33, 0")
    e("s_cbranch_scc1 K1_attr_all")
    e("s_cmp_lt_u32 s2, 6")
    e("s_cbranch_scc1 K1_attr_two")
    e("s_waitcnt vmcnt(1)")
    e("s_branch K1_attr_ready")
    lab("K1_attr_two")
    e("s_waitcnt vmcnt(2)")
    e("s_branch K1_attr_ready")
    lab("K1_attr_all")
    e("s_waitcnt vmcnt(0)")
    lab("K1_attr_ready")
    for i in range(4):
        e(f"ds_write2_b32 v{52+i}, v{12+2*i}, v{13+2*i} offset0:0 offset1:1")
        e(f"ds_write_b32 v{52+i}, v{28+i} offset:8")
    e("s_mul_i32 s34, s2, %d" % REC_STRIDE)
    add64(38, 26, WS_REC)
    e("s_add_u32 s38, s38, s34")
    e("s_addc_u32 s39, s39, 0")
    add64(40, 38, 10240)
    add64(42, 38, 20480)
    e("v_lshlrev_b32 v3, 4, v0")
    e(f"v_mov_b32 v33, {K1_SYNC}")
    e("s_waitcnt lgkmcnt(0)")
    e("s_mov_b64 exec, 1")
    e("ds_add_u32 v33, v57")
    e("s_mov_b64 exec, -1")
    lab("K1_sync")
    e("ds_read_b32 v34, v33")
    e("s_waitcnt lgkmcnt(0)")
    e("v_readfirstlane_b32 s34, v34")
    e("s_nop 0")
    e("s_cmp_lt_u32 s34, 10")
    e("s_cbranch_scc1 K1_sync")
    stamp(3)
    e("ds_read_b128 v[4:7], v3")
    e("ds_read_b128 v[8:11], v3 offset:10240")
    e("ds_read_b128 v[12:15], v3 offset:20480")
    e("s_waitcnt lgkmcnt(2)")
    if "norec" not in OPT: e(f"global_store_dwordx4 v3, v[4:7], s[38:39]{WT()}")
    e("s_waitcnt lgkmcnt(1)")
    if "norec" not in OPT: e(f"global_store_dwordx4 v3, v[8:11], s[40:41]{WT()}")
    e("s_waitcnt lgkmcnt(0)")
    if "norec" not in OPT: e(f"global_store_dwordx4 v3, v[12:15], s[42:43]{WT()}")
    stamp(4)
    if STAMPS:
        e("s_waitcnt vmcnt(0)")
        stamp(5)
    stamp_store(6, 33, WS_STAMP + 0x100000)
    e("s_endpgm")
    lab("K1_tables")
    e("s_sub_u32 s34, s33, 10")
    e("s_and_b32 s35, s34, 1")
    e(f"s_mul_i32 s43, s34, {16*144}")
    e(f"s_add_u32 s43, s43, {K1_TT}")
    e("s_lshr_b32 s34, s34, 1")
    e("s_mul_i32 s36, s2, 40")
    e("s_lshl_b32 s37, s34, 4")
    e("s_add_u32 s36, s36, s37")
    e("v_and_b32 v2, 15, v1")
    e("v_lshrrev_b32 v3, 4, v1")
    e("v_add_u32 v60, s36, v2")
    e(f"v_min_u32 v59, {N_NODES-1}, v60")
    e("v_lshlrev_b32 v59, 7, v59")
    e("v_lshl_add_u32 v59, v3, 4, v59")
    e("s_waitcnt lgkmcnt(0)")
    e("global_load_dwordx4 v[40:43], v61, s[20:21]")
    e("global_load_dwordx4 v[20:23], v59, s[4:5]")
    e("global_load_dwordx4 v[24:27], v59, s[4:5] offset:64")
    e("s_barrier")
    e("v_lshrrev_b32 v4, 2, v2")
    e("v_lshl_add_u32 v4, v3, 3, v4")
    e(f"v_mul_u32_u24 v4, {W_PITCH}, v4")
    e("v_and_b32 v63, 3, v2")
    e("v_lshl_add_u32 v4, v63, 3, v4")
    e("s_lshl_b32 s37, s35, 6")
    e(f"s_add_u32 s37, s37, {K1_W}")
    e("v_add_u32 v4, s37, v4")
    e("v_mul_u32_u24 v5, 144, v2")
    e("v_lshl_add_u32 v5, v3, 4, v5")
    e("v_add_u32 v5, s43, v5")
    e("v_lshrrev_b32 v8, 3, v1")
    e("v_and_b32 v9, 7, v1")
    e("v_mul_u32_u24 v6, 144, v8")
    e("v_lshl_add_u32 v6, v9, 4, v6")
    e("v_add_u32 v6, s43, v6")
    e("v_add_u32 v7, s36, v8")
    e("v_lshlrev_b32 v7, 8, v7")
    e("v_lshl_add_u32 v7, v9, 4, v7")
    e("s_lshl_b32 s37, s35, 7")
    e("v_add_u32 v7, s37, v7")
    e(f"s_mov_b32 s40, {NEG_L2E:#x}")
    e("s_brev_b32 s41, 1")
    e("s_mov_b32 s42, 0x7fff0000")
    e("s_waitcnt vmcnt(2)")
    e("ds_write_b128 v62, v[40:43]")
    e("s_waitcnt lgkmcnt(0)")
    stamp(1)
    e("s_barrier")
    stamp(2)
    WB, DB = 28, 64
    def wreg(ft, mp, ks): return WB + 16*ft + 8*mp + 4*ks
    def wreads(ft):
        for mp in range(2):
            for ks in range(2):
                for half in range(2):
                    r = wreg(ft, mp, ks) + 2*half
                    off = mp*W_MAT + (32*ks + 4*half)*W_PITCH + ft*32
                    e(f"ds_read_b64_tr_b16 v[{r}:{r+1}], v4 offset:{off}")
    def mfmas(ft):
        d1, d2 = DB + 8*ft, DB + 8*ft + 4
        e(f"v_mfma_f32_16x16x32_bf16 v[{d1}:{d1+3}], v[{wreg(ft,0,0)}:{wreg(ft,0,0)+3}], v[20:23], 0")
        e(f"v_mfma_f32_16x16x32_bf16 v[{d2}:{d2+3}], v[{wreg(ft,1,0)}:{wreg(ft,1,0)+3}], v[20:23], 0")
        e(f"v_mfma_f32_16x16x32_bf16 v[{d1}:{d1+3}], v[{wreg(ft,0,1)}:{wreg(ft,0,1)+3}], v[24:27], v[{d1}:{d1+3}]")
        e(f"v_mfma_f32_16x16x32_bf16 v[{d2}:{d2+3}], v[{wreg(ft,1,1)}:{wreg(ft,1,1)+3}], v[24:27], v[{d2}:{d2+3}]")
    wreads(0)
    e("s_waitcnt vmcnt(0) lgkmcnt(0)")
    wreads(1)
    mfmas(0)
    e("s_waitcnt lgkmcnt(0)")
    mfmas(1)
    nop(8)
    stamp(3)
    for ft in range(2):
        for r in range(4):
            e(f"v_mul_f32 v{DB+8*ft+r}, s40, v{DB+8*ft+r}")
    for ft in range(2):
        b = DB + 8*ft
        e(f"v_cvt_pk_bf16_f32 v{44+2*ft}, v{b}, v{b+1}")
        e(f"v_cvt_pk_bf16_f32 v{45+2*ft}, v{b+2}, v{b+3}")
    for ft in range(2):
        b = DB + 8*ft
        e(f"v_and_b32 v{b}, 0xffff, v{44+2*ft}")
        e(f"v_lshrrev_b32 v{b+1}, 16, v{44+2*ft}")
        e(f"v_and_b32 v{b+2}, 0xffff, v{45+2*ft}")
        e(f"v_lshrrev_b32 v{b+3}, 16, v{45+2*ft}")
    el = [(DB+8*ft+r, DB+8*ft+4+r, 28+4*ft+r, 48+4*ft+r) for ft in range(2) for r in range(4)]
    for lo, hv, o, t in el: e(f"v_and_b32 v{t}, 0x7fffffff, v{hv}")
    for lo, hv, o, t in el: e(f"v_add_u32 v{t}, 0x8000, v{t}")
    for lo, hv, o, t in el: e(f"v_sub_u32_e64 v{t}, v{t}, v{lo} clamp")
    for lo, hv, o, t in el: e(f"v_and_or_b32 v{o}, v{hv}, s41, v{lo}")
    for lo, hv, o, t in el: e(f"v_bfi_b32 v{o}, s42, v{t}, v{o}")
    for ft in range(2):
        e(f"ds_write_b128 v5, v[{28+4*ft}:{31+4*ft}] offset:{ft*64}")
    e("s_waitcnt lgkmcnt(0)")
    e("ds_read_b128 v[36:39], v6")
    e(f"ds_read_b128 v[40:43], v6 offset:{8*144}")
    e("s_waitcnt lgkmcnt(1)")
    if "notab" not in OPT: e(f"global_store_dwordx4 v7, v[36:39], s[26:27]{WT()}")
    e("s_cmp_eq_u32 s34, 2")
    e("s_cbranch_scc1 K1_nost")
    e("s_waitcnt lgkmcnt(0)")
    if "notab" not in OPT: e(f"global_store_dwordx4 v7, v[40:43], s[26:27] offset:2048{WT()}")
    lab("K1_nost")
    stamp(4)
    if STAMPS:
        e("s_waitcnt vmcnt(0)")
        stamp(5)
    stamp_store(6, 33, WS_STAMP + 0x100000)
    e("s_sub_u32 s37, s33, 10")
    e("s_or_b32 s37, s37, s2")
    e("s_cmp_lg_u32 s37, 0")
    e("s_cbranch_scc1 K1_done")
    e("v_lshlrev_b32 v2, 2, v1")
    e(f"v_add_u32 v2, {N_NODES*256:#x}, v2")
    e("v_mov_b32 v3, 0x7f00")
    e(f"global_store_dword v2, v3, s[26:27]{WT()}")
    lab("K1_done")
    e("s_endpgm")

ACCN, ACCD = 0, 14336
CNT, MAXC, CN, ZERO = 28672, 28928, 28944, 29008
ZERO_END = 29440
START = 29440
T2L = 29696
AA = 39936
GN = 50432
CAPP = 8160
IDX = GN + 2048
ATTR = IDX + 4*CAPP
K2_LDS = ATTR + 8*CAPP
WST = ATTR
DUMMY = N_NODES * 256
K2_GRID = 256

V_L, V_L4 = 1, 2
V_AI, V_AE, V_ESTR, V_EBASE = 3, 4, 5, 6
V_DB, V_DESC = 7, 8
V_X = 12
V_END, V_A = 14, 15
T = (16, 32, 48)
D = 64
SEL, EO, BE, ONE = 80, 84, 88, 92
DEN, NUM = 96, 98
V_M = 100
V_F = 104
V_LT2 = 106
V_PF = 108
V_XO = 112
K2_VGPRS = 128
S_T = 28
S_BIN, S_WAVE, S_P32, S_MAX = 37, 38, 39, 40
S_MASK = 44
S_K0, S_NBLK, S_K, S_CUR, S_D, S_DN, S_LOADED = 60, 61, 62, 63, 64, 65, 66
S_MIX, S_ROW, S_TMP, S_TMP2, S_PERM = 67, 68, 69, 70, 71
S_KC = 72
S_RNG = 76
S_EXM = 78

def slot(i, jj): return 16 + 4*(i + 4*jj)
def smask(i, jj): return S_MASK + 2*(i + 4*jj)

def issue_row_loads(tb):
    for v in range(tb, tb+16):
        if "noload" in OPT: e("s_nop 0")
        else: e(f"buffer_load_dword v{v}, v{v}, s[{S_T}:{S_T+3}], 0 offen")

def pf_kb():
    for o in OPT:
        if o.startswith("pf="): return int(o[3:])
    return 32

def warm_table(idle=False):
    kb = pf_kb()
    if kb == 0: return
    e("s_lshr_b32 s41, s2, 3")
    e("s_mul_i32 s41, s41, 81920")
    if idle:
        e(f"v_lshl_add_u32 v{V_PF+1}, v0, 6, s41")
        e(f"global_load_dword v{V_PF}, v{V_PF+1}, s[26:27]")
        e(f"v_add_u32 v{V_PF+1}, 0x4000, v{V_PF+1}")
        e(f"global_load_dword v{V_PF}, v{V_PF+1}, s[26:27]")
        return
    e(f"s_mul_i32 s{S_TMP}, s{S_WAVE}, {kb*64}")
    e(f"s_add_u32 s41, s41, s{S_TMP}")
    e(f"v_lshl_add_u32 v{V_PF+1}, v{V_L}, 6, s41")
    if kb < 64:
        m = (1 << kb) - 1
        e(f"s_mov_b32 exec_lo, {m & 0xffffffff:#x}")
        e(f"s_mov_b32 exec_hi, {m >> 32:#x}")
    e(f"global_load_dword v{V_PF}, v{V_PF+1}, s[26:27]")
    if kb < 64: e("s_mov_b64 exec, -1")

def idx_reads(tb, blk):
    for q in range(4):
        e(f"ds_read_b128 v[{tb+4*q}:{tb+4*q+3}], v{V_AI} offset:{IDX+64*blk+16*q}")

def attr_read(blk):
    e(f"ds_read_b64 v[{EO}:{EO+1}], v{V_AE} offset:{128*blk}")

def node_rows_read(sdesc):
    for g in range(4):
        e(f"s_bfe_u32 s{S_TMP}, s{sdesc}, {(8 << 16) | (8*g):#x}")
        e(f"s_lshl_b32 s{S_TMP}, s{S_TMP}, 6")
        e(f"v_add_u32 v{V_A}, s{S_TMP}, v{V_LT2}")
        e(f"ds_read_b32 v{V_M+g}, v{V_A}")

def node_rows_pack():
    e(f"v_perm_b32 v{BE+2}, v{V_M+1}, v{V_M}, s{S_PERM}")
    e(f"v_perm_b32 v{BE+3}, v{V_M+3}, v{V_M+2}, s{S_PERM}")

def flush(tag):
    e(f"v_add_u32 v{V_A}, s{S_ROW}, v{V_L4}")
    e(f"v_add_f32 v{V_F}, v{DEN}, v{DEN+1}")
    e(f"v_add_f32 v{V_F+1}, v{NUM}, v{NUM+1}")
    e(f"s_cmp_lg_u32 s{S_P32}, 0")
    e(f"s_cbranch_scc1 {tag}_atomic")
    e(f"ds_write_b32 v{V_A}, v{V_F} offset:{ACCD}")
    e(f"ds_write_b32 v{V_A}, v{V_F+1} offset:{ACCN}")
    lab(f"{tag}_flushed")
    ATOMIC_SITES.append(tag)

ATOMIC_SITES = []
def atomic_flushes():
    for tag in ATOMIC_SITES:
        lab(f"{tag}_atomic")
        e(f"ds_add_f32 v{V_A}, v{V_F} offset:{ACCD}")
        e(f"ds_add_f32 v{V_A}, v{V_F+1} offset:{ACCN}")
        e(f"s_branch {tag}_flushed")

def acc_group(tp, g):
    for k in (2*g, 2*g+1):
        e(f"v_pk_add_f32 v[{DEN}:{DEN+1}], v[{DEN}:{DEN+1}], v[{D+2*k}:{D+2*k+1}]")
        e(f"v_pk_fma_f32 v[{NUM}:{NUM+1}], v[{D+2*k}:{D+2*k+1}], v[{tp+2*k}:{tp+2*k+1}], v[{NUM}:{NUM+1}]")

def acc_group_init(tp, g):
    a = 4*g
    e(f"v_pk_add_f32 v[{DEN}:{DEN+1}], v[{D+a}:{D+a+1}], v[{D+a+2}:{D+a+3}]")
    e(f"v_pk_mul_f32 v[{NUM}:{NUM+1}], v[{D+a}:{D+a+1}], v[{tp+a}:{tp+a+1}]")
    e(f"v_pk_fma_f32 v[{NUM}:{NUM+1}], v[{D+a+2}:{D+a+3}], v[{tp+a+2}:{tp+a+3}], v[{NUM}:{NUM+1}]")

def body_shl(P, main):
    tp, tr = T[P], T[(P+2) % 3]
    tag = f"K2_{'m' if main else 't'}{P}"
    lab(tag)
    if not main:
        e(f"s_add_u32 s{S_TMP}, s{S_K}, 1")
        e(f"s_cmp_eq_u32 s{S_TMP}, s{S_NBLK}")
        e(f"s_cbranch_scc1 {tag}_p0")
        e("s_setprio 1")
        e(f"s_branch {tag}_pd")
        lab(f"{tag}_p0")
        e("s_setprio 0")
        lab(f"{tag}_pd")
    e(f"s_add_u32 s{S_K}, s{S_K}, 1")
    if main:
        idx_reads(tr, P+2)
        if P == 2: e(f"v_add_u32 v{V_AI}, 0xc0, v{V_AI}")
        e("s_waitcnt lgkmcnt(0)")
        issue_row_loads(tr)
        e("s_waitcnt vmcnt(32)")
    else:
        e("s_waitcnt vmcnt(0) lgkmcnt(0)")
    for v in range(16):
        e(f"v_lshlrev_b32 v{D+v}, 16, v{tp+v}")
    nop(2)
    e(f"v_mfma_f32_32x32x16_bf16 v[{D}:{D+15}], v[{EO}:{EO+3}], v[{BE}:{BE+3}], v[{D}:{D+15}]")
    attr_read(P+1)
    if P == 2: e(f"v_add_u32 v{V_AE}, v{V_ESTR}, v{V_AE}")
    e(f"v_readlane_b32 s{S_DN}, v{V_DB}, s{S_K}")
    e(f"s_mov_b32 s{S_MIX}, 0")
    e(f"s_cmp_eq_u32 s{S_DN}, s{S_LOADED}")
    e(f"s_cbranch_scc0 {tag}_reload")
    lab(f"{tag}_loaded")
    nop(8)
    for v in range(16):
        e(f"v_exp_f32 v{D+v}, v{D+v}")
    nop(2)
    e(f"v_mfma_f32_32x32x8_bf16 v[{D}:{D+15}], v[{ONE}:{ONE+1}], v[{ONE}:{ONE+1}], v[{D}:{D+15}]")
    e(f"s_cmp_lg_u32 s{S_MIX}, 0")
    e(f"s_cbranch_scc1 {tag}_pack")
    lab(f"{tag}_packed")
    e(f"s_and_b32 s{S_TMP}, s{S_D}, 0xff")
    e(f"s_mul_i32 s{S_TMP}, s{S_TMP}, 0x01010101")
    e(f"s_and_b32 s{S_TMP2}, s{S_D}, 0xff")
    e(f"s_xor_b32 s{S_TMP}, s{S_TMP}, s{S_D}")
    e(f"s_xor_b32 s{S_TMP2}, s{S_TMP2}, s{S_CUR}")
    e(f"s_or_b32 s{S_TMP}, s{S_TMP}, s{S_TMP2}")
    nop(4)
    for v in range(16):
        e(f"v_rcp_f32 v{D+v}, v{D+v}")
    e(f"s_cbranch_scc1 {tag}_slow")
    for g in range(4): acc_group(tp, g)
    lab(f"{tag}_next")
    e(f"s_mov_b32 s{S_D}, s{S_DN}")
    nP = (P+1) % 3
    if main:
        e(f"s_add_u32 s{S_TMP}, s{S_K}, 2")
        e(f"s_cmp_lt_u32 s{S_TMP}, s{S_NBLK}")
        e(f"s_cbranch_scc0 K2_t{nP}")
        if P == 2:
            e(f"s_cmp_lt_u32 s{S_K}, 6")
            e("s_cbranch_scc1 K2_m0")
            e("s_setprio 2")
            e("s_branch K2_m0")
    else:
        e(f"s_cmp_lt_u32 s{S_K}, s{S_NBLK}")
        e("s_cbranch_scc0 K2_range_end")
        if P == 2: e("s_branch K2_t0")

def body(P, main):
    tp, tr = T[P], T[(P+2) % 3]
    tag = f"K2_{'m' if main else 't'}{P}"
    lab(tag)
    if "noprio" not in OPT and not main:
        if "prioA" not in OPT:
            e(f"s_add_u32 s{S_TMP}, s{S_K}, 1")
            e(f"s_cmp_eq_u32 s{S_TMP}, s{S_NBLK}")
            e(f"s_cbranch_scc1 {tag}_p0")
            e("s_setprio 1")
            e(f"s_branch {tag}_pd")
            lab(f"{tag}_p0")
            e("s_setprio 0")
            lab(f"{tag}_pd")
        else:
            e("s_setprio 0")
    e("s_waitcnt lgkmcnt(0)")
    shl = "shl" in OPT
    if "nomfma" not in OPT and not shl: e(f"v_mfma_f32_32x32x16_bf16 v[{D}:{D+15}], v[{EO}:{EO+3}], v[{BE}:{BE+3}], 0")
    e(f"s_add_u32 s{S_K}, s{S_K}, 1")
    if main and "nolds" not in OPT: idx_reads(tr, P+2)
    if "nolds" not in OPT: attr_read(P+1)
    if P == 2:
        if main: e(f"v_add_u32 v{V_AI}, 0xc0, v{V_AI}")
        e(f"v_add_u32 v{V_AE}, v{V_ESTR}, v{V_AE}")
    e(f"v_readlane_b32 s{S_DN}, v{V_DB}, s{S_K}")
    e(f"s_mov_b32 s{S_MIX}, 0")
    e(f"s_cmp_eq_u32 s{S_DN}, s{S_LOADED}")
    if "noreload" not in OPT: e(f"s_cbranch_scc0 {tag}_reload")
    lab(f"{tag}_loaded")
    early = "late" not in OPT
    if main and early:
        e("s_waitcnt lgkmcnt(1)")
        issue_row_loads(tr)
        e("s_waitcnt vmcnt(32)")
    elif main:
        e("s_waitcnt vmcnt(16)")
    else:
        nop(4)
        e("s_waitcnt vmcnt(0)")
    for q in range(4 if "nomfma" not in OPT else 0):
        e(f"v_mfma_f32_16x16x32_bf16 v[{D+4*q}:{D+4*q+3}], v[{SEL}:{SEL+3}], v[{tp+4*q}:{tp+4*q+3}], v[{D+4*q}:{D+4*q+3}]")
    if main and not early:
        e("s_waitcnt lgkmcnt(1)")
        issue_row_loads(tr)
    else:
        nop(8)
    for v in range(16):
        if "novalu" not in OPT: e(f"v_exp_f32 v{D+v}, v{D+v}")
    if "one=pk" not in OPT: nop(2)
    if "one=pk" in OPT:
        for k in range(8):
            e(f"v_pk_add_f32 v[{D+2*k}:{D+2*k+1}], v[{D+2*k}:{D+2*k+1}], 1.0 op_sel_hi:[1,0]")
    elif "nomfma" not in OPT:
        e(f"v_mfma_f32_32x32x8_bf16 v[{D}:{D+15}], v[{ONE}:{ONE+1}], v[{ONE}:{ONE+1}], v[{D}:{D+15}]")
    e(f"s_cmp_lg_u32 s{S_MIX}, 0")
    e(f"s_cbranch_scc1 {tag}_pack")
    lab(f"{tag}_packed")
    e(f"s_and_b32 s{S_TMP}, s{S_D}, 0xff")
    e(f"s_mul_i32 s{S_TMP}, s{S_TMP}, 0x01010101")
    e(f"s_and_b32 s{S_TMP2}, s{S_D}, 0xff")
    e(f"s_xor_b32 s{S_TMP}, s{S_TMP}, s{S_D}")
    e(f"s_xor_b32 s{S_TMP2}, s{S_TMP2}, s{S_CUR}")
    e(f"s_or_b32 s{S_TMP}, s{S_TMP}, s{S_TMP2}")
    if "one=pk" not in OPT: nop(4)
    for v in range(16):
        if "novalu" not in OPT: e(f"v_rcp_f32 v{D+v}, v{D+v}")
    if "noslow" not in OPT: e(f"s_cbranch_scc1 {tag}_slow")
    if "novalu" not in OPT:
        for g in range(4): acc_group(tp, g)
    lab(f"{tag}_next")
    e(f"s_mov_b32 s{S_D}, s{S_DN}")
    nP = (P+1) % 3
    if main:
        e(f"s_add_u32 s{S_TMP}, s{S_K}, 2")
        e(f"s_cmp_lt_u32 s{S_TMP}, s{S_NBLK}")
        e(f"s_cbranch_scc0 K2_t{nP}")
        if P == 2:
            if "prioA" not in OPT and "prioB" not in OPT and "noprio" not in OPT:
                e(f"s_cmp_lt_u32 s{S_K}, 6")
                e("s_cbranch_scc1 K2_m0")
                e("s_setprio 2")
            elif "noprio" not in OPT and "prioB" not in OPT:
                e(f"s_cmp_lt_u32 s{S_K}, 6")
                e("s_cbranch_scc0 K2_prio1")
                e("s_setprio 2")
                e("s_branch K2_m0")
                lab("K2_prio1")
                e("s_setprio 1")
            e("s_branch K2_m0")
    else:
        e(f"s_cmp_lt_u32 s{S_K}, s{S_NBLK}")
        e("s_cbranch_scc0 K2_range_end")
        if P == 2: e("s_branch K2_t0")

def body_outlined(P, main):
    tp = T[P]
    tag = f"K2_{'m' if main else 't'}{P}"
    lab(f"{tag}_reload")
    e(f"s_mov_b32 s{S_LOADED}, s{S_DN}")
    e(f"s_and_b32 s{S_TMP}, s{S_DN}, 0xff")
    e(f"s_mul_i32 s{S_TMP2}, s{S_TMP}, 0x01010101")
    e(f"s_cmp_eq_u32 s{S_TMP2}, s{S_DN}")
    e(f"s_cbranch_scc0 {tag}_mixed")
    e(f"s_lshl_b32 s{S_TMP}, s{S_TMP}, 6")
    e(f"v_add_u32 v{V_A}, s{S_TMP}, v{V_LT2}")
    e(f"ds_read2_b32 v[{BE+2}:{BE+3}], v{V_A} offset0:0 offset1:0")
    e(f"s_branch {tag}_loaded")
    lab(f"{tag}_mixed")
    node_rows_read(S_DN)
    e(f"s_mov_b32 s{S_MIX}, 1")
    e(f"s_branch {tag}_loaded")
    lab(f"{tag}_pack")
    e("s_waitcnt lgkmcnt(0)")
    node_rows_pack()
    e(f"s_branch {tag}_packed")
    lab(f"{tag}_slow")
    for g in range(4):
        e(f"s_bfe_u32 s{S_TMP2}, s{S_D}, {(8 << 16) | (8*g):#x}")
        e(f"s_cmp_eq_u32 s{S_TMP2}, s{S_CUR}")
        e(f"s_cbranch_scc0 {tag}_new{g}")
        acc_group(tp, g)
        lab(f"{tag}_g{g}")
    e(f"s_branch {tag}_next")
    for g in range(4):
        lab(f"{tag}_new{g}")
        flush(f"{tag}_f{g}")
        e(f"s_mov_b32 s{S_CUR}, s{S_TMP2}")
        e(f"s_lshl_b32 s{S_ROW}, s{S_TMP2}, 6")
        acc_group_init(tp, g)
        e(f"s_branch {tag}_g{g}")

def gen_k2():
    out.append(f".globl {MAIN}")
    out.append(".p2align 8")
    out.append(f".type {MAIN},@function")
    lab(MAIN)
    e(f"s_cmp_ge_u32 s2, {K2_GRID}")
    e("s_cbranch_scc1 K2_done")
    e("s_and_b32 s3, s2, 7")
    e("s_lshl_b32 s3, s3, 5")
    e(f"s_lshr_b32 s{S_BIN}, s2, 3")
    e(f"s_add_u32 s{S_BIN}, s{S_BIN}, s3")
    stamp(0)
    load_kernargs()
    e(f"s_cmp_ge_u32 s{S_BIN}, {NB}")
    e("s_cbranch_scc1 K2_idle")
    e(f"v_readfirstlane_b32 s{S_WAVE}, v0")
    e(f"v_and_b32 v{V_L}, 63, v0")
    e(f"v_lshlrev_b32 v{V_L4}, 2, v{V_L}")
    e(f"s_lshr_b32 s{S_WAVE}, s{S_WAVE}, 6")
    e(f"s_and_b32 s{S_RNG}, s{S_WAVE}, 3")
    e(f"s_lshl_b32 s{S_RNG}, s{S_RNG}, 2")
    e(f"s_lshr_b32 s41, s{S_WAVE}, 2")
    e(f"s_add_u32 s{S_RNG}, s{S_RNG}, s41")
    e(f"v_lshrrev_b32 v64, 4, v{V_L}")
    e(f"s_lshl_b32 s{S_TMP}, s{S_WAVE}, 2")
    e(f"v_add_u32 v64, s{S_TMP}, v64")
    e("v_lshlrev_b32 v64, 2, v64")
    e(f"s_lshl_b32 s41, s{S_BIN}, 2")
    e("v_lshl_add_u32 v65, v64, 10, s41")
    e(f"v_lshlrev_b32 v66, 1, v{V_L}")
    e("s_waitcnt lgkmcnt(0)")
    add64(32, 26, WS_TAB)
    for i in range(4):
        e(f"global_load_dword v{V_DESC+i}, v65, s[32:33] offset:{1024*i}")
    GW = 12 if "gw12" in OPT else 6
    GSH = 1 if GW == 6 else 2
    if "eb" in OPT: e("s_barrier")
    e(f"s_cmp_lt_u32 s{S_WAVE}, 8")
    e("s_cselect_b32 s42, s12, s18")
    e("s_cselect_b32 s43, s13, s19")
    e("v_and_b32 v67, 0x1ff, v0")
    e("v_lshlrev_b32 v68, 4, v67")
    e("global_load_dwordx4 v[68:71], v68, s[42:43]")
    e(f"s_cmp_ge_u32 s{S_WAVE}, {GW}")
    e("s_cbranch_scc1 K2_no_xop")
    e(f"s_lshr_b32 s41, s{S_WAVE}, {GSH}")
    e("s_lshl_b32 s41, s41, 4")
    e(f"s_mul_i32 s{S_TMP}, s{S_BIN}, 40")
    e(f"s_add_u32 s41, s41, s{S_TMP}")
    e(f"v_and_b32 v65, 15, v{V_L}")
    e("v_add_u32 v65, s41, v65")
    e(f"v_min_u32 v65, {N_NODES-1}, v65")
    e("v_lshlrev_b32 v65, 7, v65")
    e(f"v_lshrrev_b32 v67, 4, v{V_L}")
    e("v_lshl_add_u32 v65, v67, 4, v65")
    e(f"global_load_dwordx4 v[{V_XO}:{V_XO+3}], v65, s[4:5]")
    e(f"global_load_dwordx4 v[{V_XO+4}:{V_XO+7}], v65, s[4:5] offset:64")
    lab("K2_no_xop")
    add64(34, 26, WS_REC)
    e(f"s_mov_b32 s{S_T}, s26")
    e(f"s_and_b32 s{S_T+1}, s27, 0xffff")
    e(f"s_or_b32 s{S_T+1}, s{S_T+1}, 0x40000")
    e(f"s_mov_b32 s{S_T+2}, {(N_NODES+1)*256}")
    e(f"s_mov_b32 s{S_T+3}, 0x00800000")
    for r in range(76, 80):
        e(f"v_mov_b32 v{r}, 0")
    e("v_lshlrev_b32 v67, 4, v0")
    e("ds_write_b128 v67, v[76:79]")
    e(f"v_cmp_gt_u32 vcc, {(ZERO_END-16384)//16}, v0")
    e("s_mov_b64 exec, vcc")
    e("ds_write_b128 v67, v[76:79] offset:16384")
    e("s_mov_b64 exec, -1")
    e(f"v_and_b32 v16, 31, v{V_L}")
    e(f"v_lshrrev_b32 v17, 5, v{V_L}")
    e("v_bfe_u32 v18, v16, 2, 1")
    e("v_lshrrev_b32 v19, 3, v16")
    e("v_and_b32 v16, 3, v16")
    e("v_lshl_add_u32 v16, v19, 2, v16")
    e("v_cmp_eq_u32 vcc, v17, v18")
    e("v_mov_b32 v20, 0x80")
    e("v_lshlrev_b32 v16, 3, v16")
    e(f"v_cndmask_b32 v{V_ESTR}, 0, v20, vcc")
    e(f"v_add_u32 v16, {ATTR}, v16")
    e(f"v_mov_b32 v20, {ZERO}")
    e(f"v_cndmask_b32 v{V_EBASE}, v20, v16, vcc")
    e("v_and_b32 v21, 1, v19")
    e("v_lshlrev_b32 v21, 4, v21")
    e("v_mov_b32 v22, 0x3f80")
    e("v_lshlrev_b32 v21, v21, v22")
    e("v_cndmask_b32 v21, 0, v21, vcc")
    e("v_cmp_gt_u32 vcc, 2, v19")
    e(f"v_mov_b32 v{ONE+1}, 0")
    e(f"v_mov_b32 v{ONE+2}, 0")
    e(f"v_cndmask_b32 v{EO+2}, 0, v21, vcc")
    e(f"v_sub_u32 v{EO+3}, v21, v{EO+2}")
    e(f"v_cmp_gt_u32 vcc, 32, v{V_L}")
    e(f"v_mov_b32 v{ONE+3}, 0")
    e(f"v_add_u32 v{V_LT2}, {AA}, v{V_L4}")
    e(f"v_cndmask_b32 v{ONE}, 0, v22, vcc")
    e(f"v_bfe_u32 v16, v{V_L}, 2, 2")
    e(f"v_lshrrev_b32 v17, 4, v{V_L}")
    e(f"v_and_b32 v18, 3, v{V_L}")
    e("v_cmp_eq_u32 vcc, v16, v17")
    e("v_mov_b32 v19, 31")
    e(f"s_mov_b32 s{S_PERM}, 0x05040100")
    e("v_cndmask_b32 v18, v19, v18, vcc")
    e("v_lshlrev_b32 v18, v18, 1")
    for k in range(4):
        e(f"v_bfe_u32 v{SEL+k}, v18, {k}, 1")
    for k in range(4):
        e(f"v_mul_u32_u24 v{SEL+k}, v22, v{SEL+k}")
    e(f"s_mov_b32 s{S_P32}, 0")
    e("v_and_b32 v79, 0x1ff, v0")
    e("v_lshrrev_b32 v104, 3, v79")
    e(f"v_mul_u32_u24 v104, {W_PITCH}, v104")
    e("v_and_b32 v79, 7, v79")
    e("v_lshl_add_u32 v104, v79, 4, v104")
    e(f"s_lshr_b32 s41, s{S_WAVE}, 3")
    e(f"s_mul_i32 s41, s41, {W_MAT}")
    e(f"s_add_u32 s41, s41, {WST}")
    e("v_add_u32 v104, s41, v104")
    e(f"v_and_b32 v78, 15, v{V_L}")
    e(f"v_lshrrev_b32 v79, 4, v{V_L}")
    e("v_lshrrev_b32 v105, 2, v78")
    e("v_lshl_add_u32 v105, v79, 3, v105")
    e(f"v_mul_u32_u24 v105, {W_PITCH}, v105")
    e("v_and_b32 v77, 3, v78")
    e("v_lshl_add_u32 v105, v77, 3, v105")
    e(f"s_and_b32 s41, s{S_WAVE}, {(1 << GSH) - 1}")
    e(f"s_lshl_b32 s{S_TMP}, s41, {5 if GW == 12 else 6}")
    e(f"s_add_u32 s{S_TMP}, s{S_TMP}, {WST}")
    e(f"v_add_u32 v105, s{S_TMP}, v105")
    e(f"s_lshr_b32 s{S_TMP}, s{S_WAVE}, {GSH}")
    e(f"s_lshl_b32 s{S_TMP}, s{S_TMP}, 4")
    e("v_lshlrev_b32 v107, 2, v79")
    e(f"v_add_u32 v107, s{S_TMP}, v107")
    e(f"v_cmp_gt_u32 s[{S_EXM}:{S_EXM+1}], 40, v107")
    e("v_lshlrev_b32 v107, 8, v107")
    e("v_lshl_add_u32 v107, v78, 2, v107")
    e(f"s_lshl_b32 s41, s41, {6 if GW == 12 else 7}")
    e("v_add_u32 v107, s41, v107")

    def pass_addr():
        e(f"v_lshrrev_b32 v78, 4, v{V_L}")
        e(f"s_lshl_b32 s{S_TMP}, s{S_WAVE}, 2")
        e(f"v_add_u32 v78, s{S_TMP}, v78")
        e(f"v_mul_u32_u24 v78, {4*EPC}, v78")
        e(f"v_and_b32 v76, 15, v{V_L}")
        e(f"v_add_u32 v76, s{S_P32}, v76")
        e("v_add_u32 v78, v78, v76")
        e("v_mul_u32_u24 v100, 12, v78")
        for i in range(1, 4):
            e(f"v_add_u32 v{100+i}, {REC_STRIDE}, v{99+i}")
        e("v_add_u32 v77, 17, v76")
        e("v_lshlrev_b32 v77, 16, v77")
    pass_addr()
    e(f"s_cmp_ge_u32 s{S_WAVE}, {GW}")
    e("s_cbranch_scc1 K2_wdesc1")
    e("s_waitcnt vmcnt(3)")
    e("s_branch K2_wdesc")
    lab("K2_wdesc1")
    e("s_waitcnt vmcnt(1)")
    lab("K2_wdesc")
    stamp(1)

    lab("K2_pass")
    for i in range(4):
        m = smask(i, 0)
        e(f"v_cmp_lt_u32_sdwa s[{m}:{m+1}], v76, v{V_DESC+i} src0_sel:DWORD src1_sel:WORD_1")
    for i in range(4):
        e(f"v_add_u32_sdwa v{64+i}, v{V_DESC+i}, v{100+i} dst_sel:DWORD dst_unused:UNUSED_PAD src0_sel:WORD_0 src1_sel:DWORD")
    for i in range(4):
        r, m = slot(i, 0), smask(i, 0)
        e(f"s_mov_b64 exec, s[{m}:{m+1}]")
        e(f"global_load_dwordx3 v[{r}:{r+2}], v{64+i}, s[34:35]")
    e("s_mov_b64 exec, -1")
    e(f"v_max3_u32 v{V_DB}, v{V_DESC}, v{V_DESC+1}, v{V_DESC+2}")
    e(f"v_max_u32 v{V_DB}, v{V_DB}, v{V_DESC+3}")
    e(f"s_mov_b32 s{S_MIX}, 0")
    e(f"v_cmp_ge_u32 vcc, v{V_DB}, v77")
    e("s_cbranch_vccz K2_no_second")
    e("v_add_u32 v79, 16, v76")
    for i in range(4):
        m = smask(i, 1)
        e(f"v_cmp_lt_u32_sdwa s[{m}:{m+1}], v79, v{V_DESC+i} src0_sel:DWORD src1_sel:WORD_1")
    e(f"s_mov_b32 s{S_MIX}, 1")
    for i in range(4):
        r, m = slot(i, 1), smask(i, 1)
        e(f"s_mov_b64 exec, s[{m}:{m+1}]")
        e(f"global_load_dwordx3 v[{r}:{r+2}], v{64+i}, s[34:35] offset:192")
    e("s_mov_b64 exec, -1")
    lab("K2_no_second")
    e(f"s_cmp_lg_u32 s{S_P32}, 0")
    e("s_cbranch_scc1 K2_tables_done")
    fstamp(2)
    e(f"s_cmp_eq_u32 s{S_MIX}, 0")
    e("s_cbranch_scc1 K2_ww4")
    e("s_waitcnt vmcnt(8)")
    e("s_branch K2_ww")
    lab("K2_ww4")
    e("s_waitcnt vmcnt(4)")
    lab("K2_ww")
    fstamp(3)
    e("ds_write_b128 v104, v[68:71]")
    e(f"v_mov_b32 v68, 0")
    e(f"ds_write_b32 v{V_L4}, v68 offset:{AA + 40*256}")
    e("s_waitcnt lgkmcnt(0)")
    e("s_barrier")
    e(f"v_cmp_le_u32 vcc, 0x210000, v{V_DB}")
    e("s_cbranch_vccz K2_nomax")
    e(f"v_mov_b32 v79, {MAXC}")
    e(f"ds_max_u32 v79, v{V_DB}")
    lab("K2_nomax")
    fstamp(4)
    e(f"s_cmp_ge_u32 s{S_WAVE}, {GW}")
    e("s_cbranch_scc1 K2_tables_done")
    e(f"s_mov_b32 s{S_TMP}, {NEG_L2E:#x}")
    for ft in range(1 if GW == 12 else 2):
        for mp in range(2):
            for ks in range(2):
                for half in range(2):
                    r = 48 + 8*mp + 4*ks + 2*half
                    e(f"ds_read_b64_tr_b16 v[{r}:{r+1}], v105 offset:{mp*W_MAT + (32*ks + 4*half)*W_PITCH + 32*ft}")
        e("s_waitcnt lgkmcnt(0)")
        e(f"v_mfma_f32_16x16x32_bf16 v[120:123], v[{V_XO}:{V_XO+3}], v[48:51], 0")
        e(f"v_mfma_f32_16x16x32_bf16 v[124:127], v[{V_XO}:{V_XO+3}], v[56:59], 0")
        e(f"v_mfma_f32_16x16x32_bf16 v[120:123], v[{V_XO+4}:{V_XO+7}], v[52:55], v[120:123]")
        e(f"v_mfma_f32_16x16x32_bf16 v[124:127], v[{V_XO+4}:{V_XO+7}], v[60:63], v[124:127]")
        nop(8)
        for r in range(4):
            e(f"v_mul_f32 v{120+r}, s{S_TMP}, v{120+r}")
        for r in range(4):
            e(f"v_cvt_pk_bf16_f32 v{124+r}, v{120+r}, v{124+r}")
        for r in range(4):
            e(f"v_cvt_pk_bf16_f32 v{120+r}, v{120+r}, v{120+r}")
        e(f"s_mov_b64 exec, s[{S_EXM}:{S_EXM+1}]")
        for r in range(4):
            e(f"ds_write_b32 v107, v{124+r} offset:{T2L + 256*r + 64*ft}")
            e(f"ds_write_b32 v107, v{120+r} offset:{AA + 256*r + 64*ft}")
        e("s_mov_b64 exec, -1")
    lab("K2_tables_done")
    fstamp(5)

    def for_slots(fn, name):
        for i in range(4):
            m = smask(i, 0)
            e(f"s_mov_b64 exec, s[{m}:{m+1}]")
            fn(i, 0, slot(i, 0))
        e("s_mov_b64 exec, -1")
        e(f"s_cmp_eq_u32 s{S_MIX}, 0")
        e(f"s_cbranch_scc1 K2_{name}_skip")
        for i in range(4):
            m = smask(i, 1)
            e(f"s_mov_b64 exec, s[{m}:{m+1}]")
            fn(i, 1, slot(i, 1))
        e("s_mov_b64 exec, -1")
        lab(f"K2_{name}_skip")
    e("v_mov_b32 v78, 4")
    e("s_waitcnt vmcnt(0)")
    fstamp(6)
    stamp(2)
    def cnt_fn(i, jj, r):
        t = D + i + 4*jj
        e(f"v_lshrrev_b32 v{t}, 24, v{r+2}")
        e(f"ds_add_rtn_u32 v{r+3}, v{t}, v78 offset:{CNT}")
    for_slots(cnt_fn, "cnt")
    e("s_waitcnt lgkmcnt(0)")
    e("s_barrier")
    stamp(3)
    fstamp(7)
    e(f"ds_read_b32 v76, v{V_L4} offset:{CNT}")
    e(f"v_mov_b32 v79, {MAXC}")
    e("ds_read_b32 v79, v79")
    e(f"s_cmp_lg_u32 s{S_P32}, 0")
    e("s_cbranch_scc1 K2_late_loaded")
    e(f"v_lshlrev_b32 v75, 1, v{V_L}")
    for c in range(4):
        e(f"global_load_ushort v{120+c}, v75, s[16:17] offset:{128*c}")
    e(f"s_mul_i32 s41, s{S_BIN}, 5120")
    e("v_lshl_add_u32 v75, v0, 3, s41")
    e(f"v_min_u32 v75, {N_NODES*128-8}, v75")
    e(f"global_load_dwordx2 v[{V_X}:{V_X+1}], v75, s[4:5]")
    warm_table()
    lab("K2_late_loaded")
    e("s_waitcnt lgkmcnt(0)")
    e(f"v_readfirstlane_b32 s{S_MAX}, v79")
    e("v_add_u32 v77, 12, v76")
    e("v_and_b32 v77, -16, v77")
    e(f"v_mov_b32 v{V_END}, v77")
    e(f"s_lshr_b32 s{S_MAX}, s{S_MAX}, 16")
    dpp_scan(V_END)
    e(f"v_sub_u32 v75, v{V_END}, v77")
    e(f"ds_write_b32 v{V_L4}, v75 offset:{START}")
    def st_fn(i, jj, r):
        t = D + i + 4*jj
        e(f"ds_read_b32 v{T[2]+i+4*jj}, v{t} offset:{START}")
    for_slots(st_fn, "st")
    e(f"v_readlane_b32 s{S_NBLK}, v{V_END}, 63")
    e(f"s_cmp_lt_u32 s{S_WAVE}, 12")
    e("s_cbranch_scc1 K2_nopad")
    e(f"v_mov_b32 v74, {DUMMY:#x}")
    e("v_mov_b32 v72, 0")
    e("v_mov_b32 v73, 0")
    e(f"s_cmp_eq_u32 s{S_WAVE}, 15")
    e("s_cbranch_scc1 K2_tailpad")
    e(f"s_sub_u32 s{S_TMP}, s{S_WAVE}, 12")
    e(f"s_lshl_b32 s{S_TMP}, s{S_TMP}, 2")
    e("v_add_u32 v75, v75, v76")
    e(f"v_add_u32 v75, s{S_TMP}, v75")
    e(f"v_cmp_lt_u32 vcc, v75, v{V_END}")
    e(f"s_mov_b32 s{S_TMP}, {ATTR}")
    e(f"v_lshl_add_u32 v78, v75, 1, s{S_TMP}")
    e("s_mov_b64 exec, vcc")
    e(f"ds_write_b32 v75, v74 offset:{IDX}")
    e("ds_write_b64 v78, v[72:73]")
    e("s_mov_b64 exec, -1")
    e("s_branch K2_nopad")
    lab("K2_tailpad")
    e(f"s_add_u32 s{S_TMP}, s{S_NBLK}, 63")
    e(f"s_and_b32 s{S_TMP}, s{S_TMP}, -64")
    e(f"v_add_u32 v75, s{S_NBLK}, v{V_L4}")
    e(f"v_cmp_gt_u32 vcc, s{S_TMP}, v75")
    e(f"s_mov_b32 s{S_TMP}, {ATTR}")
    e(f"v_lshl_add_u32 v78, v75, 1, s{S_TMP}")
    e("v_lshrrev_b32 v77, 4, v75")
    e("v_mov_b32 v76, 160")
    e("s_mov_b64 exec, vcc")
    e(f"ds_write_b32 v75, v74 offset:{IDX}")
    e("ds_write_b64 v78, v[72:73]")
    e(f"ds_write_b8 v77, v76 offset:{GN}")
    e("s_mov_b64 exec, -1")
    lab("K2_nopad")
    e("s_waitcnt lgkmcnt(0)")
    e(f"s_mov_b32 s{S_TMP2}, {ATTR}")
    def sc_fn(i, jj, r):
        t = D + i + 4*jj
        p = T[2] + i + 4*jj
        e(f"v_add_u32 v{p}, v{p}, v{r+3}")
        e(f"v_and_b32 v{r+2}, 0xffffff, v{r+2}")
        e(f"v_lshl_add_u32 v{r+3}, v{p}, 1, s{S_TMP2}")
        e(f"ds_write_b32 v{p}, v{r+2} offset:{IDX}")
        e(f"ds_write_b64 v{r+3}, v[{r}:{r+1}]")
        e(f"v_lshrrev_b32 v{p}, 4, v{p}")
        e(f"ds_write_b8 v{p}, v{t} offset:{GN}")
    for_slots(sc_fn, "sc")
    e(f"s_cmp_lg_u32 s{S_P32}, 0")
    e("s_cbranch_scc1 K2_wc_done")
    e(f"s_waitcnt vmcnt({1 if pf_kb() else 0})")
    e(f"s_mov_b32 s{S_TMP}, {NEG_L2E:#x}")
    for c in range(4):
        e(f"v_lshlrev_b32 v{120+c}, 16, v{120+c}")
    for c in range(4):
        e(f"v_mul_f32 v{120+c}, s{S_TMP}, v{120+c}")
    e(f"v_cvt_pk_bf16_f32 v{BE}, v120, v121")
    e(f"v_cvt_pk_bf16_f32 v{BE+1}, v122, v123")
    lab("K2_wc_done")
    e("s_waitcnt lgkmcnt(0)")
    e("s_barrier")
    stamp(4)
    e(f"s_add_u32 s{S_TMP}, s{S_NBLK}, 63")
    e(f"s_lshr_b32 s{S_TMP}, s{S_TMP}, 6")
    e(f"s_mul_i32 s{S_K0}, s{S_TMP}, s{S_RNG}")
    e(f"s_add_u32 s{S_NBLK}, s{S_K0}, s{S_TMP}")
    e(f"s_lshr_b32 s{S_K0}, s{S_K0}, 4")
    e(f"s_lshr_b32 s{S_NBLK}, s{S_NBLK}, 4")
    e(f"s_sub_u32 s{S_NBLK}, s{S_NBLK}, s{S_K0}")
    e(f"s_cmp_eq_u32 s{S_NBLK}, 0")
    e("s_cbranch_scc1 K2_empty_range")
    e(f"v_add_u32 v{V_A}, s{S_K0}, v{V_L}")
    e(f"v_lshlrev_b32 v{V_A}, 2, v{V_A}")
    e(f"ds_read_b32 v{V_DB}, v{V_A} offset:{GN}")
    e(f"ds_read_b32 v{V_F}, v{V_A} offset:{GN-4}")
    e(f"s_lshl_b32 s{S_TMP}, s{S_K0}, 6")
    e(f"v_mov_b32 v{V_AI}, s{S_TMP}")
    e(f"v_mad_u32_u24 v{V_AE}, v{V_ESTR}, s{S_K0}, v{V_EBASE}")
    idx_reads(T[0], 0)
    idx_reads(T[1], 1)
    attr_read(0)
    e(f"v_mul_u32_u24 v{V_ESTR}, 3, v{V_ESTR}")
    for r in (DEN, DEN+1, NUM, NUM+1):
        e(f"v_mov_b32 v{r}, 0")
    e("s_waitcnt lgkmcnt(0)")
    e(f"v_readlane_b32 s{S_D}, v{V_DB}, 0")
    issue_row_loads(T[0])
    node_rows_read(S_D)
    e(f"s_mov_b32 s{S_LOADED}, s{S_D}")
    e(f"s_and_b32 s{S_CUR}, s{S_D}, 0xff")
    e(f"s_lshl_b32 s{S_ROW}, s{S_CUR}, 6")
    e(f"s_cmp_lg_u32 s{S_P32}, 0")
    e("s_cbranch_scc1 K2_carry_done")
    e(f"v_readlane_b32 s{S_TMP2}, v{V_F}, 0")
    e(f"s_add_u32 s{S_MIX}, s{S_RNG}, 40")
    e(f"s_lshl_b32 s{S_MIX}, s{S_MIX}, 8")
    e(f"s_lshr_b32 s{S_TMP2}, s{S_TMP2}, 24")
    e(f"s_cmp_eq_u32 s{S_K0}, 0")
    e(f"s_cselect_b32 s{S_TMP2}, 0x100, s{S_TMP2}")
    e(f"s_cmp_eq_u32 s{S_TMP2}, s{S_CUR}")
    e(f"s_cselect_b32 s{S_ROW}, s{S_MIX}, s{S_ROW}")
    e(f"s_cselect_b32 s{S_TMP2}, s{S_CUR}, 0xff")
    e(f"s_lshl_b32 s{S_TMP}, s{S_RNG}, 2")
    e(f"v_mov_b32 v{V_A}, s{S_TMP}")
    e(f"v_mov_b32 v{V_F}, s{S_TMP2}")
    e(f"ds_write_b32 v{V_A}, v{V_F} offset:{CN}")
    lab("K2_carry_done")
    e(f"s_mov_b32 s{S_K}, 0")
    e(f"s_cmp_lt_u32 s{S_NBLK}, 2")
    e("s_cbranch_scc1 K2_one_block")
    issue_row_loads(T[1])
    lab("K2_one_block")
    e("s_waitcnt lgkmcnt(0)")
    node_rows_pack()
    if "noprio" not in OPT: e("s_setprio 3")
    e(f"s_cmp_gt_u32 s{S_NBLK}, 2")
    e("s_cbranch_scc0 K2_t0")
    bodyf = body_shl if "shl" in OPT else body
    for P in range(3): bodyf(P, True)
    for P in range(3): bodyf(P, False)
    for P in range(3): body_outlined(P, True)
    for P in range(3): body_outlined(P, False)
    atomic_flushes()
    lab("K2_range_end")
    ATOMIC_SITES.clear()
    flush("K2_last")
    e("s_branch K2_main_done")
    lab("K2_empty_range")
    e(f"s_cmp_lg_u32 s{S_P32}, 0")
    e("s_cbranch_scc1 K2_main_done")
    e(f"s_lshl_b32 s{S_TMP}, s{S_RNG}, 2")
    e(f"v_mov_b32 v{V_A}, s{S_TMP}")
    e(f"v_mov_b32 v{V_F}, 0xff")
    e(f"ds_write_b32 v{V_A}, v{V_F} offset:{CN}")
    lab("K2_main_done")
    if "noprio" not in OPT: e("s_setprio 0")
    stamp(5)
    e(f"s_add_u32 s{S_P32}, s{S_P32}, 32")
    e(f"s_cmp_ge_u32 s{S_P32}, s{S_MAX}")
    e("s_cbranch_scc1 K2_final")
    e(f"s_cmp_lg_u32 s{S_WAVE}, 0")
    e("s_cbranch_scc1 K2_nozc")
    e("v_mov_b32 v76, 0")
    e(f"ds_write_b32 v{V_L4}, v76 offset:{CNT}")
    lab("K2_nozc")
    e(f"v_cmp_ne_u32 vcc, 0, v{V_ESTR}")
    e("v_mov_b32 v76, 0x80")
    nop(1)
    e(f"v_cndmask_b32 v{V_ESTR}, 0, v76, vcc")
    pass_addr()
    e("s_waitcnt lgkmcnt(0)")
    e("s_barrier")
    e("s_branch K2_pass")
    lab("K2_final")
    e("s_waitcnt lgkmcnt(0)")
    e("s_barrier")
    stamp(6)
    e(f"s_cmp_ge_u32 s{S_WAVE}, 10")
    e("s_cbranch_scc1 K2_end")
    e("v_lshlrev_b32 v67, 4, v0")
    e(f"ds_read_b128 v[16:19], v67 offset:{ACCN}")
    e(f"ds_read_b128 v[20:23], v67 offset:{ACCD}")
    e(f"ds_read_b128 v[24:27], v67 offset:{T2L}")
    e(f"v_and_b32 v30, 15, v{V_L}")
    e("v_lshlrev_b32 v31, 2, v30")
    e(f"ds_read_b32 v31, v31 offset:{CN}")
    e(f"s_mul_i32 s41, s{S_BIN}, 5120")
    e("v_lshl_add_u32 v66, v0, 3, s41")
    e("s_mov_b32 s42, 0x358637bd")
    e("v_lshrrev_b32 v32, 4, v0")
    e("v_lshlrev_b32 v32, 2, v32")
    e("v_lshlrev_b32 v33, 4, v30")
    e("s_waitcnt lgkmcnt(0)")
    e("v_lshrrev_b32 v34, 4, v31")
    e(f"v_cmp_eq_u32 vcc, s{S_WAVE}, v34")
    e("s_and_b32 s44, vcc_lo, 0xffff")
    lab("K2_merge")
    e("s_cmp_eq_u32 s44, 0")
    e("s_cbranch_scc1 K2_merged")
    e("s_ff1_i32_b32 s45, s44")
    e("s_bitset0_b32 s44, s45")
    e("v_readlane_b32 s46, v31, s45")
    e("s_add_u32 s45, s45, 40")
    e("s_lshl_b32 s45, s45, 8")
    e("v_add_u32 v35, s45, v33")
    e(f"ds_read_b128 v[36:39], v35 offset:{ACCN}")
    e(f"ds_read_b128 v[40:43], v35 offset:{ACCD}")
    e("v_cmp_eq_u32 vcc, s46, v32")
    e("s_waitcnt lgkmcnt(0)")
    e("s_mov_b64 exec, vcc")
    for r in range(4):
        e(f"v_add_f32 v{16+r}, v{16+r}, v{36+r}")
        e(f"v_add_f32 v{20+r}, v{20+r}, v{40+r}")
    e("s_mov_b64 exec, -1")
    e("s_branch K2_merge")
    lab("K2_merged")
    for r in range(4):
        e(f"v_add_f32 v{20+r}, s42, v{20+r}")
    for r in range(4):
        e(f"v_rcp_f32 v{20+r}, v{20+r}")
    for r in range(4):
        e(f"v_and_b32 v{24+r}, 0xffff0000, v{24+r}")
    for r in range(4):
        e(f"v_fma_f32 v{16+r}, v{16+r}, v{20+r}, v{24+r}")
    for r in range(4):
        e(f"v_mul_f32 v{20+r}, 0, v{16+r}")
    for r in range(4):
        e(f"v_cmp_lt_f32 vcc, 0, v{16+r}")
        nop(2)
        e(f"v_cndmask_b32 v{16+r}, v{20+r}, v{16+r}, vcc")
    e(f"v_lshlrev_b32 v24, 16, v{V_X}")
    e(f"v_and_b32 v25, 0xffff0000, v{V_X}")
    e(f"v_lshlrev_b32 v26, 16, v{V_X+1}")
    e(f"v_and_b32 v27, 0xffff0000, v{V_X+1}")
    for r in range(4):
        e(f"v_add_f32 v{16+r}, v{16+r}, v{24+r}")
    e("v_cvt_pk_bf16_f32 v28, v16, v17")
    e("v_cvt_pk_bf16_f32 v29, v18, v19")
    e("global_store_dwordx2 v66, v[28:29], s[22:23]")
    lab("K2_end")
    stamp(7)
    stamp_store(8, S_WAVE, WS_STAMP, S_BIN)
    lab("K2_done")
    e("s_endpgm")
    lab("K2_idle")
    e(f"v_readfirstlane_b32 s{S_WAVE}, v0")
    e("s_waitcnt lgkmcnt(0)")
    e(f"s_lshr_b32 s{S_WAVE}, s{S_WAVE}, 6")
    warm_table(idle=True)
    e("s_endpgm")
    atomic_flushes()

def gen_diag(spec):
    ka, sa, ra, kb, sb, rb = spec
    out.append(".globl diag_kernel")
    out.append(".p2align 8")
    out.append(".type diag_kernel,@function")
    lab("diag_kernel")
    e("s_cmp_ge_u32 s2, 1")
    e("s_cbranch_scc1 DG_done")
    e("s_load_dwordx2 s[26:27], s[0:1], 88")
    e("s_waitcnt lgkmcnt(0)")
    e(f"s_add_u32 s4, s26, {WS_STAMP + 0x100000:#x}")
    e("s_addc_u32 s5, s27, 0")
    e("s_load_dword s20, s[4:5], 0")
    e("v_mov_b32 v20, 0")
    e("v_mov_b32 v21, 0x7fffffff")
    e("v_mov_b32 v22, 0x80000000")
    e(f"ds_write_b32 v20, v{21 if ra == 'min' else 22} offset:0")
    e(f"ds_write_b32 v20, v{21 if rb == 'min' else 22} offset:4")
    e("s_waitcnt lgkmcnt(0)")
    e("s_barrier")
    def reduce(kern, st, red, off, tag):
        base = WS_STAMP + (0x100000 if kern[0] == '1' else 0)
        w0, w1, nw = {'1b': (0, 250, 10), '1t': (0, 250, 16), '1': (0, 250, 16), '2': (0, 250, 16)}[kern]
        e(f"s_add_u32 s4, s26, {base + 8*st:#x}")
        e("s_addc_u32 s5, s27, 0")
        for r in range(6):
            e(f"v_add_u32 v1, {w0*16 + 1024*r}, v0")
            e("v_and_b32 v3, 15, v1")
            e(f"v_cmp_gt_u32 vcc, {nw}, v3")
            e(f"v_cmp_gt_u32 s[10:11], s30, v1".replace("s30", "s30"))
            e("s_and_b64 vcc, vcc, s[10:11]")
            e("s_and_saveexec_b64 s[12:13], vcc")
            e(f"s_cbranch_execz DG_{tag}{r}")
            e("v_lshlrev_b32 v1, 7, v1")
            e("global_load_dword v2, v1, s[4:5]")
            e("s_waitcnt vmcnt(0)")
            e("v_subrev_u32 v2, s20, v2")
            e(f"ds_{red}_i32 v20, v2 offset:{off}")
            lab(f"DG_{tag}{r}")
            e("s_mov_b64 exec, s[12:13]")
    def bound(kern):
        w1 = 250
        e(f"s_mov_b32 s30, {w1*16}")
    bound(ka); reduce(ka, sa, ra, 0, "a")
    bound(kb); reduce(kb, sb, rb, 4, "b")
    e("s_waitcnt lgkmcnt(0)")
    e("s_barrier")
    e("ds_read_b64 v[4:5], v20")
    e("s_waitcnt lgkmcnt(0)")
    e("v_readfirstlane_b32 s21, v4")
    e("v_readfirstlane_b32 s12, v5")
    e("s_nop 3")
    e("s_sub_u32 s22, s12, s21")
    e("s_max_i32 s22, s22, 0")
    e("s_min_i32 s22, s22, 4000")
    e("s_mul_i32 s22, s22, 20")
    e("s_memrealtime s[14:15]")
    e("s_waitcnt lgkmcnt(0)")
    lab("DG_spin")
    e("s_memrealtime s[16:17]")
    e("s_waitcnt lgkmcnt(0)")
    e("s_sub_u32 s18, s16, s14")
    e("s_cmp_lt_u32 s18, s22")
    e("s_cbranch_scc1 DG_spin")
    lab("DG_done")
    e("s_endpgm")

def kd(name, vgpr, sgpr):
    out.append(".p2align 6")
    out.append(f".amdhsa_kernel {name}")
    out.append(f"  .amdhsa_next_free_vgpr {vgpr}")
    out.append(f"  .amdhsa_next_free_sgpr {sgpr}")
    out.append(f"  .amdhsa_accum_offset {(vgpr+3)//4*4}")
    out.append("  .amdhsa_group_segment_fixed_size 0")
    out.append("  .amdhsa_kernarg_size 96")
    out.append("  .amdhsa_user_sgpr_count 2")
    out.append("  .amdhsa_user_sgpr_kernarg_segment_ptr 1")
    out.append("  .amdhsa_system_sgpr_workgroup_id_x 1")
    out.append(".end_amdhsa_kernel")

HEADER = f"""; Kernarg layout (96 bytes, ptrs only, base s[0:1]):
;   56 w_u | 64 w_v | 72 out (10000,64) bf16 | 80 debug | 88 workspace
; @launch kernel={PREP} grid=({NB},1,1) block=(1024,1,1) lds={K1_LDS}
; @launch kernel={MAIN} grid=({K2_GRID},1,1) block=(1024,1,1) lds={K2_LDS}
.amdgcn_target "amdgcn-amd-amdhsa--gfx950"
.text"""

def main():
    global STAMPS
    if "--stamps" in sys.argv:
        STAMPS = True
        sys.argv.remove("--stamps")
    for a in list(sys.argv):
        if a.startswith("--opt="):
            OPT.update(a[6:].split(","))
            sys.argv.remove(a)
    diag = [o for o in OPT if o.startswith("diag=")]
    hdr = HEADER
    if diag:
        hdr = hdr.replace(".amdgcn_target", "; @launch kernel=diag_kernel grid=(1,1,1) block=(1024,1,1) lds=64\n.amdgcn_target")
    out.append(hdr)
    gen_k1()
    gen_k2()
    if diag: gen_diag([int(x) if x.isdigit() and i in (1, 4) else x for i, x in enumerate(diag[0][5:].split(":"))])
    out.append('.section .rodata,"a"')
    if diag: kd("diag_kernel", 32, 48)
    kd(PREP, 80, 102 if STAMPS else 56)
    kd(MAIN, K2_VGPRS, 102 if STAMPS else 80)
    path = sys.argv[1] if len(sys.argv) > 1 else "standalone__edge_featured_mpnn_gatedgcn__graph.s"
    open(path, "w").write("\n".join(out) + "\n")
    print("wrote", path, len(out), "lines")

if __name__ == "__main__":
    main()
```

```python
import sys

MAIN = "standalone__edge_featured_mpnn_gatedgcn__graph_kernel"
PREP = "gcn_prep_kernel"

N_NODES = 10000
NB = 250
EPC = 2560
NPB = 40
WS_T = 0
WS_T2 = 0x280000
WS_TAB = 0x500000
WS_REC = 0x580000
REC_STRIDE = EPC * 12
NEG_L2E = 0xBFB8AA3B

out = []
def e(s): out.append("    " + s)
def lab(s): out.append(s + ":")
def cmt(s): out.append("    ; " + s)
def nop(n):
    while n > 0:
        k = min(n, 16)
        e(f"s_nop {k-1}")
        n -= k

STAMPS = False
OPT = set()
WS_STAMP = 0x2000000
def fstamp(k):
    if STAMPS and "fine" in OPT: e(f"s_memtime s[{80+2*k}:{81+2*k}]")
def stamp(k):
    if not STAMPS or ("segs" in OPT and k >= 2): return
    if "fine" in OPT:
        if k in (0, 1): e(f"s_memtime s[{80+2*k}:{81+2*k}]")
        return
    if "both" in OPT:
        if k in (4, 6):
            e(f"s_memtime s[{80+2*k}:{81+2*k}]")
            e(f"s_memrealtime s[{82+2*k}:{83+2*k}]")
        elif k not in (5, 7):
            e(f"s_memtime s[{80+2*k}:{81+2*k}]")
        return
    e(f"{'s_memrealtime' if 'rt' in OPT else 's_memtime'} s[{80+2*k}:{81+2*k}]")
def seg(k):
    if "segs" in OPT:
        e("s_memtime s[98:99]")
        e("s_waitcnt lgkmcnt(0)")
        e("s_sub_u32 s100, s98, s79")
        e(f"s_add_u32 s{84+k}, s{84+k}, s100")
        e("s_mov_b32 s79, s98")
def stamp_store(nst, wave_sreg, base_off, wg_sreg=2):
    if not STAMPS: return
    e("s_waitcnt vmcnt(0) lgkmcnt(0)")
    e("s_mov_b64 exec, 1")
    e(f"s_lshl_b32 s98, s{wg_sreg}, 4")
    e(f"s_add_u32 s98, s98, s{wave_sreg}")
    e(f"s_lshl_b32 s98, s98, 7")
    e(f"s_add_u32 s98, s98, {base_off:#x}")
    e("s_add_u32 s96, s26, s98")
    e("s_addc_u32 s97, s27, 0")
    e("v_mov_b32 v0, 0")
    for k in range(nst):
        e(f"v_mov_b32 v2, s{80+2*k}")
        e(f"v_mov_b32 v3, s{81+2*k}")
        e(f"global_store_dwordx2 v0, v[2:3], s[96:97] offset:{8*k}")
        e("s_nop 1")
    e("s_waitcnt vmcnt(0)")
    e("s_mov_b64 exec, -1")

def dpp_scan(v):
    for ctl in ("row_shr:1 row_mask:0xf bank_mask:0xf", "row_shr:2 row_mask:0xf bank_mask:0xf",
                "row_shr:4 row_mask:0xf bank_mask:0xf", "row_shr:8 row_mask:0xf bank_mask:0xf",
                "row_bcast:15 row_mask:0xa bank_mask:0xf", "row_bcast:31 row_mask:0xc bank_mask:0xf"):
        nop(2)
        e(f"v_add_u32_dpp v{v}, v{v}, v{v} {ctl}")

def load_kernargs():
    e("s_load_dwordx16 s[4:19], s[0:1], 0")
    e("s_load_dwordx8 s[20:27], s[0:1], 64")

def add64(d, s, imm):
    e(f"s_add_u32 s{d}, s{s}, {imm:#x}")
    e(f"s_addc_u32 s{d+1}, s{s+1}, 0")

K1_STG, K1_HIST, K1_OFF = 0, 30720, 33280
K1_SYNC = K1_HIST + 4*300
K1_W = 34304
W_PITCH = 144
W_MAT = 64 * W_PITCH
K1_TT = K1_W + 2*W_MAT
K1_LDS = K1_TT + 6*16*144

def WT():
    for o in OPT:
        if o.startswith("wt="): return " " + o[3:].replace("+", " ") if o[3:] != "none" else ""
    return " sc1"

def gen_k1():
    out.append(f".globl {PREP}")
    out.append(".p2align 8")
    out.append(f".type {PREP},@function")
    lab(PREP)
    e(f"s_cmp_ge_u32 s2, {NB}")
    e("s_cbranch_scc1 K1_done")
    stamp(0)
    load_kernargs()
    e("v_readfirstlane_b32 s33, v0")
    e("v_and_b32 v1, 63, v0")
    e("v_and_b32 v60, 0x1ff, v0")
    e("v_lshlrev_b32 v61, 4, v60")
    e("v_lshrrev_b32 v62, 3, v60")
    e(f"v_mul_u32_u24 v62, {W_PITCH}, v62")
    e("v_and_b32 v63, 7, v60")
    e("v_lshl_add_u32 v62, v63, 4, v62")
    e("s_lshr_b32 s33, s33, 6")
    e("s_lshr_b32 s34, s33, 3")
    e(f"s_mul_i32 s35, s34, {W_MAT}")
    e(f"s_add_u32 s35, s35, {K1_W}")
    e("v_add_u32 v62, s35, v62")
    e("v_lshlrev_b32 v3, 2, v0")
    e("v_mov_b32 v20, 0")
    e("s_cmp_ge_u32 s33, 10")
    e("s_cbranch_scc1 K1_tables")
    ldf = " nt" if "ntld" in OPT else ""
    e("s_mul_i32 s28, s2, 10240")
    e("v_lshl_add_u32 v58, v0, 4, s28")
    e("s_lshl_b32 s29, s28, 1")
    e("v_lshl_add_u32 v59, v0, 5, s29")
    e(f"ds_write_b32 v3, v20 offset:{K1_HIST}")
    e("s_waitcnt lgkmcnt(0)")
    e("s_cmp_eq_u32 s34, 0")
    e("s_cselect_b32 s44, s14, s20")
    e("s_cselect_b32 s45, s15, s21")
    e(f"global_load_dwordx4 v[4:7], v58, s[10:11]{ldf}")
    e("global_load_dwordx4 v[40:43], v61, s[44:45]")
    e(f"global_load_dwordx4 v[8:11], v58, s[8:9]{ldf}")
    e(f"global_load_dwordx4 v[12:15], v59, s[6:7]{ldf}")
    e(f"global_load_dwordx4 v[16:19], v59, s[6:7] offset:16{ldf}")
    e("s_mov_b32 s30, 52429")
    e("s_movk_i32 s31, -40")
    e("v_mov_b32 v57, 1")
    e("s_barrier")
    e("s_waitcnt vmcnt(4)")
    stamp(1)
    for i in range(4):
        e(f"v_mul_u32_u24 v{20+i}, s30, v{4+i}")
    for i in range(4):
        e(f"v_lshrrev_b32 v{20+i}, 21, v{20+i}")
    for i in range(4):
        e(f"v_mad_i32_i24 v{28+i}, v{20+i}, s31, v{4+i}")
    for i in range(4):
        e(f"v_lshlrev_b32 v{20+i}, 2, v{20+i}")
    for i in range(4):
        e(f"ds_add_rtn_u32 v{24+i}, v{20+i}, v57 offset:{K1_HIST}")
    e("v_lshlrev_b32 v32, 4, v1")
    e("s_waitcnt vmcnt(3)")
    e("ds_write_b128 v62, v[40:43]")
    e("s_waitcnt lgkmcnt(0)")
    e("s_barrier")
    stamp(2)
    e(f"ds_read_b128 v[36:39], v32 offset:{K1_HIST}")
    e("s_waitcnt vmcnt(2)")
    for i in range(4):
        e(f"v_lshlrev_b32 v{8+i}, 8, v{8+i}")
    for i in range(4):
        e(f"v_lshl_or_b32 v{28+i}, v{28+i}, 26, v{8+i}")
    e("s_waitcnt lgkmcnt(0)")
    e("v_add_u32 v40, v36, v37")
    e("v_add_u32 v41, v40, v38")
    e("v_add_u32 v42, v41, v39")
    e("v_mov_b32 v43, v42")
    dpp_scan(43)
    e("v_sub_u32 v44, v43, v42")
    e("v_add_u32 v45, v44, v36")
    e("v_add_u32 v46, v44, v40")
    e("v_add_u32 v47, v44, v41")
    e(f"ds_write_b128 v32, v[44:47] offset:{K1_OFF}")
    for i in range(4):
        e(f"ds_read_b32 v{52+i}, v{20+i} offset:{K1_OFF}")
    e("s_cmp_lg_u32 s33, 0")
    e("s_cbranch_scc1 K1_notab")
    for k in range(4):
        e(f"v_mul_u32_u24 v{48+k}, 12, v{44+k}")
    for k in range(4):
        e(f"v_lshl_or_b32 v{48+k}, v{36+k}, 16, v{48+k}")
    e("s_lshl_b32 s34, s2, 10")
    e("v_add_u32 v33, s34, v32")
    add64(36, 26, WS_TAB)
    e(f"global_store_dwordx4 v33, v[48:51], s[36:37]{WT()}")
    e("s_cmp_ge_u32 s2, 6")
    e("s_cbranch_scc1 K1_notab")
    for k in range(4):
        e(f"v_mov_b32 v{48+k}, 0")
    e(f"v_add_u32 v33, {NB*1024}, v33")
    e(f"global_store_dwordx4 v33, v[48:51], s[36:37]{WT()}")
    lab("K1_notab")
    e("s_waitcnt lgkmcnt(0)")
    for i in range(4):
        e(f"v_add_u32 v{52+i}, v{52+i}, v{24+i}")
    for i in range(4):
        e(f"v_mul_u32_u24 v{52+i}, 12, v{52+i}")
    e("s_cmp_lg_u32 s33, 0")
    e("s_cbranch_scc1 K1_attr_all")
    e("s_cmp_lt_u32 s2, 6")
    e("s_cbranch_scc1 K1_attr_two")
    e("s_waitcnt vmcnt(1)")
    e("s_branch K1_attr_ready")
    lab("K1_attr_two")
    e("s_waitcnt vmcnt(2)")
    e("s_branch K1_attr_ready")
    lab("K1_attr_all")
    e("s_waitcnt vmcnt(0)")
    lab("K1_attr_ready")
    for i in range(4):
        e(f"ds_write2_b32 v{52+i}, v{12+2*i}, v{13+2*i} offset0:0 offset1:1")
        e(f"ds_write_b32 v{52+i}, v{28+i} offset:8")
    e("s_mul_i32 s34, s2, %d" % REC_STRIDE)
    add64(38, 26, WS_REC)
    e("s_add_u32 s38, s38, s34")
    e("s_addc_u32 s39, s39, 0")
    add64(40, 38, 10240)
    add64(42, 38, 20480)
    e("v_lshlrev_b32 v3, 4, v0")
    e(f"v_mov_b32 v33, {K1_SYNC}")
    e("s_waitcnt lgkmcnt(0)")
    e("s_mov_b64 exec, 1")
    e("ds_add_u32 v33, v57")
    e("s_mov_b64 exec, -1")
    lab("K1_sync")
    e("ds_read_b32 v34, v33")
    e("s_waitcnt lgkmcnt(0)")
    e("v_readfirstlane_b32 s34, v34")
    e("s_nop 0")
    e("s_cmp_lt_u32 s34, 10")
    e("s_cbranch_scc1 K1_sync")
    stamp(3)
    e("ds_read_b128 v[4:7], v3")
    e("ds_read_b128 v[8:11], v3 offset:10240")
    e("ds_read_b128 v[12:15], v3 offset:20480")
    e("s_waitcnt lgkmcnt(2)")
    if "norec" not in OPT: e(f"global_store_dwordx4 v3, v[4:7], s[38:39]{WT()}")
    e("s_waitcnt lgkmcnt(1)")
    if "norec" not in OPT: e(f"global_store_dwordx4 v3, v[8:11], s[40:41]{WT()}")
    e("s_waitcnt lgkmcnt(0)")
    if "norec" not in OPT: e(f"global_store_dwordx4 v3, v[12:15], s[42:43]{WT()}")
    stamp(4)
    if STAMPS:
        e("s_waitcnt vmcnt(0)")
        stamp(5)
    stamp_store(6, 33, WS_STAMP + 0x100000)
    e("s_endpgm")
    lab("K1_tables")
    e("s_sub_u32 s34, s33, 10")
    e("s_and_b32 s35, s34, 1")
    e(f"s_mul_i32 s43, s34, {16*144}")
    e(f"s_add_u32 s43, s43, {K1_TT}")
    e("s_lshr_b32 s34, s34, 1")
    e("s_mul_i32 s36, s2, 40")
    e("s_lshl_b32 s37, s34, 4")
    e("s_add_u32 s36, s36, s37")
    e("v_and_b32 v2, 15, v1")
    e("v_lshrrev_b32 v3, 4, v1")
    e("v_add_u32 v60, s36, v2")
    e(f"v_min_u32 v59, {N_NODES-1}, v60")
    e("v_lshlrev_b32 v59, 7, v59")
    e("v_lshl_add_u32 v59, v3, 4, v59")
    e("s_waitcnt lgkmcnt(0)")
    e("global_load_dwordx4 v[40:43], v61, s[20:21]")
    e("global_load_dwordx4 v[20:23], v59, s[4:5]")
    e("global_load_dwordx4 v[24:27], v59, s[4:5] offset:64")
    e("s_barrier")
    e("v_lshrrev_b32 v4, 2, v2")
    e("v_lshl_add_u32 v4, v3, 3, v4")
    e(f"v_mul_u32_u24 v4, {W_PITCH}, v4")
    e("v_and_b32 v63, 3, v2")
    e("v_lshl_add_u32 v4, v63, 3, v4")
    e("s_lshl_b32 s37, s35, 6")
    e(f"s_add_u32 s37, s37, {K1_W}")
    e("v_add_u32 v4, s37, v4")
    e("v_mul_u32_u24 v5, 144, v2")
    e("v_lshl_add_u32 v5, v3, 4, v5")
    e("v_add_u32 v5, s43, v5")
    e("v_lshrrev_b32 v8, 3, v1")
    e("v_and_b32 v9, 7, v1")
    e("v_mul_u32_u24 v6, 144, v8")
    e("v_lshl_add_u32 v6, v9, 4, v6")
    e("v_add_u32 v6, s43, v6")
    e("v_add_u32 v7, s36, v8")
    e("v_lshlrev_b32 v7, 8, v7")
    e("v_lshl_add_u32 v7, v9, 4, v7")
    e("s_lshl_b32 s37, s35, 7")
    e("v_add_u32 v7, s37, v7")
    e(f"s_mov_b32 s40, {NEG_L2E:#x}")
    e("s_brev_b32 s41, 1")
    e("s_mov_b32 s42, 0x7fff0000")
    e("s_waitcnt vmcnt(2)")
    e("ds_write_b128 v62, v[40:43]")
    e("s_waitcnt lgkmcnt(0)")
    stamp(1)
    e("s_barrier")
    stamp(2)
    WB, DB = 28, 64
    def wreg(ft, mp, ks): return WB + 16*ft + 8*mp + 4*ks
    def wreads(ft):
        for mp in range(2):
            for ks in range(2):
                for half in range(2):
                    r = wreg(ft, mp, ks) + 2*half
                    off = mp*W_MAT + (32*ks + 4*half)*W_PITCH + ft*32
                    e(f"ds_read_b64_tr_b16 v[{r}:{r+1}], v4 offset:{off}")
    def mfmas(ft):
        d1, d2 = DB + 8*ft, DB + 8*ft + 4
        e(f"v_mfma_f32_16x16x32_bf16 v[{d1}:{d1+3}], v[{wreg(ft,0,0)}:{wreg(ft,0,0)+3}], v[20:23], 0")
        e(f"v_mfma_f32_16x16x32_bf16 v[{d2}:{d2+3}], v[{wreg(ft,1,0)}:{wreg(ft,1,0)+3}], v[20:23], 0")
        e(f"v_mfma_f32_16x16x32_bf16 v[{d1}:{d1+3}], v[{wreg(ft,0,1)}:{wreg(ft,0,1)+3}], v[24:27], v[{d1}:{d1+3}]")
        e(f"v_mfma_f32_16x16x32_bf16 v[{d2}:{d2+3}], v[{wreg(ft,1,1)}:{wreg(ft,1,1)+3}], v[24:27], v[{d2}:{d2+3}]")
    wreads(0)
    e("s_waitcnt vmcnt(0) lgkmcnt(0)")
    wreads(1)
    mfmas(0)
    e("s_waitcnt lgkmcnt(0)")
    mfmas(1)
    nop(8)
    stamp(3)
    for ft in range(2):
        for r in range(4):
            e(f"v_mul_f32 v{DB+8*ft+r}, s40, v{DB+8*ft+r}")
    for ft in range(2):
        b = DB + 8*ft
        e(f"v_cvt_pk_bf16_f32 v{44+2*ft}, v{b}, v{b+1}")
        e(f"v_cvt_pk_bf16_f32 v{45+2*ft}, v{b+2}, v{b+3}")
    for ft in range(2):
        b = DB + 8*ft
        e(f"v_and_b32 v{b}, 0xffff, v{44+2*ft}")
        e(f"v_lshrrev_b32 v{b+1}, 16, v{44+2*ft}")
        e(f"v_and_b32 v{b+2}, 0xffff, v{45+2*ft}")
        e(f"v_lshrrev_b32 v{b+3}, 16, v{45+2*ft}")
    el = [(DB+8*ft+r, DB+8*ft+4+r, 28+4*ft+r, 48+4*ft+r) for ft in range(2) for r in range(4)]
    for lo, hv, o, t in el: e(f"v_and_b32 v{t}, 0x7fffffff, v{hv}")
    for lo, hv, o, t in el: e(f"v_add_u32 v{t}, 0x8000, v{t}")
    for lo, hv, o, t in el: e(f"v_sub_u32_e64 v{t}, v{t}, v{lo} clamp")
    for lo, hv, o, t in el: e(f"v_and_or_b32 v{o}, v{hv}, s41, v{lo}")
    for lo, hv, o, t in el: e(f"v_bfi_b32 v{o}, s42, v{t}, v{o}")
    for ft in range(2):
        e(f"ds_write_b128 v5, v[{28+4*ft}:{31+4*ft}] offset:{ft*64}")
    e("s_waitcnt lgkmcnt(0)")
    e("ds_read_b128 v[36:39], v6")
    e(f"ds_read_b128 v[40:43], v6 offset:{8*144}")
    e("s_waitcnt lgkmcnt(1)")
    if "notab" not in OPT: e(f"global_store_dwordx4 v7, v[36:39], s[26:27]{WT()}")
    e("s_cmp_eq_u32 s34, 2")
    e("s_cbranch_scc1 K1_nost")
    e("s_waitcnt lgkmcnt(0)")
    if "notab" not in OPT: e(f"global_store_dwordx4 v7, v[40:43], s[26:27] offset:2048{WT()}")
    lab("K1_nost")
    stamp(4)
    if STAMPS:
        e("s_waitcnt vmcnt(0)")
        stamp(5)
    stamp_store(6, 33, WS_STAMP + 0x100000)
    e("s_sub_u32 s37, s33, 10")
    e("s_or_b32 s37, s37, s2")
    e("s_cmp_lg_u32 s37, 0")
    e("s_cbranch_scc1 K1_done")
    e("v_lshlrev_b32 v2, 2, v1")
    e(f"v_add_u32 v2, {N_NODES*256:#x}, v2")
    e("v_mov_b32 v3, 0x7f00")
    e(f"global_store_dword v2, v3, s[26:27]{WT()}")
    lab("K1_done")
    e("s_endpgm")

ACCN, ACCD = 0, 14336
CNT, MAXC, CN, ZERO = 28672, 28928, 28944, 29008
ZERO_END = 29440
START = 29440
T2L = 29696
AA = 39936
GN = 50432
CAPP = 8160
IDX = GN + 2048
ATTR = IDX + 4*CAPP
K2_LDS = ATTR + 8*CAPP
WST = ATTR
DUMMY = N_NODES * 256
K2_GRID = 256

V_L, V_L4 = 1, 2
V_AI, V_AE, V_ESTR, V_EBASE = 3, 4, 5, 6
V_DB, V_DESC = 7, 8
V_X = 12
V_END, V_A = 14, 15
T = (16, 32, 48)
D = 64
SEL, EO, BE, ONE = 80, 84, 88, 92
DEN, NUM = 96, 98
V_M = 100
V_F = 104
V_LT2 = 106
V_PF = 108
V_XO = 112
K2_VGPRS = 128
S_T = 28
S_BIN, S_WAVE, S_P32, S_MAX = 37, 38, 39, 40
S_MASK = 44
S_K0, S_NBLK, S_K, S_CUR, S_D, S_DN, S_LOADED = 60, 61, 62, 63, 64, 65, 66
S_MIX, S_ROW, S_TMP, S_TMP2, S_PERM = 67, 68, 69, 70, 71
S_KC = 72
S_RNG = 76
S_EXM = 78

def slot(i, jj): return 16 + 4*(i + 4*jj)
def smask(i, jj): return S_MASK + 2*(i + 4*jj)

def issue_row_loads(tb):
    for v in range(tb, tb+16):
        if "noload" in OPT: e("s_nop 0")
        else: e(f"buffer_load_dword v{v}, v{v}, s[{S_T}:{S_T+3}], 0 offen")

def pf_kb():
    for o in OPT:
        if o.startswith("pf="): return int(o[3:])
    return 32

def warm_table(idle=False):
    kb = pf_kb()
    if kb == 0: return
    e("s_lshr_b32 s41, s2, 3")
    e("s_mul_i32 s41, s41, 81920")
    if idle:
        e(f"v_lshl_add_u32 v{V_PF+1}, v0, 6, s41")
        e(f"global_load_dword v{V_PF}, v{V_PF+1}, s[26:27]")
        e(f"v_add_u32 v{V_PF+1}, 0x4000, v{V_PF+1}")
        e(f"global_load_dword v{V_PF}, v{V_PF+1}, s[26:27]")
        return
    e(f"s_mul_i32 s{S_TMP}, s{S_WAVE}, {kb*64}")
    e(f"s_add_u32 s41, s41, s{S_TMP}")
    e(f"v_lshl_add_u32 v{V_PF+1}, v{V_L}, 6, s41")
    if kb < 64:
        m = (1 << kb) - 1
        e(f"s_mov_b32 exec_lo, {m & 0xffffffff:#x}")
        e(f"s_mov_b32 exec_hi, {m >> 32:#x}")
    e(f"global_load_dword v{V_PF}, v{V_PF+1}, s[26:27]")
    if kb < 64: e("s_mov_b64 exec, -1")

def idx_reads(tb, blk):
    for q in range(4):
        e(f"ds_read_b128 v[{tb+4*q}:{tb+4*q+3}], v{V_AI} offset:{IDX+64*blk+16*q}")

def attr_read(blk):
    e(f"ds_read_b64 v[{EO}:{EO+1}], v{V_AE} offset:{128*blk}")

def node_rows_read(sdesc):
    for g in range(4):
        e(f"s_bfe_u32 s{S_TMP}, s{sdesc}, {(8 << 16) | (8*g):#x}")
        e(f"s_lshl_b32 s{S_TMP}, s{S_TMP}, 6")
        e(f"v_add_u32 v{V_A}, s{S_TMP}, v{V_LT2}")
        e(f"ds_read_b32 v{V_M+g}, v{V_A}")

def node_rows_pack():
    e(f"v_perm_b32 v{BE+2}, v{V_M+1}, v{V_M}, s{S_PERM}")
    e(f"v_perm_b32 v{BE+3}, v{V_M+3}, v{V_M+2}, s{S_PERM}")

def flush(tag):
    e(f"v_add_u32 v{V_A}, s{S_ROW}, v{V_L4}")
    e(f"v_add_f32 v{V_F}, v{DEN}, v{DEN+1}")
    e(f"v_add_f32 v{V_F+1}, v{NUM}, v{NUM+1}")
    e(f"s_cmp_lg_u32 s{S_P32}, 0")
    e(f"s_cbranch_scc1 {tag}_atomic")
    e(f"ds_write_b32 v{V_A}, v{V_F} offset:{ACCD}")
    e(f"ds_write_b32 v{V_A}, v{V_F+1} offset:{ACCN}")
    lab(f"{tag}_flushed")
    ATOMIC_SITES.append(tag)

ATOMIC_SITES = []
def atomic_flushes():
    for tag in ATOMIC_SITES:
        lab(f"{tag}_atomic")
        e(f"ds_add_f32 v{V_A}, v{V_F} offset:{ACCD}")
        e(f"ds_add_f32 v{V_A}, v{V_F+1} offset:{ACCN}")
        e(f"s_branch {tag}_flushed")

def acc_group(tp, g):
    for k in (2*g, 2*g+1):
        e(f"v_pk_add_f32 v[{DEN}:{DEN+1}], v[{DEN}:{DEN+1}], v[{D+2*k}:{D+2*k+1}]")
        e(f"v_pk_fma_f32 v[{NUM}:{NUM+1}], v[{D+2*k}:{D+2*k+1}], v[{tp+2*k}:{tp+2*k+1}], v[{NUM}:{NUM+1}]")

def acc_group_init(tp, g):
    a = 4*g
    e(f"v_pk_add_f32 v[{DEN}:{DEN+1}], v[{D+a}:{D+a+1}], v[{D+a+2}:{D+a+3}]")
    e(f"v_pk_mul_f32 v[{NUM}:{NUM+1}], v[{D+a}:{D+a+1}], v[{tp+a}:{tp+a+1}]")
    e(f"v_pk_fma_f32 v[{NUM}:{NUM+1}], v[{D+a+2}:{D+a+3}], v[{tp+a+2}:{tp+a+3}], v[{NUM}:{NUM+1}]")

def body_shl(P, main):
    tp, tr = T[P], T[(P+2) % 3]
    tag = f"K2_{'m' if main else 't'}{P}"
    lab(tag)
    if not main:
        e(f"s_add_u32 s{S_TMP}, s{S_K}, 1")
        e(f"s_cmp_eq_u32 s{S_TMP}, s{S_NBLK}")
        e(f"s_cbranch_scc1 {tag}_p0")
        e("s_setprio 1")
        e(f"s_branch {tag}_pd")
        lab(f"{tag}_p0")
        e("s_setprio 0")
        lab(f"{tag}_pd")
    e(f"s_add_u32 s{S_K}, s{S_K}, 1")
    if main:
        idx_reads(tr, P+2)
        if P == 2: e(f"v_add_u32 v{V_AI}, 0xc0, v{V_AI}")
        e("s_waitcnt lgkmcnt(0)")
        issue_row_loads(tr)
        e("s_waitcnt vmcnt(32)")
    else:
        e("s_waitcnt vmcnt(0) lgkmcnt(0)")
    for v in range(16):
        e(f"v_lshlrev_b32 v{D+v}, 16, v{tp+v}")
    nop(2)
    e(f"v_mfma_f32_32x32x16_bf16 v[{D}:{D+15}], v[{EO}:{EO+3}], v[{BE}:{BE+3}], v[{D}:{D+15}]")
    attr_read(P+1)
    if P == 2: e(f"v_add_u32 v{V_AE}, v{V_ESTR}, v{V_AE}")
    e(f"v_readlane_b32 s{S_DN}, v{V_DB}, s{S_K}")
    e(f"s_mov_b32 s{S_MIX}, 0")
    e(f"s_cmp_eq_u32 s{S_DN}, s{S_LOADED}")
    e(f"s_cbranch_scc0 {tag}_reload")
    lab(f"{tag}_loaded")
    nop(8)
    for v in range(16):
        e(f"v_exp_f32 v{D+v}, v{D+v}")
    nop(2)
    e(f"v_mfma_f32_32x32x8_bf16 v[{D}:{D+15}], v[{ONE}:{ONE+1}], v[{ONE}:{ONE+1}], v[{D}:{D+15}]")
    e(f"s_cmp_lg_u32 s{S_MIX}, 0")
    e(f"s_cbranch_scc1 {tag}_pack")
    lab(f"{tag}_packed")
    e(f"s_and_b32 s{S_TMP}, s{S_D}, 0xff")
    e(f"s_mul_i32 s{S_TMP}, s{S_TMP}, 0x01010101")
    e(f"s_and_b32 s{S_TMP2}, s{S_D}, 0xff")
    e(f"s_xor_b32 s{S_TMP}, s{S_TMP}, s{S_D}")
    e(f"s_xor_b32 s{S_TMP2}, s{S_TMP2}, s{S_CUR}")
    e(f"s_or_b32 s{S_TMP}, s{S_TMP}, s{S_TMP2}")
    nop(4)
    for v in range(16):
        e(f"v_rcp_f32 v{D+v}, v{D+v}")
    e(f"s_cbranch_scc1 {tag}_slow")
    for g in range(4): acc_group(tp, g)
    lab(f"{tag}_next")
    e(f"s_mov_b32 s{S_D}, s{S_DN}")
    nP = (P+1) % 3
    if main:
        e(f"s_add_u32 s{S_TMP}, s{S_K}, 2")
        e(f"s_cmp_lt_u32 s{S_TMP}, s{S_NBLK}")
        e(f"s_cbranch_scc0 K2_t{nP}")
        if P == 2:
            e(f"s_cmp_lt_u32 s{S_K}, 6")
            e("s_cbranch_scc1 K2_m0")
            e("s_setprio 2")
            e("s_branch K2_m0")
    else:
        e(f"s_cmp_lt_u32 s{S_K}, s{S_NBLK}")
        e("s_cbranch_scc0 K2_range_end")
        if P == 2: e("s_branch K2_t0")

def body(P, main):
    tp, tr = T[P], T[(P+2) % 3]
    tag = f"K2_{'m' if main else 't'}{P}"
    lab(tag)
    if "noprio" not in OPT and not main:
        if "prioA" not in OPT:
            e(f"s_add_u32 s{S_TMP}, s{S_K}, 1")
            e(f"s_cmp_eq_u32 s{S_TMP}, s{S_NBLK}")
            e(f"s_cbranch_scc1 {tag}_p0")
            e("s_setprio 1")
            e(f"s_branch {tag}_pd")
            lab(f"{tag}_p0")
            e("s_setprio 0")
            lab(f"{tag}_pd")
        else:
            e("s_setprio 0")
    e("s_waitcnt lgkmcnt(0)")
    shl = "shl" in OPT
    if "nomfma" not in OPT and not shl: e(f"v_mfma_f32_32x32x16_bf16 v[{D}:{D+15}], v[{EO}:{EO+3}], v[{BE}:{BE+3}], 0")
    e(f"s_add_u32 s{S_K}, s{S_K}, 1")
    if main and "nolds" not in OPT: idx_reads(tr, P+2)
    if "nolds" not in OPT: attr_read(P+1)
    if P == 2:
        if main: e(f"v_add_u32 v{V_AI}, 0xc0, v{V_AI}")
        e(f"v_add_u32 v{V_AE}, v{V_ESTR}, v{V_AE}")
    e(f"v_readlane_b32 s{S_DN}, v{V_DB}, s{S_K}")
    e(f"s_mov_b32 s{S_MIX}, 0")
    e(f"s_cmp_eq_u32 s{S_DN}, s{S_LOADED}")
    if "noreload" not in OPT: e(f"s_cbranch_scc0 {tag}_reload")
    lab(f"{tag}_loaded")
    early = "late" not in OPT
    if main and early:
        e("s_waitcnt lgkmcnt(1)")
        issue_row_loads(tr)
        e("s_waitcnt vmcnt(32)")
    elif main:
        e("s_waitcnt vmcnt(16)")
    else:
        nop(4)
        e("s_waitcnt vmcnt(0)")
    for q in range(4 if "nomfma" not in OPT else 0):
        e(f"v_mfma_f32_16x16x32_bf16 v[{D+4*q}:{D+4*q+3}], v[{SEL}:{SEL+3}], v[{tp+4*q}:{tp+4*q+3}], v[{D+4*q}:{D+4*q+3}]")
    if main and not early:
        e("s_waitcnt lgkmcnt(1)")
        issue_row_loads(tr)
    else:
        nop(8)
    for v in range(16):
        if "novalu" not in OPT: e(f"v_exp_f32 v{D+v}, v{D+v}")
    if "one=pk" not in OPT: nop(2)
    if "one=pk" in OPT:
        for k in range(8):
            e(f"v_pk_add_f32 v[{D+2*k}:{D+2*k+1}], v[{D+2*k}:{D+2*k+1}], 1.0 op_sel_hi:[1,0]")
    elif "nomfma" not in OPT:
        e(f"v_mfma_f32_32x32x8_bf16 v[{D}:{D+15}], v[{ONE}:{ONE+1}], v[{ONE}:{ONE+1}], v[{D}:{D+15}]")
    e(f"s_cmp_lg_u32 s{S_MIX}, 0")
    e(f"s_cbranch_scc1 {tag}_pack")
    lab(f"{tag}_packed")
    e(f"s_and_b32 s{S_TMP}, s{S_D}, 0xff")
    e(f"s_mul_i32 s{S_TMP}, s{S_TMP}, 0x01010101")
    e(f"s_and_b32 s{S_TMP2}, s{S_D}, 0xff")
    e(f"s_xor_b32 s{S_TMP}, s{S_TMP}, s{S_D}")
    e(f"s_xor_b32 s{S_TMP2}, s{S_TMP2}, s{S_CUR}")
    e(f"s_or_b32 s{S_TMP}, s{S_TMP}, s{S_TMP2}")
    if "one=pk" not in OPT: nop(4)
    for v in range(16):
        if "novalu" not in OPT: e(f"v_rcp_f32 v{D+v}, v{D+v}")
    if "noslow" not in OPT: e(f"s_cbranch_scc1 {tag}_slow")
    if "novalu" not in OPT:
        for g in range(4): acc_group(tp, g)
    lab(f"{tag}_next")
    e(f"s_mov_b32 s{S_D}, s{S_DN}")
    nP = (P+1) % 3
    if main:
        e(f"s_add_u32 s{S_TMP}, s{S_K}, 2")
        e(f"s_cmp_lt_u32 s{S_TMP}, s{S_NBLK}")
        e(f"s_cbranch_scc0 K2_t{nP}")
        if P == 2:
            if "prioA" not in OPT and "prioB" not in OPT and "noprio" not in OPT:
                e(f"s_cmp_lt_u32 s{S_K}, 6")
                e("s_cbranch_scc1 K2_m0")
                e("s_setprio 2")
            elif "noprio" not in OPT and "prioB" not in OPT:
                e(f"s_cmp_lt_u32 s{S_K}, 6")
                e("s_cbranch_scc0 K2_prio1")
                e("s_setprio 2")
                e("s_branch K2_m0")
                lab("K2_prio1")
                e("s_setprio 1")
            e("s_branch K2_m0")
    else:
        e(f"s_cmp_lt_u32 s{S_K}, s{S_NBLK}")
        e("s_cbranch_scc0 K2_range_end")
        if P == 2: e("s_branch K2_t0")

def body_outlined(P, main):
    tp = T[P]
    tag = f"K2_{'m' if main else 't'}{P}"
    lab(f"{tag}_reload")
    e(f"s_mov_b32 s{S_LOADED}, s{S_DN}")
    e(f"s_and_b32 s{S_TMP}, s{S_DN}, 0xff")
    e(f"s_mul_i32 s{S_TMP2}, s{S_TMP}, 0x01010101")
    e(f"s_cmp_eq_u32 s{S_TMP2}, s{S_DN}")
    e(f"s_cbranch_scc0 {tag}_mixed")
    e(f"s_lshl_b32 s{S_TMP}, s{S_TMP}, 6")
    e(f"v_add_u32 v{V_A}, s{S_TMP}, v{V_LT2}")
    e(f"ds_read2_b32 v[{BE+2}:{BE+3}], v{V_A} offset0:0 offset1:0")
    e(f"s_branch {tag}_loaded")
    lab(f"{tag}_mixed")
    node_rows_read(S_DN)
    e(f"s_mov_b32 s{S_MIX}, 1")
    e(f"s_branch {tag}_loaded")
    lab(f"{tag}_pack")
    e("s_waitcnt lgkmcnt(0)")
    node_rows_pack()
    e(f"s_branch {tag}_packed")
    lab(f"{tag}_slow")
    for g in range(4):
        e(f"s_bfe_u32 s{S_TMP2}, s{S_D}, {(8 << 16) | (8*g):#x}")
        e(f"s_cmp_eq_u32 s{S_TMP2}, s{S_CUR}")
        e(f"s_cbranch_scc0 {tag}_new{g}")
        acc_group(tp, g)
        lab(f"{tag}_g{g}")
    e(f"s_branch {tag}_next")
    for g in range(4):
        lab(f"{tag}_new{g}")
        flush(f"{tag}_f{g}")
        e(f"s_mov_b32 s{S_CUR}, s{S_TMP2}")
        e(f"s_lshl_b32 s{S_ROW}, s{S_TMP2}, 6")
        acc_group_init(tp, g)
        e(f"s_branch {tag}_g{g}")

def gen_k2():
    out.append(f".globl {MAIN}")
    out.append(".p2align 8")
    out.append(f".type {MAIN},@function")
    lab(MAIN)
    e(f"s_cmp_ge_u32 s2, {K2_GRID}")
    e("s_cbranch_scc1 K2_done")
    e("s_and_b32 s3, s2, 7")
    e("s_lshl_b32 s3, s3, 5")
    e(f"s_lshr_b32 s{S_BIN}, s2, 3")
    e(f"s_add_u32 s{S_BIN}, s{S_BIN}, s3")
    stamp(0)
    load_kernargs()
    e(f"s_cmp_ge_u32 s{S_BIN}, {NB}")
    e("s_cbranch_scc1 K2_idle")
    e(f"v_readfirstlane_b32 s{S_WAVE}, v0")
    e(f"v_and_b32 v{V_L}, 63, v0")
    e(f"v_lshlrev_b32 v{V_L4}, 2, v{V_L}")
    e(f"s_lshr_b32 s{S_WAVE}, s{S_WAVE}, 6")
    e(f"s_and_b32 s{S_RNG}, s{S_WAVE}, 3")
    e(f"s_lshl_b32 s{S_RNG}, s{S_RNG}, 2")
    e(f"s_lshr_b32 s41, s{S_WAVE}, 2")
    e(f"s_add_u32 s{S_RNG}, s{S_RNG}, s41")
    e(f"v_lshrrev_b32 v64, 4, v{V_L}")
    e(f"s_lshl_b32 s{S_TMP}, s{S_WAVE}, 2")
    e(f"v_add_u32 v64, s{S_TMP}, v64")
    e("v_lshlrev_b32 v64, 2, v64")
    e(f"s_lshl_b32 s41, s{S_BIN}, 2")
    e("v_lshl_add_u32 v65, v64, 10, s41")
    e(f"v_lshlrev_b32 v66, 1, v{V_L}")
    e("s_waitcnt lgkmcnt(0)")
    add64(32, 26, WS_TAB)
    for i in range(4):
        e(f"global_load_dword v{V_DESC+i}, v65, s[32:33] offset:{1024*i}")
    GW = 12 if "gw12" in OPT else 6
    GSH = 1 if GW == 6 else 2
    if "eb" in OPT: e("s_barrier")
    e(f"s_cmp_lt_u32 s{S_WAVE}, 8")
    e("s_cselect_b32 s42, s12, s18")
    e("s_cselect_b32 s43, s13, s19")
    e("v_and_b32 v67, 0x1ff, v0")
    e("v_lshlrev_b32 v68, 4, v67")
    e("global_load_dwordx4 v[68:71], v68, s[42:43]")
    e(f"s_cmp_ge_u32 s{S_WAVE}, {GW}")
    e("s_cbranch_scc1 K2_no_xop")
    e(f"s_lshr_b32 s41, s{S_WAVE}, {GSH}")
    e("s_lshl_b32 s41, s41, 4")
    e(f"s_mul_i32 s{S_TMP}, s{S_BIN}, 40")
    e(f"s_add_u32 s41, s41, s{S_TMP}")
    e(f"v_and_b32 v65, 15, v{V_L}")
    e("v_add_u32 v65, s41, v65")
    e(f"v_min_u32 v65, {N_NODES-1}, v65")
    e("v_lshlrev_b32 v65, 7, v65")
    e(f"v_lshrrev_b32 v67, 4, v{V_L}")
    e("v_lshl_add_u32 v65, v67, 4, v65")
    e(f"global_load_dwordx4 v[{V_XO}:{V_XO+3}], v65, s[4:5]")
    e(f"global_load_dwordx4 v[{V_XO+4}:{V_XO+7}], v65, s[4:5] offset:64")
    lab("K2_no_xop")
    add64(34, 26, WS_REC)
    e(f"s_mov_b32 s{S_T}, s26")
    e(f"s_and_b32 s{S_T+1}, s27, 0xffff")
    e(f"s_or_b32 s{S_T+1}, s{S_T+1}, 0x40000")
    e(f"s_mov_b32 s{S_T+2}, {(N_NODES+1)*256}")
    e(f"s_mov_b32 s{S_T+3}, 0x00800000")
    for r in range(76, 80):
        e(f"v_mov_b32 v{r}, 0")
    e("v_lshlrev_b32 v67, 4, v0")
    e("ds_write_b128 v67, v[76:79]")
    e(f"v_cmp_gt_u32 vcc, {(ZERO_END-16384)//16}, v0")
    e("s_mov_b64 exec, vcc")
    e("ds_write_b128 v67, v[76:79] offset:16384")
    e("s_mov_b64 exec, -1")
    e(f"v_and_b32 v16, 31, v{V_L}")
    e(f"v_lshrrev_b32 v17, 5, v{V_L}")
    e("v_bfe_u32 v18, v16, 2, 1")
    e("v_lshrrev_b32 v19, 3, v16")
    e("v_and_b32 v16, 3, v16")
    e("v_lshl_add_u32 v16, v19, 2, v16")
    e("v_cmp_eq_u32 vcc, v17, v18")
    e("v_mov_b32 v20, 0x80")
    e("v_lshlrev_b32 v16, 3, v16")
    e(f"v_cndmask_b32 v{V_ESTR}, 0, v20, vcc")
    e(f"v_add_u32 v16, {ATTR}, v16")
    e(f"v_mov_b32 v20, {ZERO}")
    e(f"v_cndmask_b32 v{V_EBASE}, v20, v16, vcc")
    e("v_and_b32 v21, 1, v19")
    e("v_lshlrev_b32 v21, 4, v21")
    e("v_mov_b32 v22, 0x3f80")
    e("v_lshlrev_b32 v21, v21, v22")
    e("v_cndmask_b32 v21, 0, v21, vcc")
    e("v_cmp_gt_u32 vcc, 2, v19")
    e(f"v_mov_b32 v{ONE+1}, 0")
    e(f"v_mov_b32 v{ONE+2}, 0")
    e(f"v_cndmask_b32 v{EO+2}, 0, v21, vcc")
    e(f"v_sub_u32 v{EO+3}, v21, v{EO+2}")
    e(f"v_cmp_gt_u32 vcc, 32, v{V_L}")
    e(f"v_mov_b32 v{ONE+3}, 0")
    e(f"v_add_u32 v{V_LT2}, {AA}, v{V_L4}")
    e(f"v_cndmask_b32 v{ONE}, 0, v22, vcc")
    e(f"v_bfe_u32 v16, v{V_L}, 2, 2")
    e(f"v_lshrrev_b32 v17, 4, v{V_L}")
    e(f"v_and_b32 v18, 3, v{V_L}")
    e("v_cmp_eq_u32 vcc, v16, v17")
    e("v_mov_b32 v19, 31")
    e(f"s_mov_b32 s{S_PERM}, 0x05040100")
    e("v_cndmask_b32 v18, v19, v18, vcc")
    e("v_lshlrev_b32 v18, v18, 1")
    for k in range(4):
        e(f"v_bfe_u32 v{SEL+k}, v18, {k}, 1")
    for k in range(4):
        e(f"v_mul_u32_u24 v{SEL+k}, v22, v{SEL+k}")
    e(f"s_mov_b32 s{S_P32}, 0")
    e("v_and_b32 v79, 0x1ff, v0")
    e("v_lshrrev_b32 v104, 3, v79")
    e(f"v_mul_u32_u24 v104, {W_PITCH}, v104")
    e("v_and_b32 v79, 7, v79")
    e("v_lshl_add_u32 v104, v79, 4, v104")
    e(f"s_lshr_b32 s41, s{S_WAVE}, 3")
    e(f"s_mul_i32 s41, s41, {W_MAT}")
    e(f"s_add_u32 s41, s41, {WST}")
    e("v_add_u32 v104, s41, v104")
    e(f"v_and_b32 v78, 15, v{V_L}")
    e(f"v_lshrrev_b32 v79, 4, v{V_L}")
    e("v_lshrrev_b32 v105, 2, v78")
    e("v_lshl_add_u32 v105, v79, 3, v105")
    e(f"v_mul_u32_u24 v105, {W_PITCH}, v105")
    e("v_and_b32 v77, 3, v78")
    e("v_lshl_add_u32 v105, v77, 3, v105")
    e(f"s_and_b32 s41, s{S_WAVE}, {(1 << GSH) - 1}")
    e(f"s_lshl_b32 s{S_TMP}, s41, {5 if GW == 12 else 6}")
    e(f"s_add_u32 s{S_TMP}, s{S_TMP}, {WST}")
    e(f"v_add_u32 v105, s{S_TMP}, v105")
    e(f"s_lshr_b32 s{S_TMP}, s{S_WAVE}, {GSH}")
    e(f"s_lshl_b32 s{S_TMP}, s{S_TMP}, 4")
    e("v_lshlrev_b32 v107, 2, v79")
    e(f"v_add_u32 v107, s{S_TMP}, v107")
    e(f"v_cmp_gt_u32 s[{S_EXM}:{S_EXM+1}], 40, v107")
    e("v_lshlrev_b32 v107, 8, v107")
    e("v_lshl_add_u32 v107, v78, 2, v107")
    e(f"s_lshl_b32 s41, s41, {6 if GW == 12 else 7}")
    e("v_add_u32 v107, s41, v107")

    def pass_addr():
        e(f"v_lshrrev_b32 v78, 4, v{V_L}")
        e(f"s_lshl_b32 s{S_TMP}, s{S_WAVE}, 2")
        e(f"v_add_u32 v78, s{S_TMP}, v78")
        e(f"v_mul_u32_u24 v78, {4*EPC}, v78")
        e(f"v_and_b32 v76, 15, v{V_L}")
        e(f"v_add_u32 v76, s{S_P32}, v76")
        e("v_add_u32 v78, v78, v76")
        e("v_mul_u32_u24 v100, 12, v78")
        for i in range(1, 4):
            e(f"v_add_u32 v{100+i}, {REC_STRIDE}, v{99+i}")
        e("v_add_u32 v77, 17, v76")
        e("v_lshlrev_b32 v77, 16, v77")
    pass_addr()
    e(f"s_cmp_ge_u32 s{S_WAVE}, {GW}")
    e("s_cbranch_scc1 K2_wdesc1")
    e("s_waitcnt vmcnt(3)")
    e("s_branch K2_wdesc")
    lab("K2_wdesc1")
    e("s_waitcnt vmcnt(1)")
    lab("K2_wdesc")
    stamp(1)

    lab("K2_pass")
    for i in range(4):
        m = smask(i, 0)
        e(f"v_cmp_lt_u32_sdwa s[{m}:{m+1}], v76, v{V_DESC+i} src0_sel:DWORD src1_sel:WORD_1")
    for i in range(4):
        e(f"v_add_u32_sdwa v{64+i}, v{V_DESC+i}, v{100+i} dst_sel:DWORD dst_unused:UNUSED_PAD src0_sel:WORD_0 src1_sel:DWORD")
    for i in range(4):
        r, m = slot(i, 0), smask(i, 0)
        e(f"s_mov_b64 exec, s[{m}:{m+1}]")
        e(f"global_load_dwordx3 v[{r}:{r+2}], v{64+i}, s[34:35]")
    e("s_mov_b64 exec, -1")
    e(f"v_max3_u32 v{V_DB}, v{V_DESC}, v{V_DESC+1}, v{V_DESC+2}")
    e(f"v_max_u32 v{V_DB}, v{V_DB}, v{V_DESC+3}")
    e(f"s_mov_b32 s{S_MIX}, 0")
    e(f"v_cmp_ge_u32 vcc, v{V_DB}, v77")
    e("s_cbranch_vccz K2_no_second")
    e("v_add_u32 v79, 16, v76")
    for i in range(4):
        m = smask(i, 1)
        e(f"v_cmp_lt_u32_sdwa s[{m}:{m+1}], v79, v{V_DESC+i} src0_sel:DWORD src1_sel:WORD_1")
    e(f"s_mov_b32 s{S_MIX}, 1")
    for i in range(4):
        r, m = slot(i, 1), smask(i, 1)
        e(f"s_mov_b64 exec, s[{m}:{m+1}]")
        e(f"global_load_dwordx3 v[{r}:{r+2}], v{64+i}, s[34:35] offset:192")
    e("s_mov_b64 exec, -1")
    lab("K2_no_second")
    e(f"s_cmp_lg_u32 s{S_P32}, 0")
    e("s_cbranch_scc1 K2_tables_done")
    fstamp(2)
    e(f"s_cmp_eq_u32 s{S_MIX}, 0")
    e("s_cbranch_scc1 K2_ww4")
    e("s_waitcnt vmcnt(8)")
    e("s_branch K2_ww")
    lab("K2_ww4")
    e("s_waitcnt vmcnt(4)")
    lab("K2_ww")
    fstamp(3)
    e("ds_write_b128 v104, v[68:71]")
    e(f"v_mov_b32 v68, 0")
    e(f"ds_write_b32 v{V_L4}, v68 offset:{AA + 40*256}")
    e("s_waitcnt lgkmcnt(0)")
    e("s_barrier")
    e(f"v_cmp_le_u32 vcc, 0x210000, v{V_DB}")
    e("s_cbranch_vccz K2_nomax")
    e(f"v_mov_b32 v79, {MAXC}")
    e(f"ds_max_u32 v79, v{V_DB}")
    lab("K2_nomax")
    fstamp(4)
    e(f"s_cmp_ge_u32 s{S_WAVE}, {GW}")
    e("s_cbranch_scc1 K2_tables_done")
    e(f"s_mov_b32 s{S_TMP}, {NEG_L2E:#x}")
    for ft in range(1 if GW == 12 else 2):
        for mp in range(2):
            for ks in range(2):
                for half in range(2):
                    r = 48 + 8*mp + 4*ks + 2*half
                    e(f"ds_read_b64_tr_b16 v[{r}:{r+1}], v105 offset:{mp*W_MAT + (32*ks + 4*half)*W_PITCH + 32*ft}")
        e("s_waitcnt lgkmcnt(0)")
        e(f"v_mfma_f32_16x16x32_bf16 v[120:123], v[{V_XO}:{V_XO+3}], v[48:51], 0")
        e(f"v_mfma_f32_16x16x32_bf16 v[124:127], v[{V_XO}:{V_XO+3}], v[56:59], 0")
        e(f"v_mfma_f32_16x16x32_bf16 v[120:123], v[{V_XO+4}:{V_XO+7}], v[52:55], v[120:123]")
        e(f"v_mfma_f32_16x16x32_bf16 v[124:127], v[{V_XO+4}:{V_XO+7}], v[60:63], v[124:127]")
        nop(8)
        for r in range(4):
            e(f"v_mul_f32 v{120+r}, s{S_TMP}, v{120+r}")
        for r in range(4):
            e(f"v_cvt_pk_bf16_f32 v{124+r}, v{120+r}, v{124+r}")
        for r in range(4):
            e(f"v_cvt_pk_bf16_f32 v{120+r}, v{120+r}, v{120+r}")
        e(f"s_mov_b64 exec, s[{S_EXM}:{S_EXM+1}]")
        for r in range(4):
            e(f"ds_write_b32 v107, v{124+r} offset:{T2L + 256*r + 64*ft}")
            e(f"ds_write_b32 v107, v{120+r} offset:{AA + 256*r + 64*ft}")
        e("s_mov_b64 exec, -1")
    lab("K2_tables_done")
    fstamp(5)

    def for_slots(fn, name):
        for i in range(4):
            m = smask(i, 0)
            e(f"s_mov_b64 exec, s[{m}:{m+1}]")
            fn(i, 0, slot(i, 0))
        e("s_mov_b64 exec, -1")
        e(f"s_cmp_eq_u32 s{S_MIX}, 0")
        e(f"s_cbranch_scc1 K2_{name}_skip")
        for i in range(4):
            m = smask(i, 1)
            e(f"s_mov_b64 exec, s[{m}:{m+1}]")
            fn(i, 1, slot(i, 1))
        e("s_mov_b64 exec, -1")
        lab(f"K2_{name}_skip")
    e("v_mov_b32 v78, 4")
    e("s_waitcnt vmcnt(0)")
    fstamp(6)
    stamp(2)
    def cnt_fn(i, jj, r):
        t = D + i + 4*jj
        e(f"v_lshrrev_b32 v{t}, 24, v{r+2}")
        e(f"ds_add_rtn_u32 v{r+3}, v{t}, v78 offset:{CNT}")
    for_slots(cnt_fn, "cnt")
    e("s_waitcnt lgkmcnt(0)")
    e("s_barrier")
    stamp(3)
    fstamp(7)
    e(f"ds_read_b32 v76, v{V_L4} offset:{CNT}")
    e(f"v_mov_b32 v79, {MAXC}")
    e("ds_read_b32 v79, v79")
    e(f"s_cmp_lg_u32 s{S_P32}, 0")
    e("s_cbranch_scc1 K2_late_loaded")
    e(f"v_lshlrev_b32 v75, 1, v{V_L}")
    for c in range(4):
        e(f"global_load_ushort v{120+c}, v75, s[16:17] offset:{128*c}")
    e(f"s_mul_i32 s41, s{S_BIN}, 5120")
    e("v_lshl_add_u32 v75, v0, 3, s41")
    e(f"v_min_u32 v75, {N_NODES*128-8}, v75")
    e(f"global_load_dwordx2 v[{V_X}:{V_X+1}], v75, s[4:5]")
    warm_table()
    lab("K2_late_loaded")
    e("s_waitcnt lgkmcnt(0)")
    e(f"v_readfirstlane_b32 s{S_MAX}, v79")
    e("v_add_u32 v77, 12, v76")
    e("v_and_b32 v77, -16, v77")
    e(f"v_mov_b32 v{V_END}, v77")
    e(f"s_lshr_b32 s{S_MAX}, s{S_MAX}, 16")
    dpp_scan(V_END)
    e(f"v_sub_u32 v75, v{V_END}, v77")
    e(f"ds_write_b32 v{V_L4}, v75 offset:{START}")
    def st_fn(i, jj, r):
        t = D + i + 4*jj
        e(f"ds_read_b32 v{T[2]+i+4*jj}, v{t} offset:{START}")
    for_slots(st_fn, "st")
    e(f"v_readlane_b32 s{S_NBLK}, v{V_END}, 63")
    e(f"s_cmp_lt_u32 s{S_WAVE}, 12")
    e("s_cbranch_scc1 K2_nopad")
    e(f"v_mov_b32 v74, {DUMMY:#x}")
    e("v_mov_b32 v72, 0")
    e("v_mov_b32 v73, 0")
    e(f"s_cmp_eq_u32 s{S_WAVE}, 15")
    e("s_cbranch_scc1 K2_tailpad")
    e(f"s_sub_u32 s{S_TMP}, s{S_WAVE}, 12")
    e(f"s_lshl_b32 s{S_TMP}, s{S_TMP}, 2")
    e("v_add_u32 v75, v75, v76")
    e(f"v_add_u32 v75, s{S_TMP}, v75")
    e(f"v_cmp_lt_u32 vcc, v75, v{V_END}")
    e(f"s_mov_b32 s{S_TMP}, {ATTR}")
    e(f"v_lshl_add_u32 v78, v75, 1, s{S_TMP}")
    e("s_mov_b64 exec, vcc")
    e(f"ds_write_b32 v75, v74 offset:{IDX}")
    e("ds_write_b64 v78, v[72:73]")
    e("s_mov_b64 exec, -1")
    e("s_branch K2_nopad")
    lab("K2_tailpad")
    e(f"s_add_u32 s{S_TMP}, s{S_NBLK}, 63")
    e(f"s_and_b32 s{S_TMP}, s{S_TMP}, -64")
    e(f"v_add_u32 v75, s{S_NBLK}, v{V_L4}")
    e(f"v_cmp_gt_u32 vcc, s{S_TMP}, v75")
    e(f"s_mov_b32 s{S_TMP}, {ATTR}")
    e(f"v_lshl_add_u32 v78, v75, 1, s{S_TMP}")
    e("v_lshrrev_b32 v77, 4, v75")
    e("v_mov_b32 v76, 160")
    e("s_mov_b64 exec, vcc")
    e(f"ds_write_b32 v75, v74 offset:{IDX}")
    e("ds_write_b64 v78, v[72:73]")
    e(f"ds_write_b8 v77, v76 offset:{GN}")
    e("s_mov_b64 exec, -1")
    lab("K2_nopad")
    e("s_waitcnt lgkmcnt(0)")
    e(f"s_mov_b32 s{S_TMP2}, {ATTR}")
    def sc_fn(i, jj, r):
        t = D + i + 4*jj
        p = T[2] + i + 4*jj
        e(f"v_add_u32 v{p}, v{p}, v{r+3}")
        e(f"v_and_b32 v{r+2}, 0xffffff, v{r+2}")
        e(f"v_lshl_add_u32 v{r+3}, v{p}, 1, s{S_TMP2}")
        e(f"ds_write_b32 v{p}, v{r+2} offset:{IDX}")
        e(f"ds_write_b64 v{r+3}, v[{r}:{r+1}]")
        e(f"v_lshrrev_b32 v{p}, 4, v{p}")
        e(f"ds_write_b8 v{p}, v{t} offset:{GN}")
    for_slots(sc_fn, "sc")
    e(f"s_cmp_lg_u32 s{S_P32}, 0")
    e("s_cbranch_scc1 K2_wc_done")
    e(f"s_waitcnt vmcnt({1 if pf_kb() else 0})")
    e(f"s_mov_b32 s{S_TMP}, {NEG_L2E:#x}")
    for c in range(4):
        e(f"v_lshlrev_b32 v{120+c}, 16, v{120+c}")
    for c in range(4):
        e(f"v_mul_f32 v{120+c}, s{S_TMP}, v{120+c}")
    e(f"v_cvt_pk_bf16_f32 v{BE}, v120, v121")
    e(f"v_cvt_pk_bf16_f32 v{BE+1}, v122, v123")
    lab("K2_wc_done")
    e(f"s_add_u32 s{S_TMP}, s{S_NBLK}, 63")
    e(f"s_lshr_b32 s{S_TMP}, s{S_TMP}, 6")
    e(f"s_mul_i32 s{S_K0}, s{S_TMP}, s{S_RNG}")
    e(f"s_add_u32 s{S_NBLK}, s{S_K0}, s{S_TMP}")
    e(f"s_lshr_b32 s{S_K0}, s{S_K0}, 4")
    e(f"s_lshr_b32 s{S_NBLK}, s{S_NBLK}, 4")
    e(f"s_sub_u32 s{S_NBLK}, s{S_NBLK}, s{S_K0}")
    e(f"v_add_u32 v{V_A}, s{S_K0}, v{V_L}")
    e(f"v_lshlrev_b32 v{V_A}, 2, v{V_A}")
    e(f"s_lshl_b32 s{S_TMP}, s{S_K0}, 6")
    e(f"v_mov_b32 v{V_AI}, s{S_TMP}")
    e(f"v_mad_u32_u24 v{V_AE}, v{V_ESTR}, s{S_K0}, v{V_EBASE}")
    e(f"v_mul_u32_u24 v{V_ESTR}, 3, v{V_ESTR}")
    for r in (DEN, DEN+1, NUM, NUM+1):
        e(f"v_mov_b32 v{r}, 0")
    e(f"s_cmp_eq_u32 s{S_NBLK}, 0")
    e("s_waitcnt lgkmcnt(0)")
    e("s_barrier")
    stamp(4)
    e("s_cbranch_scc1 K2_empty_range")
    idx_reads(T[0], 0)
    idx_reads(T[1], 1)
    e(f"ds_read_b32 v{V_DB}, v{V_A} offset:{GN}")
    e(f"ds_read_b32 v{V_F}, v{V_A} offset:{GN-4}")
    attr_read(0)
    e("s_waitcnt lgkmcnt(7)")
    issue_row_loads(T[0])
    e("s_waitcnt lgkmcnt(0)")
    e(f"v_readlane_b32 s{S_D}, v{V_DB}, 0")
    e(f"s_cmp_lt_u32 s{S_NBLK}, 2")
    e("s_cbranch_scc1 K2_one_block")
    issue_row_loads(T[1])
    lab("K2_one_block")
    node_rows_read(S_D)
    e(f"s_mov_b32 s{S_LOADED}, s{S_D}")
    e(f"s_and_b32 s{S_CUR}, s{S_D}, 0xff")
    e(f"s_lshl_b32 s{S_ROW}, s{S_CUR}, 6")
    e(f"s_cmp_lg_u32 s{S_P32}, 0")
    e("s_cbranch_scc1 K2_carry_done")
    e(f"v_readlane_b32 s{S_TMP2}, v{V_F}, 0")
    e(f"s_add_u32 s{S_MIX}, s{S_RNG}, 40")
    e(f"s_lshl_b32 s{S_MIX}, s{S_MIX}, 8")
    e(f"s_lshr_b32 s{S_TMP2}, s{S_TMP2}, 24")
    e(f"s_cmp_eq_u32 s{S_K0}, 0")
    e(f"s_cselect_b32 s{S_TMP2}, 0x100, s{S_TMP2}")
    e(f"s_cmp_eq_u32 s{S_TMP2}, s{S_CUR}")
    e(f"s_cselect_b32 s{S_ROW}, s{S_MIX}, s{S_ROW}")
    e(f"s_cselect_b32 s{S_TMP2}, s{S_CUR}, 0xff")
    e(f"s_lshl_b32 s{S_TMP}, s{S_RNG}, 2")
    e(f"v_mov_b32 v{V_A}, s{S_TMP}")
    e(f"v_mov_b32 v{V_F}, s{S_TMP2}")
    e(f"ds_write_b32 v{V_A}, v{V_F} offset:{CN}")
    lab("K2_carry_done")
    e(f"s_mov_b32 s{S_K}, 0")
    e("s_waitcnt lgkmcnt(0)")
    node_rows_pack()
    if "noprio" not in OPT: e("s_setprio 3")
    e(f"s_cmp_gt_u32 s{S_NBLK}, 2")
    e("s_cbranch_scc0 K2_t0")
    bodyf = body_shl if "shl" in OPT else body
    for P in range(3): bodyf(P, True)
    for P in range(3): bodyf(P, False)
    for P in range(3): body_outlined(P, True)
    for P in range(3): body_outlined(P, False)
    atomic_flushes()
    lab("K2_range_end")
    ATOMIC_SITES.clear()
    flush("K2_last")
    e("s_branch K2_main_done")
    lab("K2_empty_range")
    e(f"s_cmp_lg_u32 s{S_P32}, 0")
    e("s_cbranch_scc1 K2_main_done")
    e(f"s_lshl_b32 s{S_TMP}, s{S_RNG}, 2")
    e(f"v_mov_b32 v{V_A}, s{S_TMP}")
    e(f"v_mov_b32 v{V_F}, 0xff")
    e(f"ds_write_b32 v{V_A}, v{V_F} offset:{CN}")
    lab("K2_main_done")
    if "noprio" not in OPT: e("s_setprio 0")
    stamp(5)
    e(f"s_add_u32 s{S_P32}, s{S_P32}, 32")
    e(f"s_cmp_ge_u32 s{S_P32}, s{S_MAX}")
    e("s_cbranch_scc1 K2_final")
    e(f"s_cmp_lg_u32 s{S_WAVE}, 0")
    e("s_cbranch_scc1 K2_nozc")
    e("v_mov_b32 v76, 0")
    e(f"ds_write_b32 v{V_L4}, v76 offset:{CNT}")
    lab("K2_nozc")
    e(f"v_cmp_ne_u32 vcc, 0, v{V_ESTR}")
    e("v_mov_b32 v76, 0x80")
    nop(1)
    e(f"v_cndmask_b32 v{V_ESTR}, 0, v76, vcc")
    pass_addr()
    e("s_waitcnt lgkmcnt(0)")
    e("s_barrier")
    e("s_branch K2_pass")
    lab("K2_final")
    e("s_waitcnt lgkmcnt(0)")
    e("s_barrier")
    stamp(6)
    e(f"s_cmp_ge_u32 s{S_WAVE}, 10")
    e("s_cbranch_scc1 K2_end")
    e("v_lshlrev_b32 v67, 4, v0")
    e(f"ds_read_b128 v[16:19], v67 offset:{ACCN}")
    e(f"ds_read_b128 v[20:23], v67 offset:{ACCD}")
    e(f"ds_read_b128 v[24:27], v67 offset:{T2L}")
    e(f"v_and_b32 v30, 15, v{V_L}")
    e("v_lshlrev_b32 v31, 2, v30")
    e(f"ds_read_b32 v31, v31 offset:{CN}")
    e(f"s_mul_i32 s41, s{S_BIN}, 5120")
    e("v_lshl_add_u32 v66, v0, 3, s41")
    e("s_mov_b32 s42, 0x358637bd")
    e("v_lshrrev_b32 v32, 4, v0")
    e("v_lshlrev_b32 v32, 2, v32")
    e("v_lshlrev_b32 v33, 4, v30")
    e("s_waitcnt lgkmcnt(0)")
    e("v_lshrrev_b32 v34, 4, v31")
    e(f"v_cmp_eq_u32 vcc, s{S_WAVE}, v34")
    e("s_and_b32 s44, vcc_lo, 0xffff")
    lab("K2_merge")
    e("s_cmp_eq_u32 s44, 0")
    e("s_cbranch_scc1 K2_merged")
    e("s_ff1_i32_b32 s45, s44")
    e("s_bitset0_b32 s44, s45")
    e("v_readlane_b32 s46, v31, s45")
    e("s_add_u32 s45, s45, 40")
    e("s_lshl_b32 s45, s45, 8")
    e("v_add_u32 v35, s45, v33")
    e(f"ds_read_b128 v[36:39], v35 offset:{ACCN}")
    e(f"ds_read_b128 v[40:43], v35 offset:{ACCD}")
    e("v_cmp_eq_u32 vcc, s46, v32")
    e("s_waitcnt lgkmcnt(0)")
    e("s_mov_b64 exec, vcc")
    for r in range(4):
        e(f"v_add_f32 v{16+r}, v{16+r}, v{36+r}")
        e(f"v_add_f32 v{20+r}, v{20+r}, v{40+r}")
    e("s_mov_b64 exec, -1")
    e("s_branch K2_merge")
    lab("K2_merged")
    for r in range(4):
        e(f"v_add_f32 v{20+r}, s42, v{20+r}")
    for r in range(4):
        e(f"v_rcp_f32 v{20+r}, v{20+r}")
    for r in range(4):
        e(f"v_and_b32 v{24+r}, 0xffff0000, v{24+r}")
    for r in range(4):
        e(f"v_fma_f32 v{16+r}, v{16+r}, v{20+r}, v{24+r}")
    for r in range(4):
        e(f"v_mul_f32 v{20+r}, 0, v{16+r}")
    for r in range(4):
        e(f"v_cmp_lt_f32 vcc, 0, v{16+r}")
        nop(2)
        e(f"v_cndmask_b32 v{16+r}, v{20+r}, v{16+r}, vcc")
    e(f"v_lshlrev_b32 v24, 16, v{V_X}")
    e(f"v_and_b32 v25, 0xffff0000, v{V_X}")
    e(f"v_lshlrev_b32 v26, 16, v{V_X+1}")
    e(f"v_and_b32 v27, 0xffff0000, v{V_X+1}")
    for r in range(4):
        e(f"v_add_f32 v{16+r}, v{16+r}, v{24+r}")
    e("v_cvt_pk_bf16_f32 v28, v16, v17")
    e("v_cvt_pk_bf16_f32 v29, v18, v19")
    e(f"global_store_dwordx2 v66, v[28:29], s[22:23]{'' if 'outplain' in OPT else ' sc1'}")
    lab("K2_end")
    stamp(7)
    stamp_store(8, S_WAVE, WS_STAMP, S_BIN)
    lab("K2_done")
    e("s_endpgm")
    lab("K2_idle")
    e(f"v_readfirstlane_b32 s{S_WAVE}, v0")
    e("s_waitcnt lgkmcnt(0)")
    e(f"s_lshr_b32 s{S_WAVE}, s{S_WAVE}, 6")
    warm_table(idle=True)
    e("s_endpgm")
    atomic_flushes()

def gen_diag(spec):
    ka, sa, ra, kb, sb, rb = spec
    out.append(".globl diag_kernel")
    out.append(".p2align 8")
    out.append(".type diag_kernel,@function")
    lab("diag_kernel")
    e("s_cmp_ge_u32 s2, 1")
    e("s_cbranch_scc1 DG_done")
    e("s_load_dwordx2 s[26:27], s[0:1], 88")
    e("s_waitcnt lgkmcnt(0)")
    e(f"s_add_u32 s4, s26, {WS_STAMP + 0x100000:#x}")
    e("s_addc_u32 s5, s27, 0")
    e("s_load_dword s20, s[4:5], 0")
    e("v_mov_b32 v20, 0")
    e("v_mov_b32 v21, 0x7fffffff")
    e("v_mov_b32 v22, 0x80000000")
    e(f"ds_write_b32 v20, v{21 if ra == 'min' else 22} offset:0")
    e(f"ds_write_b32 v20, v{21 if rb == 'min' else 22} offset:4")
    e("s_waitcnt lgkmcnt(0)")
    e("s_barrier")
    def reduce(kern, st, red, off, tag):
        base = WS_STAMP + (0x100000 if kern[0] == '1' else 0)
        w0, w1, nw = {'1b': (0, 250, 10), '1t': (0, 250, 16), '1': (0, 250, 16), '2': (0, 250, 16)}[kern]
        e(f"s_add_u32 s4, s26, {base + 8*st:#x}")
        e("s_addc_u32 s5, s27, 0")
        for r in range(6):
            e(f"v_add_u32 v1, {w0*16 + 1024*r}, v0")
            e("v_and_b32 v3, 15, v1")
            e(f"v_cmp_gt_u32 vcc, {nw}, v3")
            e(f"v_cmp_gt_u32 s[10:11], s30, v1".replace("s30", "s30"))
            e("s_and_b64 vcc, vcc, s[10:11]")
            e("s_and_saveexec_b64 s[12:13], vcc")
            e(f"s_cbranch_execz DG_{tag}{r}")
            e("v_lshlrev_b32 v1, 7, v1")
            e("global_load_dword v2, v1, s[4:5]")
            e("s_waitcnt vmcnt(0)")
            e("v_subrev_u32 v2, s20, v2")
            e(f"ds_{red}_i32 v20, v2 offset:{off}")
            lab(f"DG_{tag}{r}")
            e("s_mov_b64 exec, s[12:13]")
    def bound(kern):
        w1 = 250
        e(f"s_mov_b32 s30, {w1*16}")
    bound(ka); reduce(ka, sa, ra, 0, "a")
    bound(kb); reduce(kb, sb, rb, 4, "b")
    e("s_waitcnt lgkmcnt(0)")
    e("s_barrier")
    e("ds_read_b64 v[4:5], v20")
    e("s_waitcnt lgkmcnt(0)")
    e("v_readfirstlane_b32 s21, v4")
    e("v_readfirstlane_b32 s12, v5")
    e("s_nop 3")
    e("s_sub_u32 s22, s12, s21")
    e("s_max_i32 s22, s22, 0")
    e("s_min_i32 s22, s22, 4000")
    e("s_mul_i32 s22, s22, 20")
    e("s_memrealtime s[14:15]")
    e("s_waitcnt lgkmcnt(0)")
    lab("DG_spin")
    e("s_memrealtime s[16:17]")
    e("s_waitcnt lgkmcnt(0)")
    e("s_sub_u32 s18, s16, s14")
    e("s_cmp_lt_u32 s18, s22")
    e("s_cbranch_scc1 DG_spin")
    lab("DG_done")
    e("s_endpgm")

def kd(name, vgpr, sgpr):
    out.append(".p2align 6")
    out.append(f".amdhsa_kernel {name}")
    out.append(f"  .amdhsa_next_free_vgpr {vgpr}")
    out.append(f"  .amdhsa_next_free_sgpr {sgpr}")
    out.append(f"  .amdhsa_accum_offset {(vgpr+3)//4*4}")
    out.append("  .amdhsa_group_segment_fixed_size 0")
    out.append("  .amdhsa_kernarg_size 96")
    out.append("  .amdhsa_user_sgpr_count 2")
    out.append("  .amdhsa_user_sgpr_kernarg_segment_ptr 1")
    out.append("  .amdhsa_system_sgpr_workgroup_id_x 1")
    out.append(".end_amdhsa_kernel")

HEADER = f"""; Kernarg layout (96 bytes, ptrs only, base s[0:1]):
;   56 w_u | 64 w_v | 72 out (10000,64) bf16 | 80 debug | 88 workspace
; @launch kernel={PREP} grid=({NB},1,1) block=(1024,1,1) lds={K1_LDS}
; @launch kernel={MAIN} grid=({K2_GRID},1,1) block=(1024,1,1) lds={K2_LDS}
.amdgcn_target "amdgcn-amd-amdhsa--gfx950"
.text"""

def main():
    global STAMPS
    if "--stamps" in sys.argv:
        STAMPS = True
        sys.argv.remove("--stamps")
    for a in list(sys.argv):
        if a.startswith("--opt="):
            OPT.update(a[6:].split(","))
            sys.argv.remove(a)
    diag = [o for o in OPT if o.startswith("diag=")]
    hdr = HEADER
    if diag:
        hdr = hdr.replace(".amdgcn_target", "; @launch kernel=diag_kernel grid=(1,1,1) block=(1024,1,1) lds=64\n.amdgcn_target")
    out.append(hdr)
    gen_k1()
    gen_k2()
    if diag: gen_diag([int(x) if x.isdigit() and i in (1, 4) else x for i, x in enumerate(diag[0][5:].split(":"))])
    out.append('.section .rodata,"a"')
    if diag: kd("diag_kernel", 32, 48)
    kd(PREP, 80, 102 if STAMPS else 56)
    kd(MAIN, K2_VGPRS, 102 if STAMPS else 80)
    path = sys.argv[1] if len(sys.argv) > 1 else "standalone__edge_featured_mpnn_gatedgcn__graph.s"
    open(path, "w").write("\n".join(out) + "\n")
    print("wrote", path, len(out), "lines")

if __name__ == "__main__":
    main()
```

```python
import sys

MAIN = "standalone__edge_featured_mpnn_gatedgcn__graph_kernel"
PREP = "gcn_prep_kernel"

N_NODES = 10000
NB = 250
EPC = 2560
NPB = 40
WS_T = 0
WS_T2 = 0x280000
WS_TAB = 0x500000
WS_REC = 0x580000
REC_STRIDE = EPC * 12
NEG_L2E = 0xBFB8AA3B

out = []
def e(s): out.append("    " + s)
def lab(s): out.append(s + ":")
def cmt(s): out.append("    ; " + s)
def nop(n):
    while n > 0:
        k = min(n, 16)
        e(f"s_nop {k-1}")
        n -= k

STAMPS = False
OPT = set()
WS_STAMP = 0x2000000
def fstamp(k):
    if STAMPS and "fine" in OPT: e(f"s_memtime s[{80+2*k}:{81+2*k}]")
def stamp(k):
    if not STAMPS or ("segs" in OPT and k >= 2): return
    if "fine" in OPT:
        if k in (0, 1): e(f"s_memtime s[{80+2*k}:{81+2*k}]")
        return
    if "both" in OPT:
        if k in (4, 6):
            e(f"s_memtime s[{80+2*k}:{81+2*k}]")
            e(f"s_memrealtime s[{82+2*k}:{83+2*k}]")
        elif k not in (5, 7):
            e(f"s_memtime s[{80+2*k}:{81+2*k}]")
        return
    e(f"{'s_memrealtime' if 'rt' in OPT else 's_memtime'} s[{80+2*k}:{81+2*k}]")
def seg(k):
    if "segs" in OPT:
        e("s_memtime s[98:99]")
        e("s_waitcnt lgkmcnt(0)")
        e("s_sub_u32 s100, s98, s79")
        e(f"s_add_u32 s{84+k}, s{84+k}, s100")
        e("s_mov_b32 s79, s98")
def stamp_store(nst, wave_sreg, base_off, wg_sreg=2):
    if not STAMPS: return
    e("s_waitcnt vmcnt(0) lgkmcnt(0)")
    e("s_mov_b64 exec, 1")
    e(f"s_lshl_b32 s98, s{wg_sreg}, 4")
    e(f"s_add_u32 s98, s98, s{wave_sreg}")
    e(f"s_lshl_b32 s98, s98, 7")
    e(f"s_add_u32 s98, s98, {base_off:#x}")
    e("s_add_u32 s96, s26, s98")
    e("s_addc_u32 s97, s27, 0")
    e("v_mov_b32 v0, 0")
    for k in range(nst):
        e(f"v_mov_b32 v2, s{80+2*k}")
        e(f"v_mov_b32 v3, s{81+2*k}")
        e(f"global_store_dwordx2 v0, v[2:3], s[96:97] offset:{8*k}")
        e("s_nop 1")
    e("s_waitcnt vmcnt(0)")
    e("s_mov_b64 exec, -1")

def dpp_scan(v):
    for ctl in ("row_shr:1 row_mask:0xf bank_mask:0xf", "row_shr:2 row_mask:0xf bank_mask:0xf",
                "row_shr:4 row_mask:0xf bank_mask:0xf", "row_shr:8 row_mask:0xf bank_mask:0xf",
                "row_bcast:15 row_mask:0xa bank_mask:0xf", "row_bcast:31 row_mask:0xc bank_mask:0xf"):
        nop(2)
        e(f"v_add_u32_dpp v{v}, v{v}, v{v} {ctl}")

def load_kernargs():
    e("s_load_dwordx16 s[4:19], s[0:1], 0")
    e("s_load_dwordx8 s[20:27], s[0:1], 64")

def add64(d, s, imm):
    e(f"s_add_u32 s{d}, s{s}, {imm:#x}")
    e(f"s_addc_u32 s{d+1}, s{s+1}, 0")

K1_STG, K1_HIST, K1_OFF = 0, 30720, 33280
K1_SYNC = K1_HIST + 4*300
K1_W = 34304
W_PITCH = 144
W_MAT = 64 * W_PITCH
K1_TT = K1_W + 2*W_MAT
K1_LDS = K1_TT + 6*16*144

def WT():
    for o in OPT:
        if o.startswith("wt="): return " " + o[3:].replace("+", " ") if o[3:] != "none" else ""
    return " sc1"

def lds_rendezvous(tag, addr, n, vaddr, vtmp, vone):
    e(f"v_mov_b32 v{vaddr}, {addr}")
    e("s_mov_b64 exec, 1")
    e(f"ds_add_u32 v{vaddr}, v{vone}")
    e("s_mov_b64 exec, -1")
    lab(tag)
    e(f"ds_read_b32 v{vtmp}, v{vaddr}")
    e("s_waitcnt lgkmcnt(0)")
    e(f"v_readfirstlane_b32 s47, v{vtmp}")
    e("s_nop 0")
    e(f"s_cmp_lt_u32 s47, {n}")
    e(f"s_cbranch_scc1 {tag}")

def gen_k1():
    out.append(f".globl {PREP}")
    out.append(".p2align 8")
    out.append(f".type {PREP},@function")
    lab(PREP)
    e(f"s_cmp_ge_u32 s2, {NB}")
    e("s_cbranch_scc1 K1_done")
    stamp(0)
    load_kernargs()
    e("v_readfirstlane_b32 s33, v0")
    e("v_and_b32 v1, 63, v0")
    e("v_lshlrev_b32 v3, 2, v0")
    e("v_mov_b32 v20, 0")
    e("v_mov_b32 v57, 1")
    e("s_lshr_b32 s33, s33, 6")
    e("s_cmp_ge_u32 s33, 10")
    e("s_cbranch_scc1 K1_tables")
    ldf = " nt" if "ntld" in OPT else ""
    e("s_mul_i32 s28, s2, 10240")
    e("v_lshl_add_u32 v58, v0, 4, s28")
    e("s_lshl_b32 s29, s28, 1")
    e("v_lshl_add_u32 v59, v0, 5, s29")
    e(f"ds_write_b32 v3, v20 offset:{K1_HIST}")
    e("s_waitcnt lgkmcnt(0)")
    e(f"global_load_dwordx4 v[4:7], v58, s[10:11]{ldf}")
    e(f"global_load_dwordx4 v[8:11], v58, s[8:9]{ldf}")
    e(f"global_load_dwordx4 v[12:15], v59, s[6:7]{ldf}")
    e(f"global_load_dwordx4 v[16:19], v59, s[6:7] offset:16{ldf}")
    e("s_mov_b32 s30, 52429")
    e("s_movk_i32 s31, -40")
    e("s_barrier")
    e("s_waitcnt vmcnt(3)")
    stamp(1)
    for i in range(4):
        e(f"v_mul_u32_u24 v{20+i}, s30, v{4+i}")
    for i in range(4):
        e(f"v_lshrrev_b32 v{20+i}, 21, v{20+i}")
    for i in range(4):
        e(f"v_mad_i32_i24 v{28+i}, v{20+i}, s31, v{4+i}")
    for i in range(4):
        e(f"v_lshlrev_b32 v{20+i}, 2, v{20+i}")
    for i in range(4):
        e(f"ds_add_rtn_u32 v{24+i}, v{20+i}, v57 offset:{K1_HIST}")
    e("v_lshlrev_b32 v32, 4, v1")
    e("s_waitcnt lgkmcnt(0)")
    lds_rendezvous("K1_sync_hist", K1_SYNC + 4, 10, 33, 34, 57)
    stamp(2)
    e(f"ds_read_b128 v[36:39], v32 offset:{K1_HIST}")
    e("s_waitcnt vmcnt(2)")
    for i in range(4):
        e(f"v_lshlrev_b32 v{8+i}, 8, v{8+i}")
    for i in range(4):
        e(f"v_lshl_or_b32 v{28+i}, v{28+i}, 26, v{8+i}")
    e("s_waitcnt lgkmcnt(0)")
    e("v_add_u32 v40, v36, v37")
    e("v_add_u32 v41, v40, v38")
    e("v_add_u32 v42, v41, v39")
    e("v_mov_b32 v43, v42")
    dpp_scan(43)
    e("v_sub_u32 v44, v43, v42")
    e("v_add_u32 v45, v44, v36")
    e("v_add_u32 v46, v44, v40")
    e("v_add_u32 v47, v44, v41")
    e(f"ds_write_b128 v32, v[44:47] offset:{K1_OFF}")
    for i in range(4):
        e(f"ds_read_b32 v{52+i}, v{20+i} offset:{K1_OFF}")
    e("s_cmp_lg_u32 s33, 0")
    e("s_cbranch_scc1 K1_notab")
    for k in range(4):
        e(f"v_mul_u32_u24 v{48+k}, 12, v{44+k}")
    for k in range(4):
        e(f"v_lshl_or_b32 v{48+k}, v{36+k}, 16, v{48+k}")
    e("s_lshl_b32 s34, s2, 10")
    e("v_add_u32 v33, s34, v32")
    add64(36, 26, WS_TAB)
    e(f"global_store_dwordx4 v33, v[48:51], s[36:37]{WT()}")
    e("s_cmp_ge_u32 s2, 6")
    e("s_cbranch_scc1 K1_notab")
    for k in range(4):
        e(f"v_mov_b32 v{48+k}, 0")
    e(f"v_add_u32 v33, {NB*1024}, v33")
    e(f"global_store_dwordx4 v33, v[48:51], s[36:37]{WT()}")
    lab("K1_notab")
    e("s_waitcnt lgkmcnt(0)")
    for i in range(4):
        e(f"v_add_u32 v{52+i}, v{52+i}, v{24+i}")
    for i in range(4):
        e(f"v_mul_u32_u24 v{52+i}, 12, v{52+i}")
    e("s_cmp_lg_u32 s33, 0")
    e("s_cbranch_scc1 K1_attr_all")
    e("s_cmp_lt_u32 s2, 6")
    e("s_cbranch_scc1 K1_attr_two")
    e("s_waitcnt vmcnt(1)")
    e("s_branch K1_attr_ready")
    lab("K1_attr_two")
    e("s_waitcnt vmcnt(2)")
    e("s_branch K1_attr_ready")
    lab("K1_attr_all")
    e("s_waitcnt vmcnt(0)")
    lab("K1_attr_ready")
    for i in range(4):
        e(f"ds_write2_b32 v{52+i}, v{12+2*i}, v{13+2*i} offset0:0 offset1:1")
        e(f"ds_write_b32 v{52+i}, v{28+i} offset:8")
    e("s_mul_i32 s34, s2, %d" % REC_STRIDE)
    add64(38, 26, WS_REC)
    e("s_add_u32 s38, s38, s34")
    e("s_addc_u32 s39, s39, 0")
    add64(40, 38, 10240)
    add64(42, 38, 20480)
    e("v_lshlrev_b32 v3, 4, v0")
    e("s_waitcnt lgkmcnt(0)")
    lds_rendezvous("K1_sync_stage", K1_SYNC, 10, 33, 34, 57)
    stamp(3)
    e("ds_read_b128 v[4:7], v3")
    e("ds_read_b128 v[8:11], v3 offset:10240")
    e("ds_read_b128 v[12:15], v3 offset:20480")
    e("s_waitcnt lgkmcnt(2)")
    if "norec" not in OPT: e(f"global_store_dwordx4 v3, v[4:7], s[38:39]{WT()}")
    e("s_waitcnt lgkmcnt(1)")
    if "norec" not in OPT: e(f"global_store_dwordx4 v3, v[8:11], s[40:41]{WT()}")
    e("s_waitcnt lgkmcnt(0)")
    if "norec" not in OPT: e(f"global_store_dwordx4 v3, v[12:15], s[42:43]{WT()}")
    stamp(4)
    if STAMPS:
        e("s_waitcnt vmcnt(0)")
        stamp(5)
    stamp_store(6, 33, WS_STAMP + 0x100000)
    e("s_endpgm")
    lab("K1_tables")
    e("s_sub_u32 s34, s33, 10")
    e("s_and_b32 s35, s34, 1")
    e(f"s_mul_i32 s43, s34, {16*144}")
    e(f"s_add_u32 s43, s43, {K1_TT}")
    e("s_lshr_b32 s34, s34, 1")
    e("s_mul_i32 s36, s2, 40")
    e("s_lshl_b32 s37, s34, 4")
    e("s_add_u32 s36, s36, s37")
    e("v_and_b32 v2, 15, v1")
    e("v_lshrrev_b32 v3, 4, v1")
    e("v_add_u32 v60, s36, v2")
    e(f"v_min_u32 v59, {N_NODES-1}, v60")
    e("v_lshlrev_b32 v59, 7, v59")
    e("v_lshl_add_u32 v59, v3, 4, v59")
    e("s_sub_u32 s37, s33, 10")
    e("s_cmp_ge_u32 s37, 3")
    e("s_cselect_b32 s44, 1, 0")
    e("s_mul_i32 s45, s44, 192")
    e("s_add_u32 s45, s45, 640")
    e("v_subrev_u32 v60, s45, v0")
    e("v_lshlrev_b32 v61, 4, v60")
    e("v_lshrrev_b32 v62, 3, v60")
    e(f"v_mul_u32_u24 v62, {W_PITCH}, v62")
    e("v_and_b32 v63, 7, v60")
    e("v_lshl_add_u32 v62, v63, 4, v62")
    e(f"s_mul_i32 s45, s44, {W_MAT}")
    e(f"s_add_u32 s45, s45, {K1_W}")
    e("v_add_u32 v62, s45, v62")
    e("s_mul_i32 s45, s44, 3")
    e("s_sub_u32 s46, s37, s45")
    e("s_waitcnt lgkmcnt(0)")
    e("s_cmp_eq_u32 s44, 0")
    e("s_cselect_b32 s44, s14, s20")
    e("s_cselect_b32 s45, s15, s21")
    e("global_load_dwordx4 v[20:23], v59, s[4:5]")
    e("global_load_dwordx4 v[24:27], v59, s[4:5] offset:64")
    e("global_load_dwordx4 v[40:43], v61, s[44:45]")
    e("global_load_dwordx4 v[44:47], v61, s[44:45] offset:3072")
    e("s_cmp_eq_u32 s46, 2")
    e("s_cbranch_scc1 K1_w2")
    e("v_add_u32 v61, 0x1800, v61")
    e("global_load_dwordx4 v[48:51], v61, s[44:45]")
    lab("K1_w2")
    e("s_barrier")
    e("v_lshrrev_b32 v4, 2, v2")
    e("v_lshl_add_u32 v4, v3, 3, v4")
    e(f"v_mul_u32_u24 v4, {W_PITCH}, v4")
    e("v_and_b32 v63, 3, v2")
    e("v_lshl_add_u32 v4, v63, 3, v4")
    e("s_lshl_b32 s37, s35, 6")
    e(f"s_add_u32 s37, s37, {K1_W}")
    e("v_add_u32 v4, s37, v4")
    e("v_mul_u32_u24 v5, 144, v2")
    e("v_lshl_add_u32 v5, v3, 4, v5")
    e("v_add_u32 v5, s43, v5")
    e("v_lshrrev_b32 v8, 3, v1")
    e("v_and_b32 v9, 7, v1")
    e("v_mul_u32_u24 v6, 144, v8")
    e("v_lshl_add_u32 v6, v9, 4, v6")
    e("v_add_u32 v6, s43, v6")
    e("v_add_u32 v7, s36, v8")
    e("v_lshlrev_b32 v7, 8, v7")
    e("v_lshl_add_u32 v7, v9, 4, v7")
    e("s_lshl_b32 s37, s35, 7")
    e("v_add_u32 v7, s37, v7")
    e(f"s_mov_b32 s40, {NEG_L2E:#x}")
    e("s_brev_b32 s41, 1")
    e("s_mov_b32 s42, 0x7fff0000")
    e("s_waitcnt vmcnt(0)")
    e("ds_write_b128 v62, v[40:43]")
    e(f"ds_write_b128 v62, v[44:47] offset:{24*W_PITCH}")
    e("s_cmp_eq_u32 s46, 2")
    e("s_cbranch_scc1 K1_w2w")
    e(f"ds_write_b128 v62, v[48:51] offset:{48*W_PITCH}")
    lab("K1_w2w")
    e("s_waitcnt lgkmcnt(0)")
    stamp(1)
    lds_rendezvous("K1_sync_w", K1_SYNC + 8, 6, 8, 9, 57)
    stamp(2)
    WB, DB = 28, 64
    def wreg(ft, mp, ks): return WB + 16*ft + 8*mp + 4*ks
    def wreads(ft):
        for mp in range(2):
            for ks in range(2):
                for half in range(2):
                    r = wreg(ft, mp, ks) + 2*half
                    off = mp*W_MAT + (32*ks + 4*half)*W_PITCH + ft*32
                    e(f"ds_read_b64_tr_b16 v[{r}:{r+1}], v4 offset:{off}")
    def mfmas(ft):
        d1, d2 = DB + 8*ft, DB + 8*ft + 4
        e(f"v_mfma_f32_16x16x32_bf16 v[{d1}:{d1+3}], v[{wreg(ft,0,0)}:{wreg(ft,0,0)+3}], v[20:23], 0")
        e(f"v_mfma_f32_16x16x32_bf16 v[{d2}:{d2+3}], v[{wreg(ft,1,0)}:{wreg(ft,1,0)+3}], v[20:23], 0")
        e(f"v_mfma_f32_16x16x32_bf16 v[{d1}:{d1+3}], v[{wreg(ft,0,1)}:{wreg(ft,0,1)+3}], v[24:27], v[{d1}:{d1+3}]")
        e(f"v_mfma_f32_16x16x32_bf16 v[{d2}:{d2+3}], v[{wreg(ft,1,1)}:{wreg(ft,1,1)+3}], v[24:27], v[{d2}:{d2+3}]")
    wreads(0)
    e("s_waitcnt lgkmcnt(0)")
    wreads(1)
    mfmas(0)
    e("s_waitcnt lgkmcnt(0)")
    mfmas(1)
    nop(8)
    stamp(3)
    for ft in range(2):
        for r in range(4):
            e(f"v_mul_f32 v{DB+8*ft+r}, s40, v{DB+8*ft+r}")
    for ft in range(2):
        b = DB + 8*ft
        e(f"v_cvt_pk_bf16_f32 v{44+2*ft}, v{b}, v{b+1}")
        e(f"v_cvt_pk_bf16_f32 v{45+2*ft}, v{b+2}, v{b+3}")
    for ft in range(2):
        b = DB + 8*ft
        e(f"v_and_b32 v{b}, 0xffff, v{44+2*ft}")
        e(f"v_lshrrev_b32 v{b+1}, 16, v{44+2*ft}")
        e(f"v_and_b32 v{b+2}, 0xffff, v{45+2*ft}")
        e(f"v_lshrrev_b32 v{b+3}, 16, v{45+2*ft}")
    el = [(DB+8*ft+r, DB+8*ft+4+r, 28+4*ft+r, 48+4*ft+r) for ft in range(2) for r in range(4)]
    for lo, hv, o, t in el: e(f"v_and_b32 v{t}, 0x7fffffff, v{hv}")
    for lo, hv, o, t in el: e(f"v_add_u32 v{t}, 0x8000, v{t}")
    for lo, hv, o, t in el: e(f"v_sub_u32_e64 v{t}, v{t}, v{lo} clamp")
    for lo, hv, o, t in el: e(f"v_and_or_b32 v{o}, v{hv}, s41, v{lo}")
    for lo, hv, o, t in el: e(f"v_bfi_b32 v{o}, s42, v{t}, v{o}")
    for ft in range(2):
        e(f"ds_write_b128 v5, v[{28+4*ft}:{31+4*ft}] offset:{ft*64}")
    e("s_waitcnt lgkmcnt(0)")
    e("ds_read_b128 v[36:39], v6")
    e(f"ds_read_b128 v[40:43], v6 offset:{8*144}")
    e("s_waitcnt lgkmcnt(1)")
    if "notab" not in OPT: e(f"global_store_dwordx4 v7, v[36:39], s[26:27]{WT()}")
    e("s_cmp_eq_u32 s34, 2")
    e("s_cbranch_scc1 K1_nost")
    e("s_waitcnt lgkmcnt(0)")
    if "notab" not in OPT: e(f"global_store_dwordx4 v7, v[40:43], s[26:27] offset:2048{WT()}")
    lab("K1_nost")
    stamp(4)
    if STAMPS:
        e("s_waitcnt vmcnt(0)")
        stamp(5)
    stamp_store(6, 33, WS_STAMP + 0x100000)
    e("s_sub_u32 s37, s33, 10")
    e("s_or_b32 s37, s37, s2")
    e("s_cmp_lg_u32 s37, 0")
    e("s_cbranch_scc1 K1_done")
    e("v_lshlrev_b32 v2, 2, v1")
    e(f"v_add_u32 v2, {N_NODES*256:#x}, v2")
    e("v_mov_b32 v3, 0x7f00")
    e(f"global_store_dword v2, v3, s[26:27]{WT()}")
    lab("K1_done")
    e("s_endpgm")

ACCN, ACCD = 0, 14336
CNT, MAXC, CN, ZERO = 28672, 28928, 28944, 29008
ZERO_END = 29440
START = 29440
T2L = 29696
AA = 39936
GN = 50432
CAPP = 8160
IDX = GN + 2048
ATTR = IDX + 4*CAPP
K2_LDS = ATTR + 8*CAPP
WST = ATTR
DUMMY = N_NODES * 256
K2_GRID = 256

V_L, V_L4 = 1, 2
V_AI, V_AE, V_ESTR, V_EBASE = 3, 4, 5, 6
V_DB, V_DESC = 7, 8
V_X = 12
V_END, V_A = 14, 15
T = (16, 32, 48)
D = 64
SEL, EO, BE, ONE = 80, 84, 88, 92
DEN, NUM = 96, 98
V_M = 100
V_F = 104
V_LT2 = 106
V_PF = 108
V_XO = 112
K2_VGPRS = 128
S_T = 28
S_BIN, S_WAVE, S_P32, S_MAX = 37, 38, 39, 40
S_MASK = 44
S_K0, S_NBLK, S_K, S_CUR, S_D, S_DN, S_LOADED = 60, 61, 62, 63, 64, 65, 66
S_MIX, S_ROW, S_TMP, S_TMP2, S_PERM = 67, 68, 69, 70, 71
S_KC = 72
S_RNG = 76
S_EXM = 78

def slot(i, jj): return 16 + 4*(i + 4*jj)
def smask(i, jj): return S_MASK + 2*(i + 4*jj)

def issue_row_loads(tb):
    for v in range(tb, tb+16):
        if "noload" in OPT: e("s_nop 0")
        else: e(f"buffer_load_dword v{v}, v{v}, s[{S_T}:{S_T+3}], 0 offen")

def pf_kb():
    for o in OPT:
        if o.startswith("pf="): return int(o[3:])
    return 32

def warm_table(idle=False):
    kb = pf_kb()
    if kb == 0: return
    e("s_lshr_b32 s41, s2, 3")
    e("s_mul_i32 s41, s41, 81920")
    if idle:
        e(f"v_lshl_add_u32 v{V_PF+1}, v0, 6, s41")
        e(f"global_load_dword v{V_PF}, v{V_PF+1}, s[26:27]")
        e(f"v_add_u32 v{V_PF+1}, 0x4000, v{V_PF+1}")
        e(f"global_load_dword v{V_PF}, v{V_PF+1}, s[26:27]")
        return
    e(f"s_mul_i32 s{S_TMP}, s{S_WAVE}, {kb*64}")
    e(f"s_add_u32 s41, s41, s{S_TMP}")
    e(f"v_lshl_add_u32 v{V_PF+1}, v{V_L}, 6, s41")
    if kb < 64:
        m = (1 << kb) - 1
        e(f"s_mov_b32 exec_lo, {m & 0xffffffff:#x}")
        e(f"s_mov_b32 exec_hi, {m >> 32:#x}")
    e(f"global_load_dword v{V_PF}, v{V_PF+1}, s[26:27]")
    if kb < 64: e("s_mov_b64 exec, -1")

def idx_reads(tb, blk):
    for q in range(4):
        e(f"ds_read_b128 v[{tb+4*q}:{tb+4*q+3}], v{V_AI} offset:{IDX+64*blk+16*q}")

def attr_read(blk):
    e(f"ds_read_b64 v[{EO}:{EO+1}], v{V_AE} offset:{128*blk}")

def node_rows_read(sdesc):
    for g in range(4):
        e(f"s_bfe_u32 s{S_TMP}, s{sdesc}, {(8 << 16) | (8*g):#x}")
        e(f"s_lshl_b32 s{S_TMP}, s{S_TMP}, 6")
        e(f"v_add_u32 v{V_A}, s{S_TMP}, v{V_LT2}")
        e(f"ds_read_b32 v{V_M+g}, v{V_A}")

def node_rows_pack():
    e(f"v_perm_b32 v{BE+2}, v{V_M+1}, v{V_M}, s{S_PERM}")
    e(f"v_perm_b32 v{BE+3}, v{V_M+3}, v{V_M+2}, s{S_PERM}")

def flush(tag):
    e(f"v_add_u32 v{V_A}, s{S_ROW}, v{V_L4}")
    e(f"v_add_f32 v{V_F}, v{DEN}, v{DEN+1}")
    e(f"v_add_f32 v{V_F+1}, v{NUM}, v{NUM+1}")
    e(f"s_cmp_lg_u32 s{S_P32}, 0")
    e(f"s_cbranch_scc1 {tag}_atomic")
    e(f"ds_write_b32 v{V_A}, v{V_F} offset:{ACCD}")
    e(f"ds_write_b32 v{V_A}, v{V_F+1} offset:{ACCN}")
    lab(f"{tag}_flushed")
    ATOMIC_SITES.append(tag)

ATOMIC_SITES = []
def atomic_flushes():
    for tag in ATOMIC_SITES:
        lab(f"{tag}_atomic")
        e(f"ds_add_f32 v{V_A}, v{V_F} offset:{ACCD}")
        e(f"ds_add_f32 v{V_A}, v{V_F+1} offset:{ACCN}")
        e(f"s_branch {tag}_flushed")

def acc_group(tp, g):
    for k in (2*g, 2*g+1):
        e(f"v_pk_add_f32 v[{DEN}:{DEN+1}], v[{DEN}:{DEN+1}], v[{D+2*k}:{D+2*k+1}]")
        e(f"v_pk_fma_f32 v[{NUM}:{NUM+1}], v[{D+2*k}:{D+2*k+1}], v[{tp+2*k}:{tp+2*k+1}], v[{NUM}:{NUM+1}]")

def acc_group_init(tp, g):
    a = 4*g
    e(f"v_pk_add_f32 v[{DEN}:{DEN+1}], v[{D+a}:{D+a+1}], v[{D+a+2}:{D+a+3}]")
    e(f"v_pk_mul_f32 v[{NUM}:{NUM+1}], v[{D+a}:{D+a+1}], v[{tp+a}:{tp+a+1}]")
    e(f"v_pk_fma_f32 v[{NUM}:{NUM+1}], v[{D+a+2}:{D+a+3}], v[{tp+a+2}:{tp+a+3}], v[{NUM}:{NUM+1}]")

def body_shl(P, main):
    tp, tr = T[P], T[(P+2) % 3]
    tag = f"K2_{'m' if main else 't'}{P}"
    lab(tag)
    if not main:
        e(f"s_add_u32 s{S_TMP}, s{S_K}, 1")
        e(f"s_cmp_eq_u32 s{S_TMP}, s{S_NBLK}")
        e(f"s_cbranch_scc1 {tag}_p0")
        e("s_setprio 1")
        e(f"s_branch {tag}_pd")
        lab(f"{tag}_p0")
        e("s_setprio 0")
        lab(f"{tag}_pd")
    e(f"s_add_u32 s{S_K}, s{S_K}, 1")
    if main:
        idx_reads(tr, P+2)
        if P == 2: e(f"v_add_u32 v{V_AI}, 0xc0, v{V_AI}")
        e("s_waitcnt lgkmcnt(0)")
        issue_row_loads(tr)
        e("s_waitcnt vmcnt(32)")
    else:
        e("s_waitcnt vmcnt(0) lgkmcnt(0)")
    for v in range(16):
        e(f"v_lshlrev_b32 v{D+v}, 16, v{tp+v}")
    nop(2)
    e(f"v_mfma_f32_32x32x16_bf16 v[{D}:{D+15}], v[{EO}:{EO+3}], v[{BE}:{BE+3}], v[{D}:{D+15}]")
    attr_read(P+1)
    if P == 2: e(f"v_add_u32 v{V_AE}, v{V_ESTR}, v{V_AE}")
    e(f"v_readlane_b32 s{S_DN}, v{V_DB}, s{S_K}")
    e(f"s_mov_b32 s{S_MIX}, 0")
    e(f"s_cmp_eq_u32 s{S_DN}, s{S_LOADED}")
    e(f"s_cbranch_scc0 {tag}_reload")
    lab(f"{tag}_loaded")
    nop(8)
    for v in range(16):
        e(f"v_exp_f32 v{D+v}, v{D+v}")
    nop(2)
    e(f"v_mfma_f32_32x32x8_bf16 v[{D}:{D+15}], v[{ONE}:{ONE+1}], v[{ONE}:{ONE+1}], v[{D}:{D+15}]")
    e(f"s_cmp_lg_u32 s{S_MIX}, 0")
    e(f"s_cbranch_scc1 {tag}_pack")
    lab(f"{tag}_packed")
    e(f"s_and_b32 s{S_TMP}, s{S_D}, 0xff")
    e(f"s_mul_i32 s{S_TMP}, s{S_TMP}, 0x01010101")
    e(f"s_and_b32 s{S_TMP2}, s{S_D}, 0xff")
    e(f"s_xor_b32 s{S_TMP}, s{S_TMP}, s{S_D}")
    e(f"s_xor_b32 s{S_TMP2}, s{S_TMP2}, s{S_CUR}")
    e(f"s_or_b32 s{S_TMP}, s{S_TMP}, s{S_TMP2}")
    nop(4)
    for v in range(16):
        e(f"v_rcp_f32 v{D+v}, v{D+v}")
    e(f"s_cbranch_scc1 {tag}_slow")
    for g in range(4): acc_group(tp, g)
    lab(f"{tag}_next")
    e(f"s_mov_b32 s{S_D}, s{S_DN}")
    nP = (P+1) % 3
    if main:
        e(f"s_add_u32 s{S_TMP}, s{S_K}, 2")
        e(f"s_cmp_lt_u32 s{S_TMP}, s{S_NBLK}")
        e(f"s_cbranch_scc0 K2_t{nP}")
        if P == 2:
            e(f"s_cmp_lt_u32 s{S_K}, 6")
            e("s_cbranch_scc1 K2_m0")
            e("s_setprio 2")
            e("s_branch K2_m0")
    else:
        e(f"s_cmp_lt_u32 s{S_K}, s{S_NBLK}")
        e("s_cbranch_scc0 K2_range_end")
        if P == 2: e("s_branch K2_t0")

def body(P, main):
    tp, tr = T[P], T[(P+2) % 3]
    tag = f"K2_{'m' if main else 't'}{P}"
    lab(tag)
    if "noprio" not in OPT and not main:
        if "prioA" not in OPT:
            e(f"s_add_u32 s{S_TMP}, s{S_K}, 1")
            e(f"s_cmp_eq_u32 s{S_TMP}, s{S_NBLK}")
            e(f"s_cbranch_scc1 {tag}_p0")
            e("s_setprio 1")
            e(f"s_branch {tag}_pd")
            lab(f"{tag}_p0")
            e("s_setprio 0")
            lab(f"{tag}_pd")
        else:
            e("s_setprio 0")
    e("s_waitcnt lgkmcnt(0)")
    shl = "shl" in OPT
    if "nomfma" not in OPT and not shl: e(f"v_mfma_f32_32x32x16_bf16 v[{D}:{D+15}], v[{EO}:{EO+3}], v[{BE}:{BE+3}], 0")
    e(f"s_add_u32 s{S_K}, s{S_K}, 1")
    if main and "nolds" not in OPT: idx_reads(tr, P+2)
    if "nolds" not in OPT: attr_read(P+1)
    if P == 2:
        if main: e(f"v_add_u32 v{V_AI}, 0xc0, v{V_AI}")
        e(f"v_add_u32 v{V_AE}, v{V_ESTR}, v{V_AE}")
    e(f"v_readlane_b32 s{S_DN}, v{V_DB}, s{S_K}")
    e(f"s_mov_b32 s{S_MIX}, 0")
    e(f"s_cmp_eq_u32 s{S_DN}, s{S_LOADED}")
    if "noreload" not in OPT: e(f"s_cbranch_scc0 {tag}_reload")
    lab(f"{tag}_loaded")
    early = "late" not in OPT
    if main and early:
        e("s_waitcnt lgkmcnt(1)")
        issue_row_loads(tr)
        e("s_waitcnt vmcnt(32)")
    elif main:
        e("s_waitcnt vmcnt(16)")
    else:
        nop(4)
        e("s_waitcnt vmcnt(0)")
    for q in range(4 if "nomfma" not in OPT else 0):
        e(f"v_mfma_f32_16x16x32_bf16 v[{D+4*q}:{D+4*q+3}], v[{SEL}:{SEL+3}], v[{tp+4*q}:{tp+4*q+3}], v[{D+4*q}:{D+4*q+3}]")
    if main and not early:
        e("s_waitcnt lgkmcnt(1)")
        issue_row_loads(tr)
    else:
        nop(8)
    for v in range(16):
        if "novalu" not in OPT: e(f"v_exp_f32 v{D+v}, v{D+v}")
    if "one=pk" not in OPT: nop(2)
    if "one=pk" in OPT:
        for k in range(8):
            e(f"v_pk_add_f32 v[{D+2*k}:{D+2*k+1}], v[{D+2*k}:{D+2*k+1}], 1.0 op_sel_hi:[1,0]")
    elif "nomfma" not in OPT:
        e(f"v_mfma_f32_32x32x8_bf16 v[{D}:{D+15}], v[{ONE}:{ONE+1}], v[{ONE}:{ONE+1}], v[{D}:{D+15}]")
    e(f"s_cmp_lg_u32 s{S_MIX}, 0")
    e(f"s_cbranch_scc1 {tag}_pack")
    lab(f"{tag}_packed")
    e(f"s_and_b32 s{S_TMP}, s{S_D}, 0xff")
    e(f"s_mul_i32 s{S_TMP}, s{S_TMP}, 0x01010101")
    e(f"s_and_b32 s{S_TMP2}, s{S_D}, 0xff")
    e(f"s_xor_b32 s{S_TMP}, s{S_TMP}, s{S_D}")
    e(f"s_xor_b32 s{S_TMP2}, s{S_TMP2}, s{S_CUR}")
    e(f"s_or_b32 s{S_TMP}, s{S_TMP}, s{S_TMP2}")
    if "one=pk" not in OPT: nop(4)
    for v in range(16):
        if "novalu" not in OPT: e(f"v_rcp_f32 v{D+v}, v{D+v}")
    if "noslow" not in OPT: e(f"s_cbranch_scc1 {tag}_slow")
    if "novalu" not in OPT:
        for g in range(4): acc_group(tp, g)
    lab(f"{tag}_next")
    e(f"s_mov_b32 s{S_D}, s{S_DN}")
    nP = (P+1) % 3
    if main:
        e(f"s_add_u32 s{S_TMP}, s{S_K}, 2")
        e(f"s_cmp_lt_u32 s{S_TMP}, s{S_NBLK}")
        e(f"s_cbranch_scc0 K2_t{nP}")
        if P == 2:
            if "prioA" not in OPT and "prioB" not in OPT and "noprio" not in OPT:
                e(f"s_cmp_lt_u32 s{S_K}, 6")
                e("s_cbranch_scc1 K2_m0")
                e("s_setprio 2")
            elif "noprio" not in OPT and "prioB" not in OPT:
                e(f"s_cmp_lt_u32 s{S_K}, 6")
                e("s_cbranch_scc0 K2_prio1")
                e("s_setprio 2")
                e("s_branch K2_m0")
                lab("K2_prio1")
                e("s_setprio 1")
            e("s_branch K2_m0")
    else:
        e(f"s_cmp_lt_u32 s{S_K}, s{S_NBLK}")
        e("s_cbranch_scc0 K2_range_end")
        if P == 2: e("s_branch K2_t0")

def body_outlined(P, main):
    tp = T[P]
    tag = f"K2_{'m' if main else 't'}{P}"
    lab(f"{tag}_reload")
    e(f"s_mov_b32 s{S_LOADED}, s{S_DN}")
    e(f"s_and_b32 s{S_TMP}, s{S_DN}, 0xff")
    e(f"s_mul_i32 s{S_TMP2}, s{S_TMP}, 0x01010101")
    e(f"s_cmp_eq_u32 s{S_TMP2}, s{S_DN}")
    e(f"s_cbranch_scc0 {tag}_mixed")
    e(f"s_lshl_b32 s{S_TMP}, s{S_TMP}, 6")
    e(f"v_add_u32 v{V_A}, s{S_TMP}, v{V_LT2}")
    e(f"ds_read2_b32 v[{BE+2}:{BE+3}], v{V_A} offset0:0 offset1:0")
    e(f"s_branch {tag}_loaded")
    lab(f"{tag}_mixed")
    node_rows_read(S_DN)
    e(f"s_mov_b32 s{S_MIX}, 1")
    e(f"s_branch {tag}_loaded")
    lab(f"{tag}_pack")
    e("s_waitcnt lgkmcnt(0)")
    node_rows_pack()
    e(f"s_branch {tag}_packed")
    lab(f"{tag}_slow")
    for g in range(4):
        e(f"s_bfe_u32 s{S_TMP2}, s{S_D}, {(8 << 16) | (8*g):#x}")
        e(f"s_cmp_eq_u32 s{S_TMP2}, s{S_CUR}")
        e(f"s_cbranch_scc0 {tag}_new{g}")
        acc_group(tp, g)
        lab(f"{tag}_g{g}")
    e(f"s_branch {tag}_next")
    for g in range(4):
        lab(f"{tag}_new{g}")
        flush(f"{tag}_f{g}")
        e(f"s_mov_b32 s{S_CUR}, s{S_TMP2}")
        e(f"s_lshl_b32 s{S_ROW}, s{S_TMP2}, 6")
        acc_group_init(tp, g)
        e(f"s_branch {tag}_g{g}")

def gen_k2():
    out.append(f".globl {MAIN}")
    out.append(".p2align 8")
    out.append(f".type {MAIN},@function")
    lab(MAIN)
    e(f"s_cmp_ge_u32 s2, {K2_GRID}")
    e("s_cbranch_scc1 K2_done")
    e("s_and_b32 s3, s2, 7")
    e("s_lshl_b32 s3, s3, 5")
    e(f"s_lshr_b32 s{S_BIN}, s2, 3")
    e(f"s_add_u32 s{S_BIN}, s{S_BIN}, s3")
    stamp(0)
    load_kernargs()
    e(f"s_cmp_ge_u32 s{S_BIN}, {NB}")
    e("s_cbranch_scc1 K2_idle")
    e(f"v_readfirstlane_b32 s{S_WAVE}, v0")
    e(f"v_and_b32 v{V_L}, 63, v0")
    e(f"v_lshlrev_b32 v{V_L4}, 2, v{V_L}")
    e(f"s_lshr_b32 s{S_WAVE}, s{S_WAVE}, 6")
    e(f"s_and_b32 s{S_RNG}, s{S_WAVE}, 3")
    e(f"s_lshl_b32 s{S_RNG}, s{S_RNG}, 2")
    e(f"s_lshr_b32 s41, s{S_WAVE}, 2")
    e(f"s_add_u32 s{S_RNG}, s{S_RNG}, s41")
    e(f"v_lshrrev_b32 v64, 4, v{V_L}")
    e(f"s_lshl_b32 s{S_TMP}, s{S_WAVE}, 2")
    e(f"v_add_u32 v64, s{S_TMP}, v64")
    e("v_lshlrev_b32 v64, 2, v64")
    e(f"s_lshl_b32 s41, s{S_BIN}, 2")
    e("v_lshl_add_u32 v65, v64, 10, s41")
    e(f"v_lshlrev_b32 v66, 1, v{V_L}")
    e("s_waitcnt lgkmcnt(0)")
    add64(32, 26, WS_TAB)
    for i in range(4):
        e(f"global_load_dword v{V_DESC+i}, v65, s[32:33] offset:{1024*i}")
    GW = 12 if "gw12" in OPT else 6
    GSH = 1 if GW == 6 else 2
    if "eb" in OPT: e("s_barrier")
    e(f"s_cmp_lt_u32 s{S_WAVE}, 8")
    e("s_cselect_b32 s42, s12, s18")
    e("s_cselect_b32 s43, s13, s19")
    e("v_and_b32 v67, 0x1ff, v0")
    e("v_lshlrev_b32 v68, 4, v67")
    e("global_load_dwordx4 v[68:71], v68, s[42:43]")
    e(f"s_cmp_ge_u32 s{S_WAVE}, {GW}")
    e("s_cbranch_scc1 K2_no_xop")
    e(f"s_lshr_b32 s41, s{S_WAVE}, {GSH}")
    e("s_lshl_b32 s41, s41, 4")
    e(f"s_mul_i32 s{S_TMP}, s{S_BIN}, 40")
    e(f"s_add_u32 s41, s41, s{S_TMP}")
    e(f"v_and_b32 v65, 15, v{V_L}")
    e("v_add_u32 v65, s41, v65")
    e(f"v_min_u32 v65, {N_NODES-1}, v65")
    e("v_lshlrev_b32 v65, 7, v65")
    e(f"v_lshrrev_b32 v67, 4, v{V_L}")
    e("v_lshl_add_u32 v65, v67, 4, v65")
    e(f"global_load_dwordx4 v[{V_XO}:{V_XO+3}], v65, s[4:5]")
    e(f"global_load_dwordx4 v[{V_XO+4}:{V_XO+7}], v65, s[4:5] offset:64")
    lab("K2_no_xop")
    add64(34, 26, WS_REC)
    e(f"s_mov_b32 s{S_T}, s26")
    e(f"s_and_b32 s{S_T+1}, s27, 0xffff")
    e(f"s_or_b32 s{S_T+1}, s{S_T+1}, 0x40000")
    e(f"s_mov_b32 s{S_T+2}, {(N_NODES+1)*256}")
    e(f"s_mov_b32 s{S_T+3}, 0x00800000")
    for r in range(76, 80):
        e(f"v_mov_b32 v{r}, 0")
    e("v_lshlrev_b32 v67, 4, v0")
    e("ds_write_b128 v67, v[76:79]")
    e(f"v_cmp_gt_u32 vcc, {(ZERO_END-16384)//16}, v0")
    e("s_mov_b64 exec, vcc")
    e("ds_write_b128 v67, v[76:79] offset:16384")
    e("s_mov_b64 exec, -1")
    e(f"v_and_b32 v16, 31, v{V_L}")
    e(f"v_lshrrev_b32 v17, 5, v{V_L}")
    e("v_bfe_u32 v18, v16, 2, 1")
    e("v_lshrrev_b32 v19, 3, v16")
    e("v_and_b32 v16, 3, v16")
    e("v_lshl_add_u32 v16, v19, 2, v16")
    e("v_cmp_eq_u32 vcc, v17, v18")
    e("v_mov_b32 v20, 0x80")
    e("v_lshlrev_b32 v16, 3, v16")
    e(f"v_cndmask_b32 v{V_ESTR}, 0, v20, vcc")
    e(f"v_add_u32 v16, {ATTR}, v16")
    e(f"v_mov_b32 v20, {ZERO}")
    e(f"v_cndmask_b32 v{V_EBASE}, v20, v16, vcc")
    e("v_and_b32 v21, 1, v19")
    e("v_lshlrev_b32 v21, 4, v21")
    e("v_mov_b32 v22, 0x3f80")
    e("v_lshlrev_b32 v21, v21, v22")
    e("v_cndmask_b32 v21, 0, v21, vcc")
    e("v_cmp_gt_u32 vcc, 2, v19")
    e(f"v_mov_b32 v{ONE+1}, 0")
    e(f"v_mov_b32 v{ONE+2}, 0")
    e(f"v_cndmask_b32 v{EO+2}, 0, v21, vcc")
    e(f"v_sub_u32 v{EO+3}, v21, v{EO+2}")
    e(f"v_cmp_gt_u32 vcc, 32, v{V_L}")
    e(f"v_mov_b32 v{ONE+3}, 0")
    e(f"v_add_u32 v{V_LT2}, {AA}, v{V_L4}")
    e(f"v_cndmask_b32 v{ONE}, 0, v22, vcc")
    e(f"v_bfe_u32 v16, v{V_L}, 2, 2")
    e(f"v_lshrrev_b32 v17, 4, v{V_L}")
    e(f"v_and_b32 v18, 3, v{V_L}")
    e("v_cmp_eq_u32 vcc, v16, v17")
    e("v_mov_b32 v19, 31")
    e(f"s_mov_b32 s{S_PERM}, 0x05040100")
    e("v_cndmask_b32 v18, v19, v18, vcc")
    e("v_lshlrev_b32 v18, v18, 1")
    for k in range(4):
        e(f"v_bfe_u32 v{SEL+k}, v18, {k}, 1")
    for k in range(4):
        e(f"v_mul_u32_u24 v{SEL+k}, v22, v{SEL+k}")
    e(f"s_mov_b32 s{S_P32}, 0")
    e("v_and_b32 v79, 0x1ff, v0")
    e("v_lshrrev_b32 v104, 3, v79")
    e(f"v_mul_u32_u24 v104, {W_PITCH}, v104")
    e("v_and_b32 v79, 7, v79")
    e("v_lshl_add_u32 v104, v79, 4, v104")
    e(f"s_lshr_b32 s41, s{S_WAVE}, 3")
    e(f"s_mul_i32 s41, s41, {W_MAT}")
    e(f"s_add_u32 s41, s41, {WST}")
    e("v_add_u32 v104, s41, v104")
    e(f"v_and_b32 v78, 15, v{V_L}")
    e(f"v_lshrrev_b32 v79, 4, v{V_L}")
    e("v_lshrrev_b32 v105, 2, v78")
    e("v_lshl_add_u32 v105, v79, 3, v105")
    e(f"v_mul_u32_u24 v105, {W_PITCH}, v105")
    e("v_and_b32 v77, 3, v78")
    e("v_lshl_add_u32 v105, v77, 3, v105")
    e(f"s_and_b32 s41, s{S_WAVE}, {(1 << GSH) - 1}")
    e(f"s_lshl_b32 s{S_TMP}, s41, {5 if GW == 12 else 6}")
    e(f"s_add_u32 s{S_TMP}, s{S_TMP}, {WST}")
    e(f"v_add_u32 v105, s{S_TMP}, v105")
    e(f"s_lshr_b32 s{S_TMP}, s{S_WAVE}, {GSH}")
    e(f"s_lshl_b32 s{S_TMP}, s{S_TMP}, 4")
    e("v_lshlrev_b32 v107, 2, v79")
    e(f"v_add_u32 v107, s{S_TMP}, v107")
    e(f"v_cmp_gt_u32 s[{S_EXM}:{S_EXM+1}], 40, v107")
    e("v_lshlrev_b32 v107, 8, v107")
    e("v_lshl_add_u32 v107, v78, 2, v107")
    e(f"s_lshl_b32 s41, s41, {6 if GW == 12 else 7}")
    e("v_add_u32 v107, s41, v107")

    def pass_addr():
        e(f"v_lshrrev_b32 v78, 4, v{V_L}")
        e(f"s_lshl_b32 s{S_TMP}, s{S_WAVE}, 2")
        e(f"v_add_u32 v78, s{S_TMP}, v78")
        e(f"v_mul_u32_u24 v78, {4*EPC}, v78")
        e(f"v_and_b32 v76, 15, v{V_L}")
        e(f"v_add_u32 v76, s{S_P32}, v76")
        e("v_add_u32 v78, v78, v76")
        e("v_mul_u32_u24 v100, 12, v78")
        for i in range(1, 4):
            e(f"v_add_u32 v{100+i}, {REC_STRIDE}, v{99+i}")
        e("v_add_u32 v77, 17, v76")
        e("v_lshlrev_b32 v77, 16, v77")
    pass_addr()
    e(f"s_cmp_ge_u32 s{S_WAVE}, {GW}")
    e("s_cbranch_scc1 K2_wdesc1")
    e("s_waitcnt vmcnt(3)")
    e("s_branch K2_wdesc")
    lab("K2_wdesc1")
    e("s_waitcnt vmcnt(1)")
    lab("K2_wdesc")
    stamp(1)

    lab("K2_pass")
    for i in range(4):
        m = smask(i, 0)
        e(f"v_cmp_lt_u32_sdwa s[{m}:{m+1}], v76, v{V_DESC+i} src0_sel:DWORD src1_sel:WORD_1")
    for i in range(4):
        e(f"v_add_u32_sdwa v{64+i}, v{V_DESC+i}, v{100+i} dst_sel:DWORD dst_unused:UNUSED_PAD src0_sel:WORD_0 src1_sel:DWORD")
    for i in range(4):
        r, m = slot(i, 0), smask(i, 0)
        e(f"s_mov_b64 exec, s[{m}:{m+1}]")
        e(f"global_load_dwordx3 v[{r}:{r+2}], v{64+i}, s[34:35]")
    e("s_mov_b64 exec, -1")
    e(f"v_max3_u32 v{V_DB}, v{V_DESC}, v{V_DESC+1}, v{V_DESC+2}")
    e(f"v_max_u32 v{V_DB}, v{V_DB}, v{V_DESC+3}")
    e(f"s_mov_b32 s{S_MIX}, 0")
    e(f"v_cmp_ge_u32 vcc, v{V_DB}, v77")
    e("s_cbranch_vccz K2_no_second")
    e("v_add_u32 v79, 16, v76")
    for i in range(4):
        m = smask(i, 1)
        e(f"v_cmp_lt_u32_sdwa s[{m}:{m+1}], v79, v{V_DESC+i} src0_sel:DWORD src1_sel:WORD_1")
    e(f"s_mov_b32 s{S_MIX}, 1")
    for i in range(4):
        r, m = slot(i, 1), smask(i, 1)
        e(f"s_mov_b64 exec, s[{m}:{m+1}]")
        e(f"global_load_dwordx3 v[{r}:{r+2}], v{64+i}, s[34:35] offset:192")
    e("s_mov_b64 exec, -1")
    lab("K2_no_second")
    e(f"s_cmp_lg_u32 s{S_P32}, 0")
    e("s_cbranch_scc1 K2_tables_done")
    fstamp(2)
    e(f"s_cmp_eq_u32 s{S_MIX}, 0")
    e("s_cbranch_scc1 K2_ww4")
    e("s_waitcnt vmcnt(8)")
    e("s_branch K2_ww")
    lab("K2_ww4")
    e("s_waitcnt vmcnt(4)")
    lab("K2_ww")
    fstamp(3)
    e("ds_write_b128 v104, v[68:71]")
    e(f"v_mov_b32 v68, 0")
    e(f"ds_write_b32 v{V_L4}, v68 offset:{AA + 40*256}")
    e("s_waitcnt lgkmcnt(0)")
    e("s_barrier")
    e(f"v_cmp_le_u32 vcc, 0x210000, v{V_DB}")
    e("s_cbranch_vccz K2_nomax")
    e(f"v_mov_b32 v79, {MAXC}")
    e(f"ds_max_u32 v79, v{V_DB}")
    lab("K2_nomax")
    fstamp(4)
    e(f"s_cmp_ge_u32 s{S_WAVE}, {GW}")
    e("s_cbranch_scc1 K2_tables_done")
    e(f"s_mov_b32 s{S_TMP}, {NEG_L2E:#x}")
    for ft in range(1 if GW == 12 else 2):
        for mp in range(2):
            for ks in range(2):
                for half in range(2):
                    r = 48 + 8*mp + 4*ks + 2*half
                    e(f"ds_read_b64_tr_b16 v[{r}:{r+1}], v105 offset:{mp*W_MAT + (32*ks + 4*half)*W_PITCH + 32*ft}")
        e("s_waitcnt lgkmcnt(0)")
        e(f"v_mfma_f32_16x16x32_bf16 v[120:123], v[{V_XO}:{V_XO+3}], v[48:51], 0")
        e(f"v_mfma_f32_16x16x32_bf16 v[124:127], v[{V_XO}:{V_XO+3}], v[56:59], 0")
        e(f"v_mfma_f32_16x16x32_bf16 v[120:123], v[{V_XO+4}:{V_XO+7}], v[52:55], v[120:123]")
        e(f"v_mfma_f32_16x16x32_bf16 v[124:127], v[{V_XO+4}:{V_XO+7}], v[60:63], v[124:127]")
        nop(8)
        for r in range(4):
            e(f"v_mul_f32 v{120+r}, s{S_TMP}, v{120+r}")
        for r in range(4):
            e(f"v_cvt_pk_bf16_f32 v{124+r}, v{120+r}, v{124+r}")
        for r in range(4):
            e(f"v_cvt_pk_bf16_f32 v{120+r}, v{120+r}, v{120+r}")
        e(f"s_mov_b64 exec, s[{S_EXM}:{S_EXM+1}]")
        for r in range(4):
            e(f"ds_write_b32 v107, v{124+r} offset:{T2L + 256*r + 64*ft}")
            e(f"ds_write_b32 v107, v{120+r} offset:{AA + 256*r + 64*ft}")
        e("s_mov_b64 exec, -1")
    lab("K2_tables_done")
    fstamp(5)

    def for_slots(fn, name):
        for i in range(4):
            m = smask(i, 0)
            e(f"s_mov_b64 exec, s[{m}:{m+1}]")
            fn(i, 0, slot(i, 0))
        e("s_mov_b64 exec, -1")
        e(f"s_cmp_eq_u32 s{S_MIX}, 0")
        e(f"s_cbranch_scc1 K2_{name}_skip")
        for i in range(4):
            m = smask(i, 1)
            e(f"s_mov_b64 exec, s[{m}:{m+1}]")
            fn(i, 1, slot(i, 1))
        e("s_mov_b64 exec, -1")
        lab(f"K2_{name}_skip")
    e("v_mov_b32 v78, 4")
    e("s_waitcnt vmcnt(0)")
    fstamp(6)
    stamp(2)
    def cnt_fn(i, jj, r):
        t = D + i + 4*jj
        e(f"v_lshrrev_b32 v{t}, 24, v{r+2}")
        e(f"ds_add_rtn_u32 v{r+3}, v{t}, v78 offset:{CNT}")
    for_slots(cnt_fn, "cnt")
    e("s_waitcnt lgkmcnt(0)")
    e("s_barrier")
    stamp(3)
    fstamp(7)
    e(f"ds_read_b32 v76, v{V_L4} offset:{CNT}")
    e(f"v_mov_b32 v79, {MAXC}")
    e("ds_read_b32 v79, v79")
    e(f"s_cmp_lg_u32 s{S_P32}, 0")
    e("s_cbranch_scc1 K2_late_loaded")
    e(f"v_lshlrev_b32 v75, 1, v{V_L}")
    for c in range(4):
        e(f"global_load_ushort v{120+c}, v75, s[16:17] offset:{128*c}")
    e(f"s_mul_i32 s41, s{S_BIN}, 5120")
    e("v_lshl_add_u32 v75, v0, 3, s41")
    e(f"v_min_u32 v75, {N_NODES*128-8}, v75")
    e(f"global_load_dwordx2 v[{V_X}:{V_X+1}], v75, s[4:5]")
    warm_table()
    lab("K2_late_loaded")
    e("s_waitcnt lgkmcnt(0)")
    e(f"v_readfirstlane_b32 s{S_MAX}, v79")
    e("v_add_u32 v77, 12, v76")
    e("v_and_b32 v77, -16, v77")
    e(f"v_mov_b32 v{V_END}, v77")
    e(f"s_lshr_b32 s{S_MAX}, s{S_MAX}, 16")
    dpp_scan(V_END)
    e(f"v_sub_u32 v75, v{V_END}, v77")
    e(f"ds_write_b32 v{V_L4}, v75 offset:{START}")
    def st_fn(i, jj, r):
        t = D + i + 4*jj
        e(f"ds_read_b32 v{T[2]+i+4*jj}, v{t} offset:{START}")
    for_slots(st_fn, "st")
    e(f"v_readlane_b32 s{S_NBLK}, v{V_END}, 63")
    e(f"s_cmp_lt_u32 s{S_WAVE}, 12")
    e("s_cbranch_scc1 K2_nopad")
    e(f"v_mov_b32 v74, {DUMMY:#x}")
    e("v_mov_b32 v72, 0")
    e("v_mov_b32 v73, 0")
    e(f"s_cmp_eq_u32 s{S_WAVE}, 15")
    e("s_cbranch_scc1 K2_tailpad")
    e(f"s_sub_u32 s{S_TMP}, s{S_WAVE}, 12")
    e(f"s_lshl_b32 s{S_TMP}, s{S_TMP}, 2")
    e("v_add_u32 v75, v75, v76")
    e(f"v_add_u32 v75, s{S_TMP}, v75")
    e(f"v_cmp_lt_u32 vcc, v75, v{V_END}")
    e(f"s_mov_b32 s{S_TMP}, {ATTR}")
    e(f"v_lshl_add_u32 v78, v75, 1, s{S_TMP}")
    e("s_mov_b64 exec, vcc")
    e(f"ds_write_b32 v75, v74 offset:{IDX}")
    e("ds_write_b64 v78, v[72:73]")
    e("s_mov_b64 exec, -1")
    e("s_branch K2_nopad")
    lab("K2_tailpad")
    e(f"s_add_u32 s{S_TMP}, s{S_NBLK}, 63")
    e(f"s_and_b32 s{S_TMP}, s{S_TMP}, -64")
    e(f"v_add_u32 v75, s{S_NBLK}, v{V_L4}")
    e(f"v_cmp_gt_u32 vcc, s{S_TMP}, v75")
    e(f"s_mov_b32 s{S_TMP}, {ATTR}")
    e(f"v_lshl_add_u32 v78, v75, 1, s{S_TMP}")
    e("v_lshrrev_b32 v77, 4, v75")
    e("v_mov_b32 v76, 160")
    e("s_mov_b64 exec, vcc")
    e(f"ds_write_b32 v75, v74 offset:{IDX}")
    e("ds_write_b64 v78, v[72:73]")
    e(f"ds_write_b8 v77, v76 offset:{GN}")
    e("s_mov_b64 exec, -1")
    lab("K2_nopad")
    e("s_waitcnt lgkmcnt(0)")
    e(f"s_mov_b32 s{S_TMP2}, {ATTR}")
    def sc_fn(i, jj, r):
        t = D + i + 4*jj
        p = T[2] + i + 4*jj
        e(f"v_add_u32 v{p}, v{p}, v{r+3}")
        e(f"v_and_b32 v{r+2}, 0xffffff, v{r+2}")
        e(f"v_lshl_add_u32 v{r+3}, v{p}, 1, s{S_TMP2}")
        e(f"ds_write_b32 v{p}, v{r+2} offset:{IDX}")
        e(f"ds_write_b64 v{r+3}, v[{r}:{r+1}]")
        e(f"v_lshrrev_b32 v{p}, 4, v{p}")
        e(f"ds_write_b8 v{p}, v{t} offset:{GN}")
    for_slots(sc_fn, "sc")
    e(f"s_cmp_lg_u32 s{S_P32}, 0")
    e("s_cbranch_scc1 K2_wc_done")
    e(f"s_waitcnt vmcnt({1 if pf_kb() else 0})")
    e(f"s_mov_b32 s{S_TMP}, {NEG_L2E:#x}")
    for c in range(4):
        e(f"v_lshlrev_b32 v{120+c}, 16, v{120+c}")
    for c in range(4):
        e(f"v_mul_f32 v{120+c}, s{S_TMP}, v{120+c}")
    e(f"v_cvt_pk_bf16_f32 v{BE}, v120, v121")
    e(f"v_cvt_pk_bf16_f32 v{BE+1}, v122, v123")
    lab("K2_wc_done")
    e(f"s_add_u32 s{S_TMP}, s{S_NBLK}, 63")
    e(f"s_lshr_b32 s{S_TMP}, s{S_TMP}, 6")
    e(f"s_mul_i32 s{S_K0}, s{S_TMP}, s{S_RNG}")
    e(f"s_add_u32 s{S_NBLK}, s{S_K0}, s{S_TMP}")
    e(f"s_lshr_b32 s{S_K0}, s{S_K0}, 4")
    e(f"s_lshr_b32 s{S_NBLK}, s{S_NBLK}, 4")
    e(f"s_sub_u32 s{S_NBLK}, s{S_NBLK}, s{S_K0}")
    e(f"v_add_u32 v{V_A}, s{S_K0}, v{V_L}")
    e(f"v_lshlrev_b32 v{V_A}, 2, v{V_A}")
    e(f"s_lshl_b32 s{S_TMP}, s{S_K0}, 6")
    e(f"v_mov_b32 v{V_AI}, s{S_TMP}")
    e(f"v_mad_u32_u24 v{V_AE}, v{V_ESTR}, s{S_K0}, v{V_EBASE}")
    e(f"v_mul_u32_u24 v{V_ESTR}, 3, v{V_ESTR}")
    for r in (DEN, DEN+1, NUM, NUM+1):
        e(f"v_mov_b32 v{r}, 0")
    e(f"s_cmp_eq_u32 s{S_NBLK}, 0")
    e("s_waitcnt lgkmcnt(0)")
    e("s_barrier")
    stamp(4)
    e("s_cbranch_scc1 K2_empty_range")
    idx_reads(T[0], 0)
    idx_reads(T[1], 1)
    e(f"ds_read_b32 v{V_DB}, v{V_A} offset:{GN}")
    e(f"ds_read_b32 v{V_F}, v{V_A} offset:{GN-4}")
    attr_read(0)
    e("s_waitcnt lgkmcnt(7)")
    issue_row_loads(T[0])
    e("s_waitcnt lgkmcnt(0)")
    e(f"v_readlane_b32 s{S_D}, v{V_DB}, 0")
    e(f"s_cmp_lt_u32 s{S_NBLK}, 2")
    e("s_cbranch_scc1 K2_one_block")
    issue_row_loads(T[1])
    lab("K2_one_block")
    node_rows_read(S_D)
    e(f"s_mov_b32 s{S_LOADED}, s{S_D}")
    e(f"s_and_b32 s{S_CUR}, s{S_D}, 0xff")
    e(f"s_lshl_b32 s{S_ROW}, s{S_CUR}, 6")
    e(f"s_cmp_lg_u32 s{S_P32}, 0")
    e("s_cbranch_scc1 K2_carry_done")
    e(f"v_readlane_b32 s{S_TMP2}, v{V_F}, 0")
    e(f"s_add_u32 s{S_MIX}, s{S_RNG}, 40")
    e(f"s_lshl_b32 s{S_MIX}, s{S_MIX}, 8")
    e(f"s_lshr_b32 s{S_TMP2}, s{S_TMP2}, 24")
    e(f"s_cmp_eq_u32 s{S_K0}, 0")
    e(f"s_cselect_b32 s{S_TMP2}, 0x100, s{S_TMP2}")
    e(f"s_cmp_eq_u32 s{S_TMP2}, s{S_CUR}")
    e(f"s_cselect_b32 s{S_ROW}, s{S_MIX}, s{S_ROW}")
    e(f"s_cselect_b32 s{S_TMP2}, s{S_CUR}, 0xff")
    e(f"s_lshl_b32 s{S_TMP}, s{S_RNG}, 2")
    e(f"v_mov_b32 v{V_A}, s{S_TMP}")
    e(f"v_mov_b32 v{V_F}, s{S_TMP2}")
    e(f"ds_write_b32 v{V_A}, v{V_F} offset:{CN}")
    lab("K2_carry_done")
    e(f"s_mov_b32 s{S_K}, 0")
    e("s_waitcnt lgkmcnt(0)")
    node_rows_pack()
    if "noprio" not in OPT: e("s_setprio 3")
    e(f"s_cmp_gt_u32 s{S_NBLK}, 2")
    e("s_cbranch_scc0 K2_t0")
    bodyf = body_shl if "shl" in OPT else body
    for P in range(3): bodyf(P, True)
    for P in range(3): bodyf(P, False)
    for P in range(3): body_outlined(P, True)
    for P in range(3): body_outlined(P, False)
    atomic_flushes()
    lab("K2_range_end")
    ATOMIC_SITES.clear()
    flush("K2_last")
    e("s_branch K2_main_done")
    lab("K2_empty_range")
    e(f"s_cmp_lg_u32 s{S_P32}, 0")
    e("s_cbranch_scc1 K2_main_done")
    e(f"s_lshl_b32 s{S_TMP}, s{S_RNG}, 2")
    e(f"v_mov_b32 v{V_A}, s{S_TMP}")
    e(f"v_mov_b32 v{V_F}, 0xff")
    e(f"ds_write_b32 v{V_A}, v{V_F} offset:{CN}")
    lab("K2_main_done")
    if "noprio" not in OPT: e("s_setprio 0")
    stamp(5)
    e(f"s_add_u32 s{S_P32}, s{S_P32}, 32")
    e(f"s_cmp_ge_u32 s{S_P32}, s{S_MAX}")
    e("s_cbranch_scc1 K2_final")
    e(f"s_cmp_lg_u32 s{S_WAVE}, 0")
    e("s_cbranch_scc1 K2_nozc")
    e("v_mov_b32 v76, 0")
    e(f"ds_write_b32 v{V_L4}, v76 offset:{CNT}")
    lab("K2_nozc")
    e(f"v_cmp_ne_u32 vcc, 0, v{V_ESTR}")
    e("v_mov_b32 v76, 0x80")
    nop(1)
    e(f"v_cndmask_b32 v{V_ESTR}, 0, v76, vcc")
    pass_addr()
    e("s_waitcnt lgkmcnt(0)")
    e("s_barrier")
    e("s_branch K2_pass")
    lab("K2_final")
    e("s_waitcnt lgkmcnt(0)")
    e("s_barrier")
    stamp(6)
    e(f"s_cmp_ge_u32 s{S_WAVE}, 10")
    e("s_cbranch_scc1 K2_end")
    e("v_lshlrev_b32 v67, 4, v0")
    e(f"ds_read_b128 v[16:19], v67 offset:{ACCN}")
    e(f"ds_read_b128 v[20:23], v67 offset:{ACCD}")
    e(f"ds_read_b128 v[24:27], v67 offset:{T2L}")
    e(f"v_and_b32 v30, 15, v{V_L}")
    e("v_lshlrev_b32 v31, 2, v30")
    e(f"ds_read_b32 v31, v31 offset:{CN}")
    e(f"s_mul_i32 s41, s{S_BIN}, 5120")
    e("v_lshl_add_u32 v66, v0, 3, s41")
    e("s_mov_b32 s42, 0x358637bd")
    e("v_lshrrev_b32 v32, 4, v0")
    e("v_lshlrev_b32 v32, 2, v32")
    e("v_lshlrev_b32 v33, 4, v30")
    e("s_waitcnt lgkmcnt(0)")
    e("v_lshrrev_b32 v34, 4, v31")
    e(f"v_cmp_eq_u32 vcc, s{S_WAVE}, v34")
    e("s_and_b32 s44, vcc_lo, 0xffff")
    lab("K2_merge")
    e("s_cmp_eq_u32 s44, 0")
    e("s_cbranch_scc1 K2_merged")
    e("s_ff1_i32_b32 s45, s44")
    e("s_bitset0_b32 s44, s45")
    e("v_readlane_b32 s46, v31, s45")
    e("s_add_u32 s45, s45, 40")
    e("s_lshl_b32 s45, s45, 8")
    e("v_add_u32 v35, s45, v33")
    e(f"ds_read_b128 v[36:39], v35 offset:{ACCN}")
    e(f"ds_read_b128 v[40:43], v35 offset:{ACCD}")
    e("v_cmp_eq_u32 vcc, s46, v32")
    e("s_waitcnt lgkmcnt(0)")
    e("s_mov_b64 exec, vcc")
    for r in range(4):
        e(f"v_add_f32 v{16+r}, v{16+r}, v{36+r}")
        e(f"v_add_f32 v{20+r}, v{20+r}, v{40+r}")
    e("s_mov_b64 exec, -1")
    e("s_branch K2_merge")
    lab("K2_merged")
    for r in range(4):
        e(f"v_add_f32 v{20+r}, s42, v{20+r}")
    for r in range(4):
        e(f"v_rcp_f32 v{20+r}, v{20+r}")
    for r in range(4):
        e(f"v_and_b32 v{24+r}, 0xffff0000, v{24+r}")
    for r in range(4):
        e(f"v_fma_f32 v{16+r}, v{16+r}, v{20+r}, v{24+r}")
    for r in range(4):
        e(f"v_mul_f32 v{20+r}, 0, v{16+r}")
    for r in range(4):
        e(f"v_cmp_lt_f32 vcc, 0, v{16+r}")
        nop(2)
        e(f"v_cndmask_b32 v{16+r}, v{20+r}, v{16+r}, vcc")
    e(f"v_lshlrev_b32 v24, 16, v{V_X}")
    e(f"v_and_b32 v25, 0xffff0000, v{V_X}")
    e(f"v_lshlrev_b32 v26, 16, v{V_X+1}")
    e(f"v_and_b32 v27, 0xffff0000, v{V_X+1}")
    for r in range(4):
        e(f"v_add_f32 v{16+r}, v{16+r}, v{24+r}")
    e("v_cvt_pk_bf16_f32 v28, v16, v17")
    e("v_cvt_pk_bf16_f32 v29, v18, v19")
    e(f"global_store_dwordx2 v66, v[28:29], s[22:23]{'' if 'outplain' in OPT else ' sc1'}")
    lab("K2_end")
    stamp(7)
    stamp_store(8, S_WAVE, WS_STAMP, S_BIN)
    lab("K2_done")
    e("s_endpgm")
    lab("K2_idle")
    e(f"v_readfirstlane_b32 s{S_WAVE}, v0")
    e("s_waitcnt lgkmcnt(0)")
    e(f"s_lshr_b32 s{S_WAVE}, s{S_WAVE}, 6")
    warm_table(idle=True)
    e("s_endpgm")
    atomic_flushes()

def gen_diag(spec):
    ka, sa, ra, kb, sb, rb = spec
    out.append(".globl diag_kernel")
    out.append(".p2align 8")
    out.append(".type diag_kernel,@function")
    lab("diag_kernel")
    e("s_cmp_ge_u32 s2, 1")
    e("s_cbranch_scc1 DG_done")
    e("s_load_dwordx2 s[26:27], s[0:1], 88")
    e("s_waitcnt lgkmcnt(0)")
    e(f"s_add_u32 s4, s26, {WS_STAMP + 0x100000:#x}")
    e("s_addc_u32 s5, s27, 0")
    e("s_load_dword s20, s[4:5], 0")
    e("v_mov_b32 v20, 0")
    e("v_mov_b32 v21, 0x7fffffff")
    e("v_mov_b32 v22, 0x80000000")
    e(f"ds_write_b32 v20, v{21 if ra == 'min' else 22} offset:0")
    e(f"ds_write_b32 v20, v{21 if rb == 'min' else 22} offset:4")
    e("s_waitcnt lgkmcnt(0)")
    e("s_barrier")
    def reduce(kern, st, red, off, tag):
        base = WS_STAMP + (0x100000 if kern[0] == '1' else 0)
        w0, w1, nw = {'1b': (0, 250, 10), '1t': (0, 250, 16), '1': (0, 250, 16), '2': (0, 250, 16)}[kern]
        e(f"s_add_u32 s4, s26, {base + 8*st:#x}")
        e("s_addc_u32 s5, s27, 0")
        for r in range(6):
            e(f"v_add_u32 v1, {w0*16 + 1024*r}, v0")
            e("v_and_b32 v3, 15, v1")
            e(f"v_cmp_gt_u32 vcc, {nw}, v3")
            e(f"v_cmp_gt_u32 s[10:11], s30, v1".replace("s30", "s30"))
            e("s_and_b64 vcc, vcc, s[10:11]")
            e("s_and_saveexec_b64 s[12:13], vcc")
            e(f"s_cbranch_execz DG_{tag}{r}")
            e("v_lshlrev_b32 v1, 7, v1")
            e("global_load_dword v2, v1, s[4:5]")
            e("s_waitcnt vmcnt(0)")
            e("v_subrev_u32 v2, s20, v2")
            e(f"ds_{red}_i32 v20, v2 offset:{off}")
            lab(f"DG_{tag}{r}")
            e("s_mov_b64 exec, s[12:13]")
    def bound(kern):
        w1 = 250
        e(f"s_mov_b32 s30, {w1*16}")
    bound(ka); reduce(ka, sa, ra, 0, "a")
    bound(kb); reduce(kb, sb, rb, 4, "b")
    e("s_waitcnt lgkmcnt(0)")
    e("s_barrier")
    e("ds_read_b64 v[4:5], v20")
    e("s_waitcnt lgkmcnt(0)")
    e("v_readfirstlane_b32 s21, v4")
    e("v_readfirstlane_b32 s12, v5")
    e("s_nop 3")
    e("s_sub_u32 s22, s12, s21")
    e("s_max_i32 s22, s22, 0")
    e("s_min_i32 s22, s22, 4000")
    e("s_mul_i32 s22, s22, 20")
    e("s_memrealtime s[14:15]")
    e("s_waitcnt lgkmcnt(0)")
    lab("DG_spin")
    e("s_memrealtime s[16:17]")
    e("s_waitcnt lgkmcnt(0)")
    e("s_sub_u32 s18, s16, s14")
    e("s_cmp_lt_u32 s18, s22")
    e("s_cbranch_scc1 DG_spin")
    lab("DG_done")
    e("s_endpgm")

def kd(name, vgpr, sgpr):
    out.append(".p2align 6")
    out.append(f".amdhsa_kernel {name}")
    out.append(f"  .amdhsa_next_free_vgpr {vgpr}")
    out.append(f"  .amdhsa_next_free_sgpr {sgpr}")
    out.append(f"  .amdhsa_accum_offset {(vgpr+3)//4*4}")
    out.append("  .amdhsa_group_segment_fixed_size 0")
    out.append("  .amdhsa_kernarg_size 96")
    out.append("  .amdhsa_user_sgpr_count 2")
    out.append("  .amdhsa_user_sgpr_kernarg_segment_ptr 1")
    out.append("  .amdhsa_system_sgpr_workgroup_id_x 1")
    out.append(".end_amdhsa_kernel")

HEADER = f"""; Kernarg layout (96 bytes, ptrs only, base s[0:1]):
;   56 w_u | 64 w_v | 72 out (10000,64) bf16 | 80 debug | 88 workspace
; @launch kernel={PREP} grid=({NB},1,1) block=(1024,1,1) lds={K1_LDS}
; @launch kernel={MAIN} grid=({K2_GRID},1,1) block=(1024,1,1) lds={K2_LDS}
.amdgcn_target "amdgcn-amd-amdhsa--gfx950"
.text"""

def main():
    global STAMPS
    if "--stamps" in sys.argv:
        STAMPS = True
        sys.argv.remove("--stamps")
    for a in list(sys.argv):
        if a.startswith("--opt="):
            OPT.update(a[6:].split(","))
            sys.argv.remove(a)
    diag = [o for o in OPT if o.startswith("diag=")]
    hdr = HEADER
    if diag:
        hdr = hdr.replace(".amdgcn_target", "; @launch kernel=diag_kernel grid=(1,1,1) block=(1024,1,1) lds=64\n.amdgcn_target")
    out.append(hdr)
    gen_k1()
    gen_k2()
    if diag: gen_diag([int(x) if x.isdigit() and i in (1, 4) else x for i, x in enumerate(diag[0][5:].split(":"))])
    out.append('.section .rodata,"a"')
    if diag: kd("diag_kernel", 32, 48)
    kd(PREP, 80, 102 if STAMPS else 56)
    kd(MAIN, K2_VGPRS, 102 if STAMPS else 80)
    path = sys.argv[1] if len(sys.argv) > 1 else "standalone__edge_featured_mpnn_gatedgcn__graph.s"
    open(path, "w").write("\n".join(out) + "\n")
    print("wrote", path, len(out), "lines")

if __name__ == "__main__":
    main()
```

```python
import sys

MAIN = "standalone__edge_featured_mpnn_gatedgcn__graph_kernel"
PREP = "gcn_prep_kernel"

N_NODES = 10000
NB = 250
EPC = 2560
NPB = 40
WS_T = 0
WS_T2 = 0x280000
WS_TAB = 0x500000
WS_WCP = 0x540000
WS_REC = 0x580000
REC_STRIDE = EPC * 12
NEG_L2E = 0xBFB8AA3B

out = []
def e(s): out.append("    " + s)
def lab(s): out.append(s + ":")
def cmt(s): out.append("    ; " + s)
def nop(n):
    while n > 0:
        k = min(n, 16)
        e(f"s_nop {k-1}")
        n -= k

STAMPS = False
OPT = set()
WS_STAMP = 0x2000000
def fstamp(k):
    if STAMPS and "fine" in OPT: e(f"s_memtime s[{80+2*k}:{81+2*k}]")
def gstamp(k):
    if STAMPS and "fine2" in OPT: e(f"s_memtime s[{80+2*k}:{81+2*k}]")
def stamp(k):
    if not STAMPS or ("segs" in OPT and k >= 2): return
    if "fine" in OPT:
        if k in (0, 1): e(f"s_memtime s[{80+2*k}:{81+2*k}]")
        return
    if "fine2" in OPT:
        if k == 0: e(f"s_memtime s[{80+2*k}:{81+2*k}]")
        return
    if "both" in OPT:
        if k in (4, 6):
            e(f"s_memtime s[{80+2*k}:{81+2*k}]")
            e(f"s_memrealtime s[{82+2*k}:{83+2*k}]")
        elif k not in (5, 7):
            e(f"s_memtime s[{80+2*k}:{81+2*k}]")
        return
    e(f"{'s_memrealtime' if 'rt' in OPT else 's_memtime'} s[{80+2*k}:{81+2*k}]")
def seg(k):
    if "segs" in OPT:
        e("s_memtime s[98:99]")
        e("s_waitcnt lgkmcnt(0)")
        e("s_sub_u32 s100, s98, s79")
        e(f"s_add_u32 s{84+k}, s{84+k}, s100")
        e("s_mov_b32 s79, s98")
def stamp_store(nst, wave_sreg, base_off, wg_sreg=2):
    if not STAMPS: return
    e("s_waitcnt vmcnt(0) lgkmcnt(0)")
    e("s_mov_b64 exec, 1")
    e(f"s_lshl_b32 s98, s{wg_sreg}, 4")
    e(f"s_add_u32 s98, s98, s{wave_sreg}")
    e(f"s_lshl_b32 s98, s98, 7")
    e(f"s_add_u32 s98, s98, {base_off:#x}")
    e("s_add_u32 s96, s26, s98")
    e("s_addc_u32 s97, s27, 0")
    e("v_mov_b32 v0, 0")
    for k in range(nst):
        e(f"v_mov_b32 v2, s{80+2*k}")
        e(f"v_mov_b32 v3, s{81+2*k}")
        e(f"global_store_dwordx2 v0, v[2:3], s[96:97] offset:{8*k}")
        e("s_nop 1")
    e("s_waitcnt vmcnt(0)")
    e("s_mov_b64 exec, -1")

def dpp_scan(v):
    for ctl in ("row_shr:1 row_mask:0xf bank_mask:0xf", "row_shr:2 row_mask:0xf bank_mask:0xf",
                "row_shr:4 row_mask:0xf bank_mask:0xf", "row_shr:8 row_mask:0xf bank_mask:0xf",
                "row_bcast:15 row_mask:0xa bank_mask:0xf", "row_bcast:31 row_mask:0xc bank_mask:0xf"):
        nop(2)
        e(f"v_add_u32_dpp v{v}, v{v}, v{v} {ctl}")

def load_kernargs():
    e("s_load_dwordx16 s[4:19], s[0:1], 0")
    e("s_load_dwordx8 s[20:27], s[0:1], 64")

def add64(d, s, imm):
    e(f"s_add_u32 s{d}, s{s}, {imm:#x}")
    e(f"s_addc_u32 s{d+1}, s{s+1}, 0")

K1_STG, K1_HIST, K1_OFF = 0, 30720, 33280
K1_SYNC = K1_HIST + 4*300
K1_W = 34304
W_PITCH = 144
W_MAT = 64 * W_PITCH
K1_TT = K1_W + 2*W_MAT
K1_LDS = K1_TT + 6*16*144

def WT(kind=""):
    for o in OPT:
        if kind and o.startswith(f"wt{kind}="): return " " + o.split("=")[1].replace("+", " ")
    for o in OPT:
        if o.startswith("wt="): return " " + o[3:].replace("+", " ") if o[3:] != "none" else ""
    return " sc1"

def lds_rendezvous(tag, addr, n, vaddr, vtmp, vone):
    e(f"v_mov_b32 v{vaddr}, {addr}")
    e("s_mov_b64 exec, 1")
    e(f"ds_add_u32 v{vaddr}, v{vone}")
    e("s_mov_b64 exec, -1")
    lab(tag)
    e(f"ds_read_b32 v{vtmp}, v{vaddr}")
    e("s_waitcnt lgkmcnt(0)")
    e(f"v_readfirstlane_b32 s47, v{vtmp}")
    e("s_nop 0")
    e(f"s_cmp_lt_u32 s47, {n}")
    e(f"s_cbranch_scc1 {tag}")

def gen_k1():
    out.append(f".globl {PREP}")
    out.append(".p2align 8")
    out.append(f".type {PREP},@function")
    lab(PREP)
    e(f"s_cmp_ge_u32 s2, {NB}")
    e("s_cbranch_scc1 K1_done")
    stamp(0)
    load_kernargs()
    e("v_readfirstlane_b32 s33, v0")
    e("v_and_b32 v1, 63, v0")
    e("v_lshlrev_b32 v3, 2, v0")
    e("v_mov_b32 v20, 0")
    e("v_mov_b32 v57, 1")
    e("s_lshr_b32 s33, s33, 6")
    e("s_cmp_ge_u32 s33, 10")
    e("s_cbranch_scc1 K1_tables")
    ldf = " nt" if "ntld" in OPT else ""
    e("s_mul_i32 s28, s2, 10240")
    e("v_lshl_add_u32 v58, v0, 4, s28")
    e("s_lshl_b32 s29, s28, 1")
    e("v_lshl_add_u32 v59, v0, 5, s29")
    e(f"ds_write_b32 v3, v20 offset:{K1_HIST}")
    e("s_waitcnt lgkmcnt(0)")
    e(f"global_load_dwordx4 v[4:7], v58, s[10:11]{ldf}")
    e(f"global_load_dwordx4 v[8:11], v58, s[8:9]{ldf}")
    e(f"global_load_dwordx4 v[12:15], v59, s[6:7]{ldf}")
    e(f"global_load_dwordx4 v[16:19], v59, s[6:7] offset:16{ldf}")
    e("s_mov_b32 s30, 52429")
    e("s_movk_i32 s31, -40")
    e("s_barrier")
    e("s_waitcnt vmcnt(3)")
    stamp(1)
    for i in range(4):
        e(f"v_mul_u32_u24 v{20+i}, s30, v{4+i}")
    for i in range(4):
        e(f"v_lshrrev_b32 v{20+i}, 21, v{20+i}")
    for i in range(4):
        e(f"v_mad_i32_i24 v{28+i}, v{20+i}, s31, v{4+i}")
    for i in range(4):
        e(f"v_lshlrev_b32 v{20+i}, 2, v{20+i}")
    for i in range(4):
        e(f"ds_add_rtn_u32 v{24+i}, v{20+i}, v57 offset:{K1_HIST}")
    e("v_lshlrev_b32 v32, 4, v1")
    e("s_waitcnt lgkmcnt(0)")
    lds_rendezvous("K1_sync_hist", K1_SYNC + 4, 10, 33, 34, 57)
    stamp(2)
    e(f"ds_read_b128 v[36:39], v32 offset:{K1_HIST}")
    e("s_waitcnt vmcnt(2)")
    for i in range(4):
        e(f"v_lshlrev_b32 v{8+i}, 8, v{8+i}")
    for i in range(4):
        e(f"v_lshl_or_b32 v{28+i}, v{28+i}, 26, v{8+i}")
    e("s_waitcnt lgkmcnt(0)")
    e("v_add_u32 v40, v36, v37")
    e("v_add_u32 v41, v40, v38")
    e("v_add_u32 v42, v41, v39")
    e("v_mov_b32 v43, v42")
    dpp_scan(43)
    e("v_sub_u32 v44, v43, v42")
    e("v_add_u32 v45, v44, v36")
    e("v_add_u32 v46, v44, v40")
    e("v_add_u32 v47, v44, v41")
    e(f"ds_write_b128 v32, v[44:47] offset:{K1_OFF}")
    for i in range(4):
        e(f"ds_read_b32 v{52+i}, v{20+i} offset:{K1_OFF}")
    e("s_cmp_lg_u32 s33, 0")
    e("s_cbranch_scc1 K1_notab")
    for k in range(4):
        e(f"v_mul_u32_u24 v{48+k}, 12, v{44+k}")
    for k in range(4):
        e(f"v_lshl_or_b32 v{48+k}, v{36+k}, 16, v{48+k}")
    e("s_lshl_b32 s34, s2, 10")
    e("v_add_u32 v33, s34, v32")
    add64(36, 26, WS_TAB)
    e(f"global_store_dwordx4 v33, v[48:51], s[36:37]{WT()}")
    e("s_cmp_ge_u32 s2, 6")
    e("s_cbranch_scc1 K1_notab")
    for k in range(4):
        e(f"v_mov_b32 v{48+k}, 0")
    e(f"v_add_u32 v33, {NB*1024}, v33")
    e(f"global_store_dwordx4 v33, v[48:51], s[36:37]{WT()}")
    lab("K1_notab")
    e("s_waitcnt lgkmcnt(0)")
    for i in range(4):
        e(f"v_add_u32 v{52+i}, v{52+i}, v{24+i}")
    for i in range(4):
        e(f"v_mul_u32_u24 v{52+i}, 12, v{52+i}")
    e("s_cmp_lg_u32 s33, 0")
    e("s_cbranch_scc1 K1_attr_all")
    e("s_cmp_lt_u32 s2, 6")
    e("s_cbranch_scc1 K1_attr_two")
    e("s_waitcnt vmcnt(1)")
    e("s_branch K1_attr_ready")
    lab("K1_attr_two")
    e("s_waitcnt vmcnt(2)")
    e("s_branch K1_attr_ready")
    lab("K1_attr_all")
    e("s_waitcnt vmcnt(0)")
    lab("K1_attr_ready")
    for i in range(4):
        e(f"ds_write2_b32 v{52+i}, v{12+2*i}, v{13+2*i} offset0:0 offset1:1")
        e(f"ds_write_b32 v{52+i}, v{28+i} offset:8")
    e("s_mul_i32 s34, s2, %d" % REC_STRIDE)
    add64(38, 26, WS_REC)
    e("s_add_u32 s38, s38, s34")
    e("s_addc_u32 s39, s39, 0")
    add64(40, 38, 10240)
    add64(42, 38, 20480)
    e("v_lshlrev_b32 v3, 4, v0")
    e("s_waitcnt lgkmcnt(0)")
    lds_rendezvous("K1_sync_stage", K1_SYNC, 10, 33, 34, 57)
    stamp(3)
    e("ds_read_b128 v[4:7], v3")
    e("ds_read_b128 v[8:11], v3 offset:10240")
    e("ds_read_b128 v[12:15], v3 offset:20480")
    e("s_waitcnt lgkmcnt(2)")
    if "norec" not in OPT: e(f"global_store_dwordx4 v3, v[4:7], s[38:39]{WT('r')}")
    e("s_waitcnt lgkmcnt(1)")
    if "norec" not in OPT: e(f"global_store_dwordx4 v3, v[8:11], s[40:41]{WT('r')}")
    e("s_waitcnt lgkmcnt(0)")
    if "norec" not in OPT: e(f"global_store_dwordx4 v3, v[12:15], s[42:43]{WT('r')}")
    stamp(4)
    if STAMPS:
        e("s_waitcnt vmcnt(0)")
        stamp(5)
    stamp_store(6, 33, WS_STAMP + 0x100000)
    e("s_endpgm")
    lab("K1_tables")
    if "notprio" not in OPT: e("s_setprio 3")
    e("s_sub_u32 s34, s33, 10")
    e("s_and_b32 s35, s34, 1")
    e(f"s_mul_i32 s43, s34, {16*144}")
    e(f"s_add_u32 s43, s43, {K1_TT}")
    e("s_lshr_b32 s34, s34, 1")
    e("s_mul_i32 s36, s2, 40")
    e("s_lshl_b32 s37, s34, 4")
    e("s_add_u32 s36, s36, s37")
    e("v_and_b32 v2, 15, v1")
    e("v_lshrrev_b32 v3, 4, v1")
    e("v_add_u32 v60, s36, v2")
    e(f"v_min_u32 v59, {N_NODES-1}, v60")
    e("v_lshlrev_b32 v59, 7, v59")
    e("v_lshl_add_u32 v59, v3, 4, v59")
    e("s_sub_u32 s37, s33, 10")
    e("s_cmp_ge_u32 s37, 3")
    e("s_cselect_b32 s44, 1, 0")
    e("s_mul_i32 s45, s44, 192")
    e("s_add_u32 s45, s45, 640")
    e("v_subrev_u32 v60, s45, v0")
    e("v_lshlrev_b32 v61, 4, v60")
    e("v_lshrrev_b32 v62, 3, v60")
    e(f"v_mul_u32_u24 v62, {W_PITCH}, v62")
    e("v_and_b32 v63, 7, v60")
    e("v_lshl_add_u32 v62, v63, 4, v62")
    e(f"s_mul_i32 s45, s44, {W_MAT}")
    e(f"s_add_u32 s45, s45, {K1_W}")
    e("v_add_u32 v62, s45, v62")
    e("s_mul_i32 s45, s44, 3")
    e("s_sub_u32 s46, s37, s45")
    e("s_waitcnt lgkmcnt(0)")
    e("s_cmp_eq_u32 s44, 0")
    e("s_cselect_b32 s44, s14, s20")
    e("s_cselect_b32 s45, s15, s21")
    e("global_load_dwordx4 v[20:23], v59, s[4:5]")
    e("global_load_dwordx4 v[24:27], v59, s[4:5] offset:64")
    e("global_load_dwordx4 v[40:43], v61, s[44:45]")
    e("global_load_dwordx4 v[44:47], v61, s[44:45] offset:3072")
    e("s_cmp_eq_u32 s46, 2")
    e("s_cbranch_scc1 K1_w2")
    e("v_add_u32 v61, 0x1800, v61")
    e("global_load_dwordx4 v[48:51], v61, s[44:45]")
    lab("K1_w2")
    e("s_sub_u32 s47, s33, 10")
    e("s_xor_b32 s48, s2, 1")
    e("s_or_b32 s48, s48, s47")
    e("s_cmp_lg_u32 s48, 0")
    e("s_cbranch_scc1 K1_no_wcl")
    e("v_lshlrev_b32 v14, 1, v1")
    for c in range(4):
        e(f"global_load_ushort v{10+c}, v14, s[16:17] offset:{128*c}")
    lab("K1_no_wcl")
    e("s_barrier")
    e("v_lshrrev_b32 v4, 2, v2")
    e("v_lshl_add_u32 v4, v3, 3, v4")
    e(f"v_mul_u32_u24 v4, {W_PITCH}, v4")
    e("v_and_b32 v63, 3, v2")
    e("v_lshl_add_u32 v4, v63, 3, v4")
    e("s_lshl_b32 s37, s35, 6")
    e(f"s_add_u32 s37, s37, {K1_W}")
    e("v_add_u32 v4, s37, v4")
    e("v_mul_u32_u24 v5, 144, v2")
    e("v_lshl_add_u32 v5, v3, 4, v5")
    e("v_add_u32 v5, s43, v5")
    e("v_lshrrev_b32 v8, 3, v1")
    e("v_and_b32 v9, 7, v1")
    e("v_mul_u32_u24 v6, 144, v8")
    e("v_lshl_add_u32 v6, v9, 4, v6")
    e("v_add_u32 v6, s43, v6")
    e("v_add_u32 v7, s36, v8")
    e("v_lshlrev_b32 v7, 8, v7")
    e("v_lshl_add_u32 v7, v9, 4, v7")
    e("s_lshl_b32 s37, s35, 7")
    e("v_add_u32 v7, s37, v7")
    e(f"s_mov_b32 s40, {NEG_L2E:#x}")
    e("s_brev_b32 s41, 1")
    e("s_mov_b32 s42, 0x7fff0000")
    e("s_waitcnt vmcnt(0)")
    e("s_cmp_lg_u32 s48, 0")
    e("s_cbranch_scc1 K1_no_wcp")
    e("v_lshlrev_b32 v16, 3, v1")
    add64(50, 26, WS_WCP)
    for c in range(4):
        e(f"v_lshlrev_b32 v{10+c}, 16, v{10+c}")
    for c in range(4):
        e(f"v_mul_f32 v{10+c}, s40, v{10+c}")
    e("v_cvt_pk_bf16_f32 v14, v10, v11")
    e("v_cvt_pk_bf16_f32 v15, v12, v13")
    e(f"global_store_dwordx2 v16, v[14:15], s[50:51]{WT()}")
    lab("K1_no_wcp")
    e("ds_write_b128 v62, v[40:43]")
    e(f"ds_write_b128 v62, v[44:47] offset:{24*W_PITCH}")
    e("s_cmp_eq_u32 s46, 2")
    e("s_cbranch_scc1 K1_w2w")
    e(f"ds_write_b128 v62, v[48:51] offset:{48*W_PITCH}")
    lab("K1_w2w")
    e("s_waitcnt lgkmcnt(0)")
    stamp(1)
    lds_rendezvous("K1_sync_w", K1_SYNC + 8, 6, 8, 9, 57)
    stamp(2)
    WB, DB = 28, 64
    def wreg(ft, mp, ks): return WB + 16*ft + 8*mp + 4*ks
    def wreads(ft):
        for mp in range(2):
            for ks in range(2):
                for half in range(2):
                    r = wreg(ft, mp, ks) + 2*half
                    off = mp*W_MAT + (32*ks + 4*half)*W_PITCH + ft*32
                    e(f"ds_read_b64_tr_b16 v[{r}:{r+1}], v4 offset:{off}")
    def mfmas(ft):
        d1, d2 = DB + 8*ft, DB + 8*ft + 4
        e(f"v_mfma_f32_16x16x32_bf16 v[{d1}:{d1+3}], v[{wreg(ft,0,0)}:{wreg(ft,0,0)+3}], v[20:23], 0")
        e(f"v_mfma_f32_16x16x32_bf16 v[{d2}:{d2+3}], v[{wreg(ft,1,0)}:{wreg(ft,1,0)+3}], v[20:23], 0")
        e(f"v_mfma_f32_16x16x32_bf16 v[{d1}:{d1+3}], v[{wreg(ft,0,1)}:{wreg(ft,0,1)+3}], v[24:27], v[{d1}:{d1+3}]")
        e(f"v_mfma_f32_16x16x32_bf16 v[{d2}:{d2+3}], v[{wreg(ft,1,1)}:{wreg(ft,1,1)+3}], v[24:27], v[{d2}:{d2+3}]")
    wreads(0)
    e("s_waitcnt lgkmcnt(0)")
    wreads(1)
    mfmas(0)
    e("s_waitcnt lgkmcnt(0)")
    mfmas(1)
    nop(8)
    stamp(3)
    for ft in range(2):
        for r in range(4):
            e(f"v_mul_f32 v{DB+8*ft+r}, s40, v{DB+8*ft+r}")
    for ft in range(2):
        b = DB + 8*ft
        e(f"v_cvt_pk_bf16_f32 v{44+2*ft}, v{b}, v{b+1}")
        e(f"v_cvt_pk_bf16_f32 v{45+2*ft}, v{b+2}, v{b+3}")
    for ft in range(2):
        b = DB + 8*ft
        e(f"v_and_b32 v{b}, 0xffff, v{44+2*ft}")
        e(f"v_lshrrev_b32 v{b+1}, 16, v{44+2*ft}")
        e(f"v_and_b32 v{b+2}, 0xffff, v{45+2*ft}")
        e(f"v_lshrrev_b32 v{b+3}, 16, v{45+2*ft}")
    el = [(DB+8*ft+r, DB+8*ft+4+r, 28+4*ft+r, 48+4*ft+r) for ft in range(2) for r in range(4)]
    for lo, hv, o, t in el: e(f"v_and_b32 v{t}, 0x7fffffff, v{hv}")
    for lo, hv, o, t in el: e(f"v_add_u32 v{t}, 0x8000, v{t}")
    for lo, hv, o, t in el: e(f"v_sub_u32_e64 v{t}, v{t}, v{lo} clamp")
    for lo, hv, o, t in el: e(f"v_and_or_b32 v{o}, v{hv}, s41, v{lo}")
    for lo, hv, o, t in el: e(f"v_bfi_b32 v{o}, s42, v{t}, v{o}")
    for ft in range(2):
        e(f"ds_write_b128 v5, v[{28+4*ft}:{31+4*ft}] offset:{ft*64}")
    e("s_waitcnt lgkmcnt(0)")
    e("ds_read_b128 v[36:39], v6")
    e(f"ds_read_b128 v[40:43], v6 offset:{8*144}")
    e("s_waitcnt lgkmcnt(1)")
    if "notab" not in OPT: e(f"global_store_dwordx4 v7, v[36:39], s[26:27]{WT('t')}")
    e("s_cmp_eq_u32 s34, 2")
    e("s_cbranch_scc1 K1_nost")
    e("s_waitcnt lgkmcnt(0)")
    if "notab" not in OPT: e(f"global_store_dwordx4 v7, v[40:43], s[26:27] offset:2048{WT('t')}")
    lab("K1_nost")
    stamp(4)
    if STAMPS:
        e("s_waitcnt vmcnt(0)")
        stamp(5)
    stamp_store(6, 33, WS_STAMP + 0x100000)
    e("s_cmp_lg_u32 s33, 10")
    e("s_cbranch_scc1 K1_done")
    e("s_cmp_lg_u32 s2, 0")
    e("s_cbranch_scc1 K1_done")
    e("v_lshlrev_b32 v2, 2, v1")
    e(f"v_add_u32 v2, {N_NODES*256:#x}, v2")
    e("v_mov_b32 v3, 0x7f00")
    e(f"global_store_dword v2, v3, s[26:27]{WT()}")
    lab("K1_done")
    e("s_endpgm")

ACCN, ACCD = 0, 14336
CNT, MAXC, CN, ZERO = 28672, 28928, 28944, 29008
ZERO_END = 29440
START = 29440
T2L = 29696
AA = 39936
GN = 50432
CAPP = 8160
IDX = GN + 2048
ATTR = IDX + 4*CAPP
K2_LDS = ATTR + 8*CAPP
WST = ATTR
DUMMY = N_NODES * 256
K2_GRID = 256

V_L, V_L4 = 1, 2
V_AI, V_AE, V_ESTR, V_EBASE = 3, 4, 5, 6
V_DB, V_DESC = 7, 8
V_X = 12
V_END, V_A = 14, 15
T = (16, 32, 48)
D = 64
SEL, EO, BE, ONE = 80, 84, 88, 92
DEN, NUM = 96, 98
V_M = 100
V_F = 104
V_LT2 = 106
V_PF = 108
V_XO = 112
K2_VGPRS = 128
S_T = 28
S_BIN, S_WAVE, S_P32, S_MAX = 37, 38, 39, 40
S_MASK = 44
S_K0, S_NBLK, S_K, S_CUR, S_D, S_DN, S_LOADED = 60, 61, 62, 63, 64, 65, 66
S_MIX, S_ROW, S_TMP, S_TMP2, S_PERM = 67, 68, 69, 70, 71
S_KC = 72
S_RNG = 76
S_EXM = 78

def slot(i, jj): return 16 + 4*(i + 4*jj)
def smask(i, jj): return S_MASK + 2*(i + 4*jj)

def issue_row_loads(tb):
    for v in range(tb, tb+16):
        if "noload" in OPT: e("s_nop 0")
        else: e(f"buffer_load_dword v{v}, v{v}, s[{S_T}:{S_T+3}], 0 offen")

def pf_kb():
    for o in OPT:
        if o.startswith("pf="): return int(o[3:])
    return 32

def warm_table(idle=False):
    kb = pf_kb()
    if kb == 0: return
    e("s_lshr_b32 s41, s2, 3")
    e("s_mul_i32 s41, s41, 81920")
    if idle:
        e(f"v_lshl_add_u32 v{V_PF+1}, v0, 6, s41")
        e(f"global_load_dword v{V_PF}, v{V_PF+1}, s[26:27]")
        e(f"v_add_u32 v{V_PF+1}, 0x4000, v{V_PF+1}")
        e(f"global_load_dword v{V_PF}, v{V_PF+1}, s[26:27]")
        return
    e(f"s_mul_i32 s{S_TMP}, s{S_WAVE}, {kb*64}")
    e(f"s_add_u32 s41, s41, s{S_TMP}")
    e(f"v_lshl_add_u32 v{V_PF+1}, v{V_L}, 6, s41")
    if kb < 64:
        m = (1 << kb) - 1
        e(f"s_mov_b32 exec_lo, {m & 0xffffffff:#x}")
        e(f"s_mov_b32 exec_hi, {m >> 32:#x}")
    e(f"global_load_dword v{V_PF}, v{V_PF+1}, s[26:27]")
    if kb < 64: e("s_mov_b64 exec, -1")

def x_rows_load(tag):
    e(f"s_cmp_lg_u32 s{S_P32}, 0")
    e(f"s_cbranch_scc1 {tag}")
    e(f"s_mul_i32 s41, s{S_BIN}, 5120")
    e(f"v_lshl_add_u32 v{V_A}, v0, 3, s41")
    e(f"v_min_u32 v{V_A}, {N_NODES*128-8}, v{V_A}")
    e(f"global_load_dwordx2 v[{V_X}:{V_X+1}], v{V_A}, s[4:5]")
    lab(tag)

def idx_reads(tb, blk):
    for q in range(4):
        e(f"ds_read_b128 v[{tb+4*q}:{tb+4*q+3}], v{V_AI} offset:{IDX+64*blk+16*q}")

def attr_read(blk):
    e(f"ds_read_b64 v[{EO}:{EO+1}], v{V_AE} offset:{128*blk}")

def node_rows_read(sdesc):
    for g in range(4):
        e(f"s_bfe_u32 s{S_TMP}, s{sdesc}, {(8 << 16) | (8*g):#x}")
        e(f"s_lshl_b32 s{S_TMP}, s{S_TMP}, 6")
        e(f"v_add_u32 v{V_A}, s{S_TMP}, v{V_LT2}")
        e(f"ds_read_b32 v{V_M+g}, v{V_A}")

def node_rows_pack():
    e(f"v_perm_b32 v{BE+2}, v{V_M+1}, v{V_M}, s{S_PERM}")
    e(f"v_perm_b32 v{BE+3}, v{V_M+3}, v{V_M+2}, s{S_PERM}")

def flush(tag):
    e(f"v_add_u32 v{V_A}, s{S_ROW}, v{V_L4}")
    e(f"v_add_f32 v{V_F}, v{DEN}, v{DEN+1}")
    e(f"v_add_f32 v{V_F+1}, v{NUM}, v{NUM+1}")
    e(f"s_cmp_lg_u32 s{S_P32}, 0")
    e(f"s_cbranch_scc1 {tag}_atomic")
    e(f"ds_write_b32 v{V_A}, v{V_F} offset:{ACCD}")
    e(f"ds_write_b32 v{V_A}, v{V_F+1} offset:{ACCN}")
    lab(f"{tag}_flushed")
    ATOMIC_SITES.append(tag)

ATOMIC_SITES = []
def atomic_flushes():
    for tag in ATOMIC_SITES:
        lab(f"{tag}_atomic")
        e(f"ds_add_f32 v{V_A}, v{V_F} offset:{ACCD}")
        e(f"ds_add_f32 v{V_A}, v{V_F+1} offset:{ACCN}")
        e(f"s_branch {tag}_flushed")

def acc_group(tp, g):
    for k in (2*g, 2*g+1):
        e(f"v_pk_add_f32 v[{DEN}:{DEN+1}], v[{DEN}:{DEN+1}], v[{D+2*k}:{D+2*k+1}]")
        e(f"v_pk_fma_f32 v[{NUM}:{NUM+1}], v[{D+2*k}:{D+2*k+1}], v[{tp+2*k}:{tp+2*k+1}], v[{NUM}:{NUM+1}]")

def acc_group_init(tp, g):
    a = 4*g
    e(f"v_pk_add_f32 v[{DEN}:{DEN+1}], v[{D+a}:{D+a+1}], v[{D+a+2}:{D+a+3}]")
    e(f"v_pk_mul_f32 v[{NUM}:{NUM+1}], v[{D+a}:{D+a+1}], v[{tp+a}:{tp+a+1}]")
    e(f"v_pk_fma_f32 v[{NUM}:{NUM+1}], v[{D+a+2}:{D+a+3}], v[{tp+a+2}:{tp+a+3}], v[{NUM}:{NUM+1}]")

def body_shl(P, main):
    tp, tr = T[P], T[(P+2) % 3]
    tag = f"K2_{'m' if main else 't'}{P}"
    lab(tag)
    if not main:
        e(f"s_add_u32 s{S_TMP}, s{S_K}, 1")
        e(f"s_cmp_eq_u32 s{S_TMP}, s{S_NBLK}")
        e(f"s_cbranch_scc1 {tag}_p0")
        e("s_setprio 1")
        e(f"s_branch {tag}_pd")
        lab(f"{tag}_p0")
        e("s_setprio 0")
        lab(f"{tag}_pd")
    e(f"s_add_u32 s{S_K}, s{S_K}, 1")
    if main:
        idx_reads(tr, P+2)
        if P == 2: e(f"v_add_u32 v{V_AI}, 0xc0, v{V_AI}")
        e("s_waitcnt lgkmcnt(0)")
        issue_row_loads(tr)
        e("s_waitcnt vmcnt(32)")
    else:
        e("s_waitcnt vmcnt(0) lgkmcnt(0)")
    for v in range(16):
        e(f"v_lshlrev_b32 v{D+v}, 16, v{tp+v}")
    nop(2)
    e(f"v_mfma_f32_32x32x16_bf16 v[{D}:{D+15}], v[{EO}:{EO+3}], v[{BE}:{BE+3}], v[{D}:{D+15}]")
    attr_read(P+1)
    if P == 2: e(f"v_add_u32 v{V_AE}, v{V_ESTR}, v{V_AE}")
    e(f"v_readlane_b32 s{S_DN}, v{V_DB}, s{S_K}")
    e(f"s_mov_b32 s{S_MIX}, 0")
    e(f"s_cmp_eq_u32 s{S_DN}, s{S_LOADED}")
    e(f"s_cbranch_scc0 {tag}_reload")
    lab(f"{tag}_loaded")
    nop(8)
    for v in range(16):
        e(f"v_exp_f32 v{D+v}, v{D+v}")
    nop(2)
    e(f"v_mfma_f32_32x32x8_bf16 v[{D}:{D+15}], v[{ONE}:{ONE+1}], v[{ONE}:{ONE+1}], v[{D}:{D+15}]")
    e(f"s_cmp_lg_u32 s{S_MIX}, 0")
    e(f"s_cbranch_scc1 {tag}_pack")
    lab(f"{tag}_packed")
    e(f"s_and_b32 s{S_TMP}, s{S_D}, 0xff")
    e(f"s_mul_i32 s{S_TMP}, s{S_TMP}, 0x01010101")
    e(f"s_and_b32 s{S_TMP2}, s{S_D}, 0xff")
    e(f"s_xor_b32 s{S_TMP}, s{S_TMP}, s{S_D}")
    e(f"s_xor_b32 s{S_TMP2}, s{S_TMP2}, s{S_CUR}")
    e(f"s_or_b32 s{S_TMP}, s{S_TMP}, s{S_TMP2}")
    nop(4)
    for v in range(16):
        e(f"v_rcp_f32 v{D+v}, v{D+v}")
    e(f"s_cbranch_scc1 {tag}_slow")
    for g in range(4): acc_group(tp, g)
    lab(f"{tag}_next")
    e(f"s_mov_b32 s{S_D}, s{S_DN}")
    nP = (P+1) % 3
    if main:
        e(f"s_add_u32 s{S_TMP}, s{S_K}, 2")
        e(f"s_cmp_lt_u32 s{S_TMP}, s{S_NBLK}")
        e(f"s_cbranch_scc0 K2_t{nP}")
        if P == 2:
            e(f"s_cmp_lt_u32 s{S_K}, 6")
            e("s_cbranch_scc1 K2_m0")
            e("s_setprio 2")
            e("s_branch K2_m0")
    else:
        e(f"s_cmp_lt_u32 s{S_K}, s{S_NBLK}")
        e("s_cbranch_scc0 K2_range_end")
        if P == 2: e("s_branch K2_t0")

def body(P, main):
    tp, tr = T[P], T[(P+2) % 3]
    tag = f"K2_{'m' if main else 't'}{P}"
    lab(tag)
    if "noprio" not in OPT and not main:
        if "prioA" not in OPT:
            e(f"s_add_u32 s{S_TMP}, s{S_K}, 1")
            e(f"s_cmp_eq_u32 s{S_TMP}, s{S_NBLK}")
            e(f"s_cbranch_scc1 {tag}_p0")
            e("s_setprio 1")
            e(f"s_branch {tag}_pd")
            lab(f"{tag}_p0")
            e("s_setprio 0")
            lab(f"{tag}_pd")
        else:
            e("s_setprio 0")
    e("s_waitcnt lgkmcnt(0)")
    shl = "shl" in OPT
    if "nomfma" not in OPT and not shl: e(f"v_mfma_f32_32x32x16_bf16 v[{D}:{D+15}], v[{EO}:{EO+3}], v[{BE}:{BE+3}], 0")
    e(f"s_add_u32 s{S_K}, s{S_K}, 1")
    if main and "nolds" not in OPT: idx_reads(tr, P+2)
    if "nolds" not in OPT: attr_read(P+1)
    if P == 2:
        if main: e(f"v_add_u32 v{V_AI}, 0xc0, v{V_AI}")
        e(f"v_add_u32 v{V_AE}, v{V_ESTR}, v{V_AE}")
    e(f"v_readlane_b32 s{S_DN}, v{V_DB}, s{S_K}")
    e(f"s_mov_b32 s{S_MIX}, 0")
    e(f"s_cmp_eq_u32 s{S_DN}, s{S_LOADED}")
    if "noreload" not in OPT: e(f"s_cbranch_scc0 {tag}_reload")
    lab(f"{tag}_loaded")
    early = "early" in OPT
    if main and early:
        e("s_waitcnt lgkmcnt(1)")
        issue_row_loads(tr)
        e("s_waitcnt vmcnt(32)")
    elif main:
        e("s_waitcnt vmcnt(16)")
    else:
        nop(4)
        e("s_waitcnt vmcnt(0)")
    for q in range(4 if "nomfma" not in OPT else 0):
        e(f"v_mfma_f32_16x16x32_bf16 v[{D+4*q}:{D+4*q+3}], v[{SEL}:{SEL+3}], v[{tp+4*q}:{tp+4*q+3}], v[{D+4*q}:{D+4*q+3}]")
    if main and not early:
        e("s_waitcnt lgkmcnt(1)")
        issue_row_loads(tr)
    else:
        nop(8)
    for v in range(16):
        if "novalu" not in OPT: e(f"v_exp_f32 v{D+v}, v{D+v}")
    if "one=pk" not in OPT: nop(2)
    if "one=pk" in OPT:
        for k in range(8):
            e(f"v_pk_add_f32 v[{D+2*k}:{D+2*k+1}], v[{D+2*k}:{D+2*k+1}], 1.0 op_sel_hi:[1,0]")
    elif "nomfma" not in OPT:
        e(f"v_mfma_f32_32x32x8_bf16 v[{D}:{D+15}], v[{ONE}:{ONE+1}], v[{ONE}:{ONE+1}], v[{D}:{D+15}]")
    e(f"s_cmp_lg_u32 s{S_MIX}, 0")
    e(f"s_cbranch_scc1 {tag}_pack")
    lab(f"{tag}_packed")
    e(f"s_and_b32 s{S_TMP}, s{S_D}, 0xff")
    e(f"s_mul_i32 s{S_TMP}, s{S_TMP}, 0x01010101")
    e(f"s_and_b32 s{S_TMP2}, s{S_D}, 0xff")
    e(f"s_xor_b32 s{S_TMP}, s{S_TMP}, s{S_D}")
    e(f"s_xor_b32 s{S_TMP2}, s{S_TMP2}, s{S_CUR}")
    e(f"s_or_b32 s{S_TMP}, s{S_TMP}, s{S_TMP2}")
    if "one=pk" not in OPT: nop(4)
    for v in range(16):
        if "novalu" not in OPT: e(f"v_rcp_f32 v{D+v}, v{D+v}")
    if "noslow" not in OPT: e(f"s_cbranch_scc1 {tag}_slow")
    if "novalu" not in OPT:
        for g in range(4): acc_group(tp, g)
    lab(f"{tag}_next")
    e(f"s_mov_b32 s{S_D}, s{S_DN}")
    nP = (P+1) % 3
    if main:
        e(f"s_add_u32 s{S_TMP}, s{S_K}, 2")
        e(f"s_cmp_lt_u32 s{S_TMP}, s{S_NBLK}")
        e(f"s_cbranch_scc0 K2_t{nP}")
        if P == 2:
            if "prioA" not in OPT and "prioB" not in OPT and "noprio" not in OPT:
                thr = ([int(o[4:]) for o in OPT if o.startswith("thr=")] + [6])[0]
                e(f"s_cmp_lt_u32 s{S_K}, {thr}")
                e("s_cbranch_scc1 K2_m0")
                e("s_setprio 2")
            elif "noprio" not in OPT and "prioB" not in OPT:
                e(f"s_cmp_lt_u32 s{S_K}, 6")
                e("s_cbranch_scc0 K2_prio1")
                e("s_setprio 2")
                e("s_branch K2_m0")
                lab("K2_prio1")
                e("s_setprio 1")
            e("s_branch K2_m0")
    else:
        e(f"s_cmp_lt_u32 s{S_K}, s{S_NBLK}")
        e("s_cbranch_scc0 K2_range_end")
        if P == 2: e("s_branch K2_t0")

def body_outlined(P, main):
    tp = T[P]
    tag = f"K2_{'m' if main else 't'}{P}"
    lab(f"{tag}_reload")
    e(f"s_mov_b32 s{S_LOADED}, s{S_DN}")
    e(f"s_and_b32 s{S_TMP}, s{S_DN}, 0xff")
    e(f"s_mul_i32 s{S_TMP2}, s{S_TMP}, 0x01010101")
    e(f"s_cmp_eq_u32 s{S_TMP2}, s{S_DN}")
    e(f"s_cbranch_scc0 {tag}_mixed")
    e(f"s_lshl_b32 s{S_TMP}, s{S_TMP}, 6")
    e(f"v_add_u32 v{V_A}, s{S_TMP}, v{V_LT2}")
    e(f"ds_read2_b32 v[{BE+2}:{BE+3}], v{V_A} offset0:0 offset1:0")
    e(f"s_branch {tag}_loaded")
    lab(f"{tag}_mixed")
    node_rows_read(S_DN)
    e(f"s_mov_b32 s{S_MIX}, 1")
    e(f"s_branch {tag}_loaded")
    lab(f"{tag}_pack")
    e("s_waitcnt lgkmcnt(0)")
    node_rows_pack()
    e(f"s_branch {tag}_packed")
    lab(f"{tag}_slow")
    for g in range(4):
        e(f"s_bfe_u32 s{S_TMP2}, s{S_D}, {(8 << 16) | (8*g):#x}")
        e(f"s_cmp_eq_u32 s{S_TMP2}, s{S_CUR}")
        e(f"s_cbranch_scc0 {tag}_new{g}")
        acc_group(tp, g)
        lab(f"{tag}_g{g}")
    e(f"s_branch {tag}_next")
    for g in range(4):
        lab(f"{tag}_new{g}")
        flush(f"{tag}_f{g}")
        e(f"s_mov_b32 s{S_CUR}, s{S_TMP2}")
        e(f"s_lshl_b32 s{S_ROW}, s{S_TMP2}, 6")
        acc_group_init(tp, g)
        e(f"s_branch {tag}_g{g}")

def gen_k2():
    out.append(f".globl {MAIN}")
    out.append(".p2align 8")
    out.append(f".type {MAIN},@function")
    lab(MAIN)
    e(f"s_cmp_ge_u32 s2, {K2_GRID}")
    e("s_cbranch_scc1 K2_done")
    e("s_and_b32 s3, s2, 7")
    e("s_lshl_b32 s3, s3, 5")
    e(f"s_lshr_b32 s{S_BIN}, s2, 3")
    e(f"s_add_u32 s{S_BIN}, s{S_BIN}, s3")
    stamp(0)
    load_kernargs()
    e(f"s_cmp_ge_u32 s{S_BIN}, {NB}")
    e("s_cbranch_scc1 K2_idle")
    e(f"v_readfirstlane_b32 s{S_WAVE}, v0")
    e(f"v_and_b32 v{V_L}, 63, v0")
    e(f"v_lshlrev_b32 v{V_L4}, 2, v{V_L}")
    e(f"s_lshr_b32 s{S_WAVE}, s{S_WAVE}, 6")
    e(f"s_and_b32 s{S_RNG}, s{S_WAVE}, 3")
    e(f"s_lshl_b32 s{S_RNG}, s{S_RNG}, 2")
    e(f"s_lshr_b32 s41, s{S_WAVE}, 2")
    e(f"s_add_u32 s{S_RNG}, s{S_RNG}, s41")
    e(f"v_lshrrev_b32 v64, 4, v{V_L}")
    e(f"s_lshl_b32 s{S_TMP}, s{S_WAVE}, 2")
    e(f"v_add_u32 v64, s{S_TMP}, v64")
    e("v_lshlrev_b32 v64, 2, v64")
    e(f"s_lshl_b32 s41, s{S_BIN}, 2")
    e("v_lshl_add_u32 v65, v64, 10, s41")
    e(f"v_lshlrev_b32 v66, 1, v{V_L}")
    e("s_waitcnt lgkmcnt(0)")
    add64(32, 26, WS_TAB)
    for i in range(4):
        e(f"global_load_dword v{V_DESC+i}, v65, s[32:33] offset:{1024*i}")
    GW = 12 if "gw12" in OPT else 6
    GSH = 1 if GW == 6 else 2
    if "noeb" not in OPT: e("s_barrier")
    e(f"s_cmp_lt_u32 s{S_WAVE}, 8")
    e("s_cselect_b32 s42, s12, s18")
    e("s_cselect_b32 s43, s13, s19")
    e("v_and_b32 v67, 0x1ff, v0")
    e("v_lshlrev_b32 v68, 4, v67")
    e("global_load_dwordx4 v[68:71], v68, s[42:43]")
    e(f"s_cmp_ge_u32 s{S_WAVE}, {GW}")
    e("s_cbranch_scc1 K2_no_xop")
    e(f"s_lshr_b32 s41, s{S_WAVE}, {GSH}")
    e("s_lshl_b32 s41, s41, 4")
    e(f"s_mul_i32 s{S_TMP}, s{S_BIN}, 40")
    e(f"s_add_u32 s41, s41, s{S_TMP}")
    e(f"v_and_b32 v65, 15, v{V_L}")
    e("v_add_u32 v65, s41, v65")
    e(f"v_min_u32 v65, {N_NODES-1}, v65")
    e("v_lshlrev_b32 v65, 7, v65")
    e(f"v_lshrrev_b32 v67, 4, v{V_L}")
    e("v_lshl_add_u32 v65, v67, 4, v65")
    e(f"global_load_dwordx4 v[{V_XO}:{V_XO+3}], v65, s[4:5]")
    e(f"global_load_dwordx4 v[{V_XO+4}:{V_XO+7}], v65, s[4:5] offset:64")
    lab("K2_no_xop")
    add64(42, 26, WS_WCP)
    e(f"v_lshlrev_b32 v65, 3, v{V_L}")
    e(f"global_load_dwordx2 v[{BE}:{BE+1}], v65, s[42:43]")
    add64(34, 26, WS_REC)
    e(f"s_mov_b32 s{S_T}, s26")
    e(f"s_and_b32 s{S_T+1}, s27, 0xffff")
    e(f"s_or_b32 s{S_T+1}, s{S_T+1}, 0x40000")
    e(f"s_mov_b32 s{S_T+2}, {(N_NODES+1)*256}")
    e(f"s_mov_b32 s{S_T+3}, 0x00800000")
    for r in range(76, 80):
        e(f"v_mov_b32 v{r}, 0")
    e("v_lshlrev_b32 v67, 4, v0")
    e("ds_write_b128 v67, v[76:79]")
    e(f"v_cmp_gt_u32 vcc, {(ZERO_END-16384)//16}, v0")
    e("s_mov_b64 exec, vcc")
    e("ds_write_b128 v67, v[76:79] offset:16384")
    e("s_mov_b64 exec, -1")
    e(f"v_and_b32 v16, 31, v{V_L}")
    e(f"v_lshrrev_b32 v17, 5, v{V_L}")
    e("v_bfe_u32 v18, v16, 2, 1")
    e("v_lshrrev_b32 v19, 3, v16")
    e("v_and_b32 v16, 3, v16")
    e("v_lshl_add_u32 v16, v19, 2, v16")
    e("v_cmp_eq_u32 vcc, v17, v18")
    e("v_mov_b32 v20, 0x80")
    e("v_lshlrev_b32 v16, 3, v16")
    e(f"v_cndmask_b32 v{V_ESTR}, 0, v20, vcc")
    e(f"v_add_u32 v16, {ATTR}, v16")
    e(f"v_mov_b32 v20, {ZERO}")
    e(f"v_cndmask_b32 v{V_EBASE}, v20, v16, vcc")
    e("v_and_b32 v21, 1, v19")
    e("v_lshlrev_b32 v21, 4, v21")
    e("v_mov_b32 v22, 0x3f80")
    e("v_lshlrev_b32 v21, v21, v22")
    e("v_cndmask_b32 v21, 0, v21, vcc")
    e("v_cmp_gt_u32 vcc, 2, v19")
    e(f"v_mov_b32 v{ONE+1}, 0")
    e(f"v_mov_b32 v{ONE+2}, 0")
    e(f"v_cndmask_b32 v{EO+2}, 0, v21, vcc")
    e(f"v_sub_u32 v{EO+3}, v21, v{EO+2}")
    e(f"v_cmp_gt_u32 vcc, 32, v{V_L}")
    e(f"v_mov_b32 v{ONE+3}, 0")
    e(f"v_add_u32 v{V_LT2}, {AA}, v{V_L4}")
    e(f"v_cndmask_b32 v{ONE}, 0, v22, vcc")
    e(f"v_bfe_u32 v16, v{V_L}, 2, 2")
    e(f"v_lshrrev_b32 v17, 4, v{V_L}")
    e(f"v_and_b32 v18, 3, v{V_L}")
    e("v_cmp_eq_u32 vcc, v16, v17")
    e("v_mov_b32 v19, 31")
    e(f"s_mov_b32 s{S_PERM}, 0x05040100")
    e("v_cndmask_b32 v18, v19, v18, vcc")
    e("v_lshlrev_b32 v18, v18, 1")
    for k in range(4):
        e(f"v_bfe_u32 v{SEL+k}, v18, {k}, 1")
    for k in range(4):
        e(f"v_mul_u32_u24 v{SEL+k}, v22, v{SEL+k}")
    e(f"s_mov_b32 s{S_P32}, 0")
    e("v_and_b32 v79, 0x1ff, v0")
    e("v_lshrrev_b32 v104, 3, v79")
    e(f"v_mul_u32_u24 v104, {W_PITCH}, v104")
    e("v_and_b32 v79, 7, v79")
    e("v_lshl_add_u32 v104, v79, 4, v104")
    e(f"s_lshr_b32 s41, s{S_WAVE}, 3")
    e(f"s_mul_i32 s41, s41, {W_MAT}")
    e(f"s_add_u32 s41, s41, {WST}")
    e("v_add_u32 v104, s41, v104")
    e(f"v_and_b32 v78, 15, v{V_L}")
    e(f"v_lshrrev_b32 v79, 4, v{V_L}")
    e("v_lshrrev_b32 v105, 2, v78")
    e("v_lshl_add_u32 v105, v79, 3, v105")
    e(f"v_mul_u32_u24 v105, {W_PITCH}, v105")
    e("v_and_b32 v77, 3, v78")
    e("v_lshl_add_u32 v105, v77, 3, v105")
    e(f"s_and_b32 s41, s{S_WAVE}, {(1 << GSH) - 1}")
    e(f"s_lshl_b32 s{S_TMP}, s41, {5 if GW == 12 else 6}")
    e(f"s_add_u32 s{S_TMP}, s{S_TMP}, {WST}")
    e(f"v_add_u32 v105, s{S_TMP}, v105")
    e(f"s_lshr_b32 s{S_TMP}, s{S_WAVE}, {GSH}")
    e(f"s_lshl_b32 s{S_TMP}, s{S_TMP}, 4")
    e("v_lshlrev_b32 v107, 2, v79")
    e(f"v_add_u32 v107, s{S_TMP}, v107")
    e(f"v_cmp_gt_u32 s[{S_EXM}:{S_EXM+1}], 40, v107")
    e("v_lshlrev_b32 v107, 8, v107")
    e("v_lshl_add_u32 v107, v78, 2, v107")
    e(f"s_lshl_b32 s41, s41, {6 if GW == 12 else 7}")
    e("v_add_u32 v107, s41, v107")

    def pass_addr():
        e(f"v_lshrrev_b32 v78, 4, v{V_L}")
        e(f"s_lshl_b32 s{S_TMP}, s{S_WAVE}, 2")
        e(f"v_add_u32 v78, s{S_TMP}, v78")
        e(f"v_mul_u32_u24 v78, {4*EPC}, v78")
        e(f"v_and_b32 v76, 15, v{V_L}")
        e(f"v_add_u32 v76, s{S_P32}, v76")
        e("v_add_u32 v78, v78, v76")
        e("v_mul_u32_u24 v100, 12, v78")
        for i in range(1, 4):
            e(f"v_add_u32 v{100+i}, {REC_STRIDE}, v{99+i}")
        e("v_add_u32 v77, 17, v76")
        e("v_lshlrev_b32 v77, 16, v77")
    pass_addr()
    e(f"s_cmp_ge_u32 s{S_WAVE}, {GW}")
    e("s_cbranch_scc1 K2_wdesc1")
    e("s_waitcnt vmcnt(4)")
    e("s_branch K2_wdesc")
    lab("K2_wdesc1")
    e("s_waitcnt vmcnt(2)")
    lab("K2_wdesc")
    stamp(1)

    lab("K2_pass")
    for i in range(4):
        m = smask(i, 0)
        e(f"v_cmp_lt_u32_sdwa s[{m}:{m+1}], v76, v{V_DESC+i} src0_sel:DWORD src1_sel:WORD_1")
    for i in range(4):
        e(f"v_add_u32_sdwa v{64+i}, v{V_DESC+i}, v{100+i} dst_sel:DWORD dst_unused:UNUSED_PAD src0_sel:WORD_0 src1_sel:DWORD")
    for i in range(4):
        r, m = slot(i, 0), smask(i, 0)
        e(f"s_mov_b64 exec, s[{m}:{m+1}]")
        e(f"global_load_dwordx3 v[{r}:{r+2}], v{64+i}, s[34:35]")
    e("s_mov_b64 exec, -1")
    e(f"v_max3_u32 v{V_DB}, v{V_DESC}, v{V_DESC+1}, v{V_DESC+2}")
    e(f"v_max_u32 v{V_DB}, v{V_DB}, v{V_DESC+3}")
    e(f"s_mov_b32 s{S_MIX}, 0")
    e(f"v_cmp_ge_u32 vcc, v{V_DB}, v77")
    e("s_cbranch_vccz K2_no_second")
    e("v_add_u32 v79, 16, v76")
    for i in range(4):
        m = smask(i, 1)
        e(f"v_cmp_lt_u32_sdwa s[{m}:{m+1}], v79, v{V_DESC+i} src0_sel:DWORD src1_sel:WORD_1")
    e(f"s_mov_b32 s{S_MIX}, 1")
    for i in range(4):
        r, m = slot(i, 1), smask(i, 1)
        e(f"s_mov_b64 exec, s[{m}:{m+1}]")
        e(f"global_load_dwordx3 v[{r}:{r+2}], v{64+i}, s[34:35] offset:192")
    e("s_mov_b64 exec, -1")
    lab("K2_no_second")
    e(f"s_cmp_lg_u32 s{S_P32}, 0")
    e("s_cbranch_scc1 K2_tables_done")
    fstamp(2)
    e(f"s_cmp_eq_u32 s{S_MIX}, 0")
    e("s_cbranch_scc1 K2_ww4")
    e("s_waitcnt vmcnt(9)")
    e("s_branch K2_ww")
    lab("K2_ww4")
    e("s_waitcnt vmcnt(5)")
    lab("K2_ww")
    fstamp(3)
    e("ds_write_b128 v104, v[68:71]")
    e(f"v_mov_b32 v68, 0")
    e(f"ds_write_b32 v{V_L4}, v68 offset:{AA + 40*256}")
    e("s_waitcnt lgkmcnt(0)")
    e("s_barrier")
    e(f"v_cmp_le_u32 vcc, 0x210000, v{V_DB}")
    e("s_cbranch_vccz K2_nomax")
    e(f"v_mov_b32 v79, {MAXC}")
    e(f"ds_max_u32 v79, v{V_DB}")
    lab("K2_nomax")
    fstamp(4)
    e(f"s_cmp_ge_u32 s{S_WAVE}, {GW}")
    e("s_cbranch_scc1 K2_tables_done")
    e(f"s_mov_b32 s{S_TMP}, {NEG_L2E:#x}")
    for ft in range(1 if GW == 12 else 2):
        for mp in range(2):
            for ks in range(2):
                for half in range(2):
                    r = 48 + 8*mp + 4*ks + 2*half
                    e(f"ds_read_b64_tr_b16 v[{r}:{r+1}], v105 offset:{mp*W_MAT + (32*ks + 4*half)*W_PITCH + 32*ft}")
        e("s_waitcnt lgkmcnt(0)")
        e(f"v_mfma_f32_16x16x32_bf16 v[120:123], v[{V_XO}:{V_XO+3}], v[48:51], 0")
        e(f"v_mfma_f32_16x16x32_bf16 v[124:127], v[{V_XO}:{V_XO+3}], v[56:59], 0")
        e(f"v_mfma_f32_16x16x32_bf16 v[120:123], v[{V_XO+4}:{V_XO+7}], v[52:55], v[120:123]")
        e(f"v_mfma_f32_16x16x32_bf16 v[124:127], v[{V_XO+4}:{V_XO+7}], v[60:63], v[124:127]")
        nop(8)
        for r in range(4):
            e(f"v_mul_f32 v{120+r}, s{S_TMP}, v{120+r}")
        for r in range(4):
            e(f"v_cvt_pk_bf16_f32 v{124+r}, v{120+r}, v{124+r}")
        for r in range(4):
            e(f"v_cvt_pk_bf16_f32 v{120+r}, v{120+r}, v{120+r}")
        e(f"s_mov_b64 exec, s[{S_EXM}:{S_EXM+1}]")
        for r in range(4):
            e(f"ds_write_b32 v107, v{124+r} offset:{T2L + 256*r + 64*ft}")
            e(f"ds_write_b32 v107, v{120+r} offset:{AA + 256*r + 64*ft}")
        e("s_mov_b64 exec, -1")
    lab("K2_tables_done")
    fstamp(5)

    def for_slots(fn, name):
        for i in range(4):
            m = smask(i, 0)
            e(f"s_mov_b64 exec, s[{m}:{m+1}]")
            fn(i, 0, slot(i, 0))
        e("s_mov_b64 exec, -1")
        e(f"s_cmp_eq_u32 s{S_MIX}, 0")
        e(f"s_cbranch_scc1 K2_{name}_skip")
        for i in range(4):
            m = smask(i, 1)
            e(f"s_mov_b64 exec, s[{m}:{m+1}]")
            fn(i, 1, slot(i, 1))
        e("s_mov_b64 exec, -1")
        lab(f"K2_{name}_skip")
    e("v_mov_b32 v78, 4")
    e("s_waitcnt vmcnt(0)")
    fstamp(6)
    stamp(2)
    def cnt_fn(i, jj, r):
        t = D + i + 4*jj
        e(f"v_lshrrev_b32 v{t}, 24, v{r+2}")
        e(f"ds_add_rtn_u32 v{r+3}, v{t}, v78 offset:{CNT}")
    for_slots(cnt_fn, "cnt")
    e("s_waitcnt lgkmcnt(0)")
    e("s_barrier")
    stamp(3)
    fstamp(7)
    gstamp(1)
    e(f"ds_read_b32 v76, v{V_L4} offset:{CNT}")
    e(f"v_mov_b32 v79, {MAXC}")
    e("ds_read_b32 v79, v79")
    e(f"s_cmp_lg_u32 s{S_P32}, 0")
    e("s_cbranch_scc1 K2_late_loaded")
    if "pflate" not in OPT: warm_table()
    lab("K2_late_loaded")
    e("s_waitcnt lgkmcnt(0)")
    e(f"v_readfirstlane_b32 s{S_MAX}, v79")
    e("v_add_u32 v77, 12, v76")
    e("v_and_b32 v77, -16, v77")
    e(f"v_mov_b32 v{V_END}, v77")
    e(f"s_lshr_b32 s{S_MAX}, s{S_MAX}, 16")
    dpp_scan(V_END)
    e(f"v_sub_u32 v75, v{V_END}, v77")
    e(f"ds_write_b32 v{V_L4}, v75 offset:{START}")
    def st_fn(i, jj, r):
        t = D + i + 4*jj
        e(f"ds_read_b32 v{T[2]+i+4*jj}, v{t} offset:{START}")
    for_slots(st_fn, "st")
    gstamp(2)
    e(f"v_readlane_b32 s{S_NBLK}, v{V_END}, 63")
    e(f"s_cmp_lt_u32 s{S_WAVE}, 12")
    e("s_cbranch_scc1 K2_nopad")
    e(f"v_mov_b32 v74, {DUMMY:#x}")
    e("v_mov_b32 v72, 0")
    e("v_mov_b32 v73, 0")
    e(f"s_cmp_eq_u32 s{S_WAVE}, 15")
    e("s_cbranch_scc1 K2_tailpad")
    e(f"s_sub_u32 s{S_TMP}, s{S_WAVE}, 12")
    e(f"s_lshl_b32 s{S_TMP}, s{S_TMP}, 2")
    e("v_add_u32 v75, v75, v76")
    e(f"v_add_u32 v75, s{S_TMP}, v75")
    e(f"v_cmp_lt_u32 vcc, v75, v{V_END}")
    e(f"s_mov_b32 s{S_TMP}, {ATTR}")
    e(f"v_lshl_add_u32 v78, v75, 1, s{S_TMP}")
    e("s_mov_b64 exec, vcc")
    e(f"ds_write_b32 v75, v74 offset:{IDX}")
    e("ds_write_b64 v78, v[72:73]")
    e("s_mov_b64 exec, -1")
    e("s_branch K2_nopad")
    lab("K2_tailpad")
    e(f"s_add_u32 s{S_TMP}, s{S_NBLK}, 63")
    e(f"s_and_b32 s{S_TMP}, s{S_TMP}, -64")
    e(f"v_add_u32 v75, s{S_NBLK}, v{V_L4}")
    e(f"v_cmp_gt_u32 vcc, s{S_TMP}, v75")
    e(f"s_mov_b32 s{S_TMP}, {ATTR}")
    e(f"v_lshl_add_u32 v78, v75, 1, s{S_TMP}")
    e("v_lshrrev_b32 v77, 4, v75")
    e("v_mov_b32 v76, 160")
    e("s_mov_b64 exec, vcc")
    e(f"ds_write_b32 v75, v74 offset:{IDX}")
    e("ds_write_b64 v78, v[72:73]")
    e(f"ds_write_b8 v77, v76 offset:{GN}")
    e("s_mov_b64 exec, -1")
    lab("K2_nopad")
    e("s_waitcnt lgkmcnt(0)")
    e(f"s_mov_b32 s{S_TMP2}, {ATTR}")
    def sc_fn(i, jj, r):
        t = D + i + 4*jj
        p = T[2] + i + 4*jj
        e(f"v_add_u32 v{p}, v{p}, v{r+3}")
        e(f"v_and_b32 v{r+2}, 0xffffff, v{r+2}")
        e(f"v_lshl_add_u32 v{r+3}, v{p}, 1, s{S_TMP2}")
        e(f"ds_write_b32 v{p}, v{r+2} offset:{IDX}")
        e(f"ds_write_b64 v{r+3}, v[{r}:{r+1}]")
        e(f"v_lshrrev_b32 v{p}, 4, v{p}")
        e(f"ds_write_b8 v{p}, v{t} offset:{GN}")
    gstamp(3)
    for_slots(sc_fn, "sc")
    gstamp(4)
    if "pflate" in OPT: warm_table()
    lab("K2_wc_done")
    e(f"s_add_u32 s{S_TMP}, s{S_NBLK}, 63")
    e(f"s_lshr_b32 s{S_TMP}, s{S_TMP}, 6")
    e(f"s_mul_i32 s{S_K0}, s{S_TMP}, s{S_RNG}")
    e(f"s_add_u32 s{S_NBLK}, s{S_K0}, s{S_TMP}")
    e(f"s_lshr_b32 s{S_K0}, s{S_K0}, 4")
    e(f"s_lshr_b32 s{S_NBLK}, s{S_NBLK}, 4")
    e(f"s_sub_u32 s{S_NBLK}, s{S_NBLK}, s{S_K0}")
    e(f"v_add_u32 v{V_A}, s{S_K0}, v{V_L}")
    e(f"v_lshlrev_b32 v{V_A}, 2, v{V_A}")
    e(f"s_lshl_b32 s{S_TMP}, s{S_K0}, 6")
    e(f"v_mov_b32 v{V_AI}, s{S_TMP}")
    e(f"v_mad_u32_u24 v{V_AE}, v{V_ESTR}, s{S_K0}, v{V_EBASE}")
    e(f"v_mul_u32_u24 v{V_ESTR}, 3, v{V_ESTR}")
    for r in (DEN, DEN+1, NUM, NUM+1):
        e(f"v_mov_b32 v{r}, 0")
    e(f"s_cmp_eq_u32 s{S_NBLK}, 0")
    e("s_waitcnt lgkmcnt(0)")
    gstamp(5)
    e("s_barrier")
    stamp(4)
    gstamp(6)
    if "noprio" not in OPT: e("s_setprio 3")
    e("s_cbranch_scc1 K2_empty_range")
    idx_reads(T[0], 0)
    idx_reads(T[1], 1)
    e(f"ds_read_b32 v{V_DB}, v{V_A} offset:{GN}")
    e(f"ds_read_b32 v{V_F}, v{V_A} offset:{GN-4}")
    attr_read(0)
    e("s_waitcnt lgkmcnt(7)")
    issue_row_loads(T[0])
    e("s_waitcnt lgkmcnt(0)")
    e(f"v_readlane_b32 s{S_D}, v{V_DB}, 0")
    node_rows_read(S_D)
    e(f"s_mov_b32 s{S_LOADED}, s{S_D}")
    e(f"s_and_b32 s{S_CUR}, s{S_D}, 0xff")
    e(f"s_lshl_b32 s{S_ROW}, s{S_CUR}, 6")
    e(f"s_cmp_lg_u32 s{S_P32}, 0")
    e("s_cbranch_scc1 K2_carry_done")
    e(f"v_readlane_b32 s{S_TMP2}, v{V_F}, 0")
    e(f"s_add_u32 s{S_MIX}, s{S_RNG}, 40")
    e(f"s_lshl_b32 s{S_MIX}, s{S_MIX}, 8")
    e(f"s_lshr_b32 s{S_TMP2}, s{S_TMP2}, 24")
    e(f"s_cmp_eq_u32 s{S_K0}, 0")
    e(f"s_cselect_b32 s{S_TMP2}, 0x100, s{S_TMP2}")
    e(f"s_cmp_eq_u32 s{S_TMP2}, s{S_CUR}")
    e(f"s_cselect_b32 s{S_ROW}, s{S_MIX}, s{S_ROW}")
    e(f"s_cselect_b32 s{S_TMP2}, s{S_CUR}, 0xff")
    e(f"s_lshl_b32 s{S_TMP}, s{S_RNG}, 2")
    e(f"v_mov_b32 v{V_A}, s{S_TMP}")
    e(f"v_mov_b32 v{V_F}, s{S_TMP2}")
    e(f"ds_write_b32 v{V_A}, v{V_F} offset:{CN}")
    lab("K2_carry_done")
    e(f"s_mov_b32 s{S_K}, 0")
    e("s_waitcnt lgkmcnt(0)")
    node_rows_pack()
    if "oneblk" in OPT: e("s_waitcnt vmcnt(0)")
    e(f"s_cmp_lt_u32 s{S_NBLK}, 2")
    e("s_cbranch_scc1 K2_one_block")
    issue_row_loads(T[1])
    lab("K2_one_block")
    x_rows_load("K2_xl1")
    gstamp(7)
    e(f"s_cmp_gt_u32 s{S_NBLK}, 2")
    e("s_cbranch_scc0 K2_t0")
    bodyf = body_shl if "shl" in OPT else body
    for P in range(3): bodyf(P, True)
    for P in range(3): bodyf(P, False)
    for P in range(3): body_outlined(P, True)
    for P in range(3): body_outlined(P, False)
    atomic_flushes()
    lab("K2_range_end")
    ATOMIC_SITES.clear()
    flush("K2_last")
    e("s_branch K2_main_done")
    lab("K2_empty_range")
    e(f"s_cmp_lg_u32 s{S_P32}, 0")
    e("s_cbranch_scc1 K2_main_done")
    x_rows_load("K2_xl2")
    e(f"s_lshl_b32 s{S_TMP}, s{S_RNG}, 2")
    e(f"v_mov_b32 v{V_A}, s{S_TMP}")
    e(f"v_mov_b32 v{V_F}, 0xff")
    e(f"ds_write_b32 v{V_A}, v{V_F} offset:{CN}")
    lab("K2_main_done")
    if "noprio" not in OPT: e("s_setprio 0")
    stamp(5)
    e(f"s_add_u32 s{S_P32}, s{S_P32}, 32")
    e(f"s_cmp_ge_u32 s{S_P32}, s{S_MAX}")
    e("s_cbranch_scc1 K2_final")
    e(f"s_cmp_lg_u32 s{S_WAVE}, 0")
    e("s_cbranch_scc1 K2_nozc")
    e("v_mov_b32 v76, 0")
    e(f"ds_write_b32 v{V_L4}, v76 offset:{CNT}")
    lab("K2_nozc")
    e(f"v_cmp_ne_u32 vcc, 0, v{V_ESTR}")
    e("v_mov_b32 v76, 0x80")
    nop(1)
    e(f"v_cndmask_b32 v{V_ESTR}, 0, v76, vcc")
    pass_addr()
    e("s_waitcnt lgkmcnt(0)")
    e("s_barrier")
    e("s_branch K2_pass")
    lab("K2_final")
    e("s_waitcnt vmcnt(0) lgkmcnt(0)")
    e("s_barrier")
    stamp(6)
    e(f"s_cmp_ge_u32 s{S_WAVE}, 10")
    e("s_cbranch_scc1 K2_end")
    e("v_lshlrev_b32 v67, 4, v0")
    e(f"ds_read_b128 v[16:19], v67 offset:{ACCN}")
    e(f"ds_read_b128 v[20:23], v67 offset:{ACCD}")
    e(f"ds_read_b128 v[24:27], v67 offset:{T2L}")
    e(f"v_and_b32 v30, 15, v{V_L}")
    e("v_lshlrev_b32 v31, 2, v30")
    e(f"ds_read_b32 v31, v31 offset:{CN}")
    e(f"s_mul_i32 s41, s{S_BIN}, 5120")
    e("v_lshl_add_u32 v66, v0, 3, s41")
    e("s_mov_b32 s42, 0x358637bd")
    e("v_lshrrev_b32 v32, 4, v0")
    e("v_lshlrev_b32 v32, 2, v32")
    e("v_lshlrev_b32 v33, 4, v30")
    e("s_waitcnt lgkmcnt(0)")
    e("v_lshrrev_b32 v34, 4, v31")
    e(f"v_cmp_eq_u32 vcc, s{S_WAVE}, v34")
    e("s_and_b32 s44, vcc_lo, 0xffff")
    lab("K2_merge")
    e("s_cmp_eq_u32 s44, 0")
    e("s_cbranch_scc1 K2_merged")
    e("s_ff1_i32_b32 s45, s44")
    e("s_bitset0_b32 s44, s45")
    e("v_readlane_b32 s46, v31, s45")
    e("s_add_u32 s45, s45, 40")
    e("s_lshl_b32 s45, s45, 8")
    e("v_add_u32 v35, s45, v33")
    e(f"ds_read_b128 v[36:39], v35 offset:{ACCN}")
    e(f"ds_read_b128 v[40:43], v35 offset:{ACCD}")
    e("v_cmp_eq_u32 vcc, s46, v32")
    e("s_waitcnt lgkmcnt(0)")
    e("s_mov_b64 exec, vcc")
    for r in range(4):
        e(f"v_add_f32 v{16+r}, v{16+r}, v{36+r}")
        e(f"v_add_f32 v{20+r}, v{20+r}, v{40+r}")
    e("s_mov_b64 exec, -1")
    e("s_branch K2_merge")
    lab("K2_merged")
    for r in range(4):
        e(f"v_add_f32 v{20+r}, s42, v{20+r}")
    for r in range(4):
        e(f"v_rcp_f32 v{20+r}, v{20+r}")
    for r in range(4):
        e(f"v_and_b32 v{24+r}, 0xffff0000, v{24+r}")
    for r in range(4):
        e(f"v_fma_f32 v{16+r}, v{16+r}, v{20+r}, v{24+r}")
    for r in range(4):
        e(f"v_mul_f32 v{20+r}, 0, v{16+r}")
    for r in range(4):
        e(f"v_cmp_lt_f32 vcc, 0, v{16+r}")
        nop(2)
        e(f"v_cndmask_b32 v{16+r}, v{20+r}, v{16+r}, vcc")
    e(f"v_lshlrev_b32 v24, 16, v{V_X}")
    e(f"v_and_b32 v25, 0xffff0000, v{V_X}")
    e(f"v_lshlrev_b32 v26, 16, v{V_X+1}")
    e(f"v_and_b32 v27, 0xffff0000, v{V_X+1}")
    for r in range(4):
        e(f"v_add_f32 v{16+r}, v{16+r}, v{24+r}")
    e("v_cvt_pk_bf16_f32 v28, v16, v17")
    e("v_cvt_pk_bf16_f32 v29, v18, v19")
    e(f"global_store_dwordx2 v66, v[28:29], s[22:23]{'' if 'outplain' in OPT else ' sc1'}")
    lab("K2_end")
    stamp(7)
    stamp_store(8, S_WAVE, WS_STAMP, S_BIN)
    lab("K2_done")
    e("s_endpgm")
    lab("K2_idle")
    e(f"v_readfirstlane_b32 s{S_WAVE}, v0")
    e("s_waitcnt lgkmcnt(0)")
    e(f"s_lshr_b32 s{S_WAVE}, s{S_WAVE}, 6")
    warm_table(idle=True)
    e("s_endpgm")
    atomic_flushes()

def gen_diag(spec):
    ka, sa, ra, kb, sb, rb = spec
    out.append(".globl diag_kernel")
    out.append(".p2align 8")
    out.append(".type diag_kernel,@function")
    lab("diag_kernel")
    e("s_cmp_ge_u32 s2, 1")
    e("s_cbranch_scc1 DG_done")
    e("s_load_dwordx2 s[26:27], s[0:1], 88")
    e("s_waitcnt lgkmcnt(0)")
    e(f"s_add_u32 s4, s26, {WS_STAMP + 0x100000:#x}")
    e("s_addc_u32 s5, s27, 0")
    e("s_load_dword s20, s[4:5], 0")
    e("v_mov_b32 v20, 0")
    e("v_mov_b32 v21, 0x7fffffff")
    e("v_mov_b32 v22, 0x80000000")
    e(f"ds_write_b32 v20, v{21 if ra == 'min' else 22} offset:0")
    e(f"ds_write_b32 v20, v{21 if rb == 'min' else 22} offset:4")
    e("s_waitcnt lgkmcnt(0)")
    e("s_barrier")
    def reduce(kern, st, red, off, tag):
        base = WS_STAMP + (0x100000 if kern[0] == '1' else 0)
        w0, w1, nw = {'1b': (0, 250, 10), '1t': (0, 250, 16), '1': (0, 250, 16), '2': (0, 250, 16)}[kern]
        e(f"s_add_u32 s4, s26, {base + 8*st:#x}")
        e("s_addc_u32 s5, s27, 0")
        for r in range(6):
            e(f"v_add_u32 v1, {w0*16 + 1024*r}, v0")
            e("v_and_b32 v3, 15, v1")
            e(f"v_cmp_gt_u32 vcc, {nw}, v3")
            e(f"v_cmp_gt_u32 s[10:11], s30, v1".replace("s30", "s30"))
            e("s_and_b64 vcc, vcc, s[10:11]")
            e("s_and_saveexec_b64 s[12:13], vcc")
            e(f"s_cbranch_execz DG_{tag}{r}")
            e("v_lshlrev_b32 v1, 7, v1")
            e("global_load_dword v2, v1, s[4:5]")
            e("s_waitcnt vmcnt(0)")
            e("v_subrev_u32 v2, s20, v2")
            e(f"ds_{red}_i32 v20, v2 offset:{off}")
            lab(f"DG_{tag}{r}")
            e("s_mov_b64 exec, s[12:13]")
    def bound(kern):
        w1 = 250
        e(f"s_mov_b32 s30, {w1*16}")
    bound(ka); reduce(ka, sa, ra, 0, "a")
    bound(kb); reduce(kb, sb, rb, 4, "b")
    e("s_waitcnt lgkmcnt(0)")
    e("s_barrier")
    e("ds_read_b64 v[4:5], v20")
    e("s_waitcnt lgkmcnt(0)")
    e("v_readfirstlane_b32 s21, v4")
    e("v_readfirstlane_b32 s12, v5")
    e("s_nop 3")
    e("s_sub_u32 s22, s12, s21")
    e("s_max_i32 s22, s22, 0")
    e("s_min_i32 s22, s22, 4000")
    e("s_mul_i32 s22, s22, 20")
    e("s_memrealtime s[14:15]")
    e("s_waitcnt lgkmcnt(0)")
    lab("DG_spin")
    e("s_memrealtime s[16:17]")
    e("s_waitcnt lgkmcnt(0)")
    e("s_sub_u32 s18, s16, s14")
    e("s_cmp_lt_u32 s18, s22")
    e("s_cbranch_scc1 DG_spin")
    lab("DG_done")
    e("s_endpgm")

def kd(name, vgpr, sgpr):
    out.append(".p2align 6")
    out.append(f".amdhsa_kernel {name}")
    out.append(f"  .amdhsa_next_free_vgpr {vgpr}")
    out.append(f"  .amdhsa_next_free_sgpr {sgpr}")
    out.append(f"  .amdhsa_accum_offset {(vgpr+3)//4*4}")
    out.append("  .amdhsa_group_segment_fixed_size 0")
    out.append("  .amdhsa_kernarg_size 96")
    out.append("  .amdhsa_user_sgpr_count 2")
    out.append("  .amdhsa_user_sgpr_kernarg_segment_ptr 1")
    out.append("  .amdhsa_system_sgpr_workgroup_id_x 1")
    out.append(".end_amdhsa_kernel")

HEADER = f"""; Kernarg layout (96 bytes, ptrs only, base s[0:1]):
; @launch kernel={PREP} grid=({NB},1,1) block=(1024,1,1) lds={K1_LDS}
; @launch kernel={MAIN} grid=({K2_GRID},1,1) block=(1024,1,1) lds={K2_LDS}
.amdgcn_target "amdgcn-amd-amdhsa--gfx950"
.text"""

def main():
    global STAMPS
    if "--stamps" in sys.argv:
        STAMPS = True
        sys.argv.remove("--stamps")
    for a in list(sys.argv):
        if a.startswith("--opt="):
            OPT.update(a[6:].split(","))
            sys.argv.remove(a)
    diag = [o for o in OPT if o.startswith("diag=")]
    hdr = HEADER
    if diag:
        hdr = hdr.replace(".amdgcn_target", "; @launch kernel=diag_kernel grid=(1,1,1) block=(1024,1,1) lds=64\n.amdgcn_target")
    out.append(hdr)
    gen_k1()
    gen_k2()
    if diag: gen_diag([int(x) if x.isdigit() and i in (1, 4) else x for i, x in enumerate(diag[0][5:].split(":"))])
    out.append('.section .rodata,"a"')
    if diag: kd("diag_kernel", 32, 48)
    kd(PREP, 80, 102 if STAMPS else 56)
    kd(MAIN, K2_VGPRS, 102 if STAMPS else 80)
    path = sys.argv[1] if len(sys.argv) > 1 else "standalone__edge_featured_mpnn_gatedgcn__graph.s"
    open(path, "w").write("\n".join(out) + "\n")
    print("wrote", path, len(out), "lines")

if __name__ == "__main__":
    main()
```
